```python
import torch

def _softmax(x, axis=-1):
    return torch.softmax(x, dim=axis)
def _gelu(x):
    return torch.nn.functional.gelu(x, approximate="tanh")
def _silu(x):
    return torch.nn.functional.silu(x)
def _sigmoid(x):
    return torch.sigmoid(x)
def _layernorm(x, axis=-1, eps=1e-5):
    m = x.mean(dim=axis, keepdim=True)
    v = x.var(dim=axis, keepdim=True, unbiased=False)
    return (x - m) / torch.sqrt(v + eps)
def _scatter_add(tgt, idx, src, axis=0):
    return tgt.clone().index_add_(axis, idx, src)
def _segment_sum(src, seg, n):
    out = torch.zeros((n,) + src.shape[1:], dtype=src.dtype)
    return out.index_add_(0, seg, src)
def _pad(x, pw):
    flat = tuple(v for pair in reversed(pw) for v in pair)
    return torch.nn.functional.pad(x, flat)

kernel_name = 'standalone__mha_softmax__near_ridge'

def setup_inputs():

    _w = (lambda a: (lambda t: t.to(torch.bfloat16) if t.is_floating_point() else t)(torch.as_tensor(a)))
    B, H, Sq, Sk, D = 8, 32, 368, 1024, 128
    return {
        "q": _w((lambda *s: torch.randn(*s, dtype=torch.bfloat16) * 0.8)(B, H, Sq, D)),
        "k": _w((lambda *s: torch.randn(*s, dtype=torch.bfloat16) * 0.8)(B, H, Sk, D)),
        "v": _w((lambda *s: torch.randn(*s, dtype=torch.bfloat16) * 0.05)(B, H, Sk, D)),
    }

def reference(q, k, v):
    scale = q.shape[-1] ** -0.5
    scores = torch.einsum("bhqd,bhkd->bhqk", q, k) * scale
    p = _softmax(scores, axis=-1)
    return torch.einsum("bhqk,bhkd->bhqd", p, v)
```

```python
import re
REG = re.compile(r"^(-|\|)?([vas])(\d+|\[(\d+):(\d+)\])\|?$")
def regs(op):
    op = op.strip()
    if op in ("vcc",): return [("s", "vcc")]
    if op == "m0": return [("s", "m0")]
    if op == "exec": return [("s", "exec")]
    m = REG.match(op)
    if not m: return []
    k = m.group(2)
    if m.group(4) is not None: return [(k, i) for i in range(int(m.group(4)), int(m.group(5)) + 1)]
    return [(k, int(m.group(3)))]
TRANS = ("v_exp_f32", "v_rcp_f32", "v_log_f32")
def parse(line):
    s = line.split(";")[0].strip()
    if not s or s.endswith(":") or s.startswith("."): return None
    parts = s.split(None, 1)
    op = parts[0]
    rest = parts[1] if len(parts) > 1 else ""
    ops = [o.strip() for o in rest.split(",")]
    if ops:
        ops[-1] = ops[-1].split()[0] if ops[-1] else ""
    d = dict(op=op, text=s, defs=[], uses=[], kind="other", srcC=[], srcAB=[])
    R = [regs(o) for o in ops]
    base = op.replace("_e32", "").replace("_e64", "").replace("_dpp", "")
    if op.startswith("v_mfma"):
        d["kind"] = "mfma"; d["defs"] = R[0]; d["srcAB"] = R[1] + R[2]; d["srcC"] = R[3]; d["uses"] = R[1] + R[2] + R[3]
        d["passes"] = 4 if "16x16x32" in op else 8
    elif op.startswith("ds_read"):
        d["kind"] = "dsr"; d["defs"] = R[0]; d["uses"] = R[1]
    elif op.startswith("ds_write"):
        d["kind"] = "dsw"; d["uses"] = sum(R, [])
    elif op.startswith("ds_bpermute"):
        d["kind"] = "dsr"; d["defs"] = R[0]; d["uses"] = R[1] + R[2]
    elif op.startswith("buffer_load") or op.startswith("global_load"):
        if " lds" in s or "_lds_" in op:
            d["kind"] = "dma"; d["uses"] = sum(R, []) + [("s", "m0")]
        else:
            d["kind"] = "vml"; d["defs"] = R[0]; d["uses"] = sum(R[1:], [])
    elif op.startswith("buffer_store") or op.startswith("global_store"):
        d["kind"] = "vms"; d["uses"] = sum(R, [])
        d["data"] = R[0] if op.startswith("buffer") else R[1]
    elif op.startswith("v_"):
        d["kind"] = "valu"
        if base.startswith("v_cmp"):
            d["defs"] = R[0]; d["uses"] = sum(R[1:], [])
        elif base.startswith("v_add_co") or base.startswith("v_addc_co"):
            d["defs"] = R[0] + R[1]; d["uses"] = sum(R[2:], [])
        elif base.startswith("v_permlane"):
            d["defs"] = R[0] + R[1]; d["uses"] = R[0] + R[1]; d["perm"] = True
        elif base in ("v_readfirstlane_b32", "v_readlane_b32"):
            d["defs"] = R[0]; d["uses"] = sum(R[1:], []); d["rdl"] = True
        else:
            d["defs"] = R[0]; d["uses"] = sum(R[1:], [])
            if base.startswith("v_fmac") or base.startswith("v_dot2c"): d["uses"] += R[0]
        d["trans"] = base in TRANS
        d["dpp"] = "_dpp" in op
    elif op == "s_waitcnt":
        d["kind"] = "wait"
        m = re.search(r"vmcnt\((\d+)\)", s); d["vm"] = int(m.group(1)) if m else None
        m = re.search(r"lgkmcnt\((\d+)\)", s); d["lgkm"] = int(m.group(1)) if m else None
    elif op == "s_nop":
        d["kind"] = "nop"; d["n"] = int(rest) + 1
    elif op.startswith("s_load") or op.startswith("s_memtime") or op.startswith("s_memrealtime"):
        d["kind"] = "smem"; d["defs"] = R[0]; d["uses"] = sum(R[1:], [])
    elif op.startswith("s_"):
        d["kind"] = "salu"
        if op.startswith("s_cmp") or op.startswith("s_cbranch") or op in ("s_branch", "s_barrier", "s_endpgm", "s_setprio", "s_sleep"):
            d["uses"] = sum(R, [])
            if op.startswith("s_cbranch_vcc"): d["uses"] = [("s", "vcc")]
        else:
            d["defs"] = R[0]; d["uses"] = sum(R[1:], [])
            if op.startswith("s_bitset") or op.startswith("s_addk"): d["uses"] += R[0]
    return d

def check(lines, name=""):
    ins = [p for p in (parse(l) for l in lines) if p]
    errs = []
    pos = []; t = 0
    for i in ins:
        pos.append(t); t += i["n"] if i["kind"] == "nop" else 1
    def dist(a, b):
        return pos[b] - pos[a] - (ins[a]["n"] if ins[a]["kind"] == "nop" else 1)
    lg = []
    vm = []
    for b, I in enumerate(ins):
        U = set(I["uses"]); D = set(I["defs"])
        k = I["kind"]
        if k == "wait":
            if I["lgkm"] is not None:
                assert I["lgkm"] <= 15
                if any(ins[x]["kind"] == "smem" for x in lg) and I["lgkm"] > 0:
                    errs.append("%s: counted lgkmcnt with smem outstanding: %s" % (name, I["text"]))
                while len(lg) > I["lgkm"]: lg.pop(0)
            if I["vm"] is not None:
                assert I["vm"] <= 63
                while len(vm) > I["vm"]: vm.pop(0)
        else:
            for x in lg + vm:
                if set(ins[x]["defs"]) & (U | D):
                    errs.append("%s: [%d] %s touches pending load dest of [%d] %s" % (name, b, I["text"], x, ins[x]["text"]))
        if k in ("dsr", "dsw", "smem"): lg.append(b)
        if k in ("vml", "vms", "dma"): vm.append(b)
        a = b - 1
        while a >= 0 and dist(a, b) < 20:
            A = ins[a]; AD = set(A["defs"]); d = dist(a, b)
            need = 0; why = ""
            if A["kind"] == "valu":
                vd = {r for r in AD if r[0] in "va"}; sd = {r for r in AD if r[0] == "s"}
                if k == "mfma" and vd & U: need, why = 2, "valu->mfma"
                if k == "valu":
                    if A.get("trans") and not I.get("trans") and vd & U: need, why = max(need, 1), "trans->valu"
                    if (I.get("perm") or I.get("dpp")) and vd & U: need, why = 2, "valu->perm/dpp"
                    if I.get("rdl") and vd & U: need, why = max(need, 1), "valu->readlane"
                    if sd & U: need, why = max(need, 2), "valu sgpr->valu"
                if k in ("vml", "vms", "dma") and sd & U: need, why = 5, "valu sgpr->vmem"
                if A.get("trans") and k in ("dsw", "vms", "dsr") and vd & U: need, why = max(need, 1), "trans->mem"
            if A["kind"] == "mfma":
                p = A["passes"]
                big = {4: 8, 8: 12}[p]
                if k == "mfma":
                    if AD & set(I["srcAB"]): need, why = big, "mfma D->AB"
                    elif AD & set(I["srcC"]):
                        if A["defs"] != I["srcC"] or A["passes"] != I["passes"]: need, why = {4: 6, 8: 10}[p], "mfma D->C partial"
                    elif AD & D and A["defs"] != I["defs"]: need, why = {4: 6, 8: 10}[p], "mfma WAW partial"
                elif k in ("valu", "dsr", "dsw", "vml", "vms", "dma"):
                    if AD & (U | D): need, why = big, "mfma D->valu/mem"
                    if k == "valu" and set(A["srcC"]) & D: need, why = max(need, {4: 3, 8: 7}[p]), "mfma C WAR"
            if A["kind"] == "salu" and ("s", "m0") in AD and k == "dma": need, why = 1, "m0->dma"
            if A["kind"] == "vms" and len(A["data"]) > 2 and set(A["data"]) & D and k in ("valu", "dsr", "vml", "mfma"): need, why = 2, "store data WAR"
            if d < need:
                errs.append("%s: hazard %s need %d have %d: [%d] %s -> [%d] %s" % (name, why, need, d, a, A["text"], b, I["text"]))
            a -= 1
    return errs
```

```python
import sys, struct, math
sys.path.insert(0, "work")
from chk import check

NAME = "standalone__mha_softmax__near_ridge_kernel"
variant = sys.argv[2] if len(sys.argv) > 2 else ""
opts = dict(kv.split("=") for kv in variant.split(",") if "=" in kv)
flags = set(kv for kv in variant.split(",") if kv and "=" not in kv)
STAMP = "stamp" in flags

def f2u(x): return struct.unpack("<I", struct.pack("<f", x))[0]
SCALE = f2u(128 ** -0.5 * math.log2(math.e))
THRESH = f2u(2.0 ** int(opts.get("thr", 40)))

V_T0, V_T1 = 0, 1
V_OFFA, V_OFFB = 2, 3
V_KA = 4
V_VA = 8
V_NEGM = 16
V_S = 40
V_P = 56
V_O = 64
A_Q = 0
A_K = 96
A_V = 160
A_L = 224
A_ONE = 248
S_QD, S_KD, S_VD, S_OD = 4, 8, 12, 16
S_W, S_KV, S_CNT, S_XM, S_SC, S_REDO = 20, 21, 22, 23, 24, 25
S_T0, S_T1, S_T2, S_QOFF = 26, 27, 28, 29
S_WS = 30
S_ST = 36
LDS_V = 0x10000
LDS_X = 0x20000
NT = "".join(" " + x for x in opts.get("ld", "nt").split("+") if x)
STNT = "".join(" " + x for x in opts.get("st", "").split("+") if x)

def vr(b, n=4): return "v[%d:%d]" % (b, b + n - 1)
def ar(b, n=4): return "a[%d:%d]" % (b, b + n - 1)
def sr(b, n=4): return "s[%d:%d]" % (b, b + n - 1)
MF = "v_mfma_f32_16x16x32_bf16"

nstamp = [0]
def stamp(out, idx):
    if STAMP:
        out.append("s_memtime %s" % sr(S_ST + 4 * idx, 2)); out.append("s_memrealtime %s" % sr(S_ST + 4 * idx + 2, 2))
        out.append("s_waitcnt lgkmcnt(0)")
        nstamp[0] = max(nstamp[0], idx + 1)

def qk(buf, t, par, first=False):
    r = []
    for T in range(2):
        d = vr(V_S + 8 * par + 4 * T)
        for ks in range(4):
            c = d if ks else ("0" if first else vr(V_NEGM + 4 * t))
            r.append("%s %s, %s, %s, %s" % (MF, d, ar(A_K + 32 * buf + 16 * T + 4 * ks), ar(A_Q + 16 * t + 4 * ks), c))
    return r
def pv(buf, t, par, first=False):
    r = []
    P = vr(V_P + 4 * par)
    for dt in range(8):
        o = vr(V_O + 32 * t + 4 * dt)
        r.append("%s %s, %s, %s, %s" % (MF, o, P, ar(A_V + 32 * buf + 4 * dt), "0" if first else o))
    l = ar(A_L + 4 * t)
    r.append("%s %s, %s, %s, %s" % (MF, l, P, ar(A_ONE), "0" if first else l))
    return r
def kreads(buf, sub):
    return ["ds_read_b128 %s, v%d offset:%d" % (ar(A_K + 32 * buf + 16 * T + 4 * ks), V_KA + ks, sub * 8192 + T * 4096) for T in range(2) for ks in range(4)]
def vreads(buf, sub):
    return ["ds_read_b64_tr_b16 %s, v%d offset:%d" % (ar(A_V + 32 * buf + 4 * dt + 2 * T, 2), V_VA + dt, sub * 8192 + T * 4096) for dt in range(8) for T in range(2)]
def kv_dma():
    return ["s_and_b32 m0, s%d, 0xffff" % S_KV,
            "buffer_load_dwordx4 v%d, %s, s%d offen%s lds" % (V_OFFA, sr(S_KD), S_KV, NT),
            "buffer_load_dwordx4 v%d, %s, s%d offen offset:1024%s lds" % (V_OFFB, sr(S_KD), S_KV, NT),
            "s_bitset1_b32 m0, 16",
            "buffer_load_dwordx4 v%d, %s, s%d offen%s lds" % (V_OFFA, sr(S_VD), S_KV, NT),
            "buffer_load_dwordx4 v%d, %s, s%d offen offset:1024%s lds" % (V_OFFB, sr(S_VD), S_KV, NT),
            "s_add_u32 s%d, s%d, 8192" % (S_KV, S_KV)]
def with_m0_nops(seq):
    out = []
    for i, s in enumerate(seq):
        out.append(s)
        if ("m0," in s) and i + 1 < len(seq) and "lds" in seq[i + 1]: out.append("s_nop 0")
    return out
def q_dma(t):
    r = []
    if t < 2: r.append("s_add_u32 m0, s%d, 0x%x" % (S_T1, 0x8000 + t * 4096))
    else: r.append("s_add_u32 m0, s%d, 0x%x" % (S_T2, 0x18000 + (t - 2) * 4096))
    r.append("s_nop 0")
    for p in range(4):
        r.append("buffer_load_dwordx4 v%d, %s, s%d offen offset:%d%s lds" % (V_OFFA + (p & 1), sr(S_QD), S_QOFF, 1024 * p, NT))
    r.append("s_add_u32 s%d, s%d, 4096" % (S_QOFF, S_QOFF))
    return r

def softmax_items(par):
    S = V_S + 8 * par; P = V_P + 4 * par
    ex = ["v_exp_f32 v%d, v%d" % (S + i, S + i) for i in range(8)]
    cv = ["v_cvt_pk_bf16_f32 v%d, v%d, v%d" % (P + i, S + 2 * i, S + 2 * i + 1) for i in range(4)]
    return ex, cv

def slot(mf, par, reads, misc):
    ex, cv = softmax_items(par)
    n = len(mf)
    fill = [[] for _ in range(17)]
    epos = [1, 2, 4, 5, 8, 9, 12, 13]
    cpos = [3, 6, 10, 14]
    for e, g in zip(ex, epos): fill[g].append(e)
    rpos = [3, 6, 10, 14, 15, 16]
    for i, r in enumerate(reads): fill[rpos[i]].append(r)
    for c, g in zip(cv, cpos): fill[g].append(c)
    for g, l in misc.items(): fill[g] = list(l) + fill[g] if g in (0,) else fill[g] + list(l)
    out = []
    for i in range(17):
        if i < n: out.append(mf[i])
        out += fill[i]
    return out

def setup():
    o = []
    o.append("s_cmp_ge_u32 s2, 256"); o.append("s_cbranch_scc1 L_end")
    if STAMP:
        o.append("s_memtime %s" % sr(S_ST, 2)); o.append("s_memrealtime %s" % sr(S_ST + 2, 2)); nstamp[0] = 1
        o.append("s_load_dwordx2 %s, s[0:1], 40" % sr(S_WS, 2))
    o.append("s_load_dwordx4 s[4:7], s[0:1], 0")
    o.append("s_load_dwordx4 s[12:15], s[0:1], 16")
    o.append("v_lshrrev_b32 v1, 6, v0")
    o.append("s_mov_b32 s%d, 0" % S_REDO)
    o.append("v_readfirstlane_b32 s%d, v1" % S_W)
    for i in range(24): o.append("v_mov_b32 v%d, 0x7f800000" % (V_NEGM + i))
    o.append("s_lshl_b32 s%d, s2, 18" % S_T0)
    o.append("s_mul_i32 s%d, s2, 94208" % S_T1)
    o.append("s_waitcnt lgkmcnt(0)")
    o.append("s_add_u32 s8, s6, s%d" % S_T0); o.append("s_addc_u32 s9, s7, 0")
    o.append("s_add_u32 s16, s14, s%d" % S_T1); o.append("s_addc_u32 s17, s15, 0")
    o.append("s_add_u32 s12, s12, s%d" % S_T0); o.append("s_addc_u32 s13, s13, 0")
    o.append("s_add_u32 s4, s4, s%d" % S_T1); o.append("s_addc_u32 s5, s5, 0")
    for d, sz in ((S_QD, 94208), (S_KD, 0x40000), (S_VD, 0x40000), (S_OD, 94208)):
        o.append("s_mov_b32 s%d, %d" % (d + 2, sz)); o.append("s_mov_b32 s%d, 0x20000" % (d + 3))
    return o

def restart_common():
    o = []
    o.append("L_restart:")
    o.append("v_mbcnt_lo_u32_b32 v0, -1, 0"); o.append("v_mbcnt_hi_u32_b32 v0, -1, v0")
    o.append("v_lshrrev_b32 v1, 4, v0")
    o.append("v_lshlrev_b32 v%d, 2, v1" % V_OFFA)
    o.append("v_xor_b32 v%d, v%d, v0" % (V_OFFA, V_OFFA))
    o.append("v_and_b32 v%d, 15, v%d" % (V_OFFA, V_OFFA))
    o.append("v_lshlrev_b32 v%d, 4, v%d" % (V_OFFA, V_OFFA))
    o.append("v_lshl_add_u32 v%d, v1, 8, v%d" % (V_OFFA, V_OFFA))
    o.append("v_xor_b32 v%d, 32, v%d" % (V_OFFB, V_OFFA))
    o.append("s_lshl_b32 s%d, s%d, 11" % (S_KV, S_W))
    o.append("s_mul_i32 s%d, s%d, 24576" % (S_QOFF, S_W))
    o.append("s_lshl_b32 s%d, s%d, 13" % (S_T1, S_W))
    o.append("s_lshl_b32 s%d, s%d, 14" % (S_T2, S_W))
    o += with_m0_nops(kv_dma())
    o += q_dma(0) + q_dma(1)
    o.append("s_mov_b32 s%d, 0x%x" % (S_SC, SCALE))
    t = V_S
    o.append("v_and_b32 v%d, 3, v0" % t); o.append("v_lshlrev_b32 v%d, 2, v%d" % (t, t))
    o.append("v_lshrrev_b32 v%d, 1, v0" % (t + 1)); o.append("v_and_b32 v%d, 2, v%d" % (t + 1, t + 1))
    o.append("v_or_b32 v%d, v%d, v%d" % (t, t, t + 1))
    o.append("v_xor_b32 v%d, v%d, v1" % (t, t))
    o.append("v_lshlrev_b32 v%d, 4, v%d" % (t, t))
    o.append("v_and_b32 v%d, 15, v0" % (t + 1))
    o.append("v_lshl_add_u32 v%d, v%d, 8, v%d" % (V_KA, t + 1, t))
    for ks in range(1, 4): o.append("v_xor_b32 v%d, %d, v%d" % (V_KA + ks, 64 * ks, V_KA))
    o.append("v_and_b32 v%d, 12, v0" % t)
    o.append("v_and_b32 v%d, 1, v1" % (t + 1)); o.append("v_lshlrev_b32 v%d, 1, v%d" % (t + 1, t + 1))
    o.append("v_or_b32 v%d, v%d, v%d" % (t, t, t + 1))
    o.append("v_lshlrev_b32 v%d, 4, v%d" % (t, t))
    o.append("v_and_b32 v%d, 3, v0" % (t + 1)); o.append("v_lshlrev_b32 v%d, 3, v%d" % (t + 1, t + 1))
    o.append("v_or_b32 v%d, v%d, v%d" % (t, t, t + 1))
    o.append("v_lshrrev_b32 v%d, 2, v0" % (t + 1))
    o.append("v_lshl_add_u32 v%d, v%d, 8, v%d" % (t, t + 1, t))
    o.append("v_add_u32 v%d, 0x%x, v%d" % (V_VA, LDS_V, t))
    for dt in range(1, 8): o.append("v_xor_b32 v%d, %d, v%d" % (V_VA + dt, 32 * dt, V_VA))
    o.append("v_and_b32 v%d, 15, v0" % t); o.append("v_cmp_eq_u32 vcc, 0, v%d" % t)
    o.append("v_mov_b32 v%d, 0x3f803f80" % (t + 1)); o.append("s_nop 0")
    o.append("v_cndmask_b32 v%d, 0, v%d, vcc" % (t, t + 1))
    for i in range(4): o.append("v_accvgpr_write_b32 a%d, v%d" % (A_ONE + i, t))
    for ks in range(4):
        o.append("v_add_u32 v%d, s%d, v%d" % (V_QA0 + ks, S_T1, V_KA + ks))
    o.append("s_add_u32 s%d, s%d, 0x18000" % (S_T0, S_T2))
    for ks in range(4):
        o.append("v_add_u32 v%d, s%d, v%d" % (V_QA1 + ks, S_T0, V_KA + ks))
    o.append("s_waitcnt vmcnt(8)")
    o += q_dma(2)
    o.append("s_barrier")
    o += kreads(0, 0)
    o += vreads(0, 0)[:7]
    o.append("s_waitcnt lgkmcnt(4)")
    o += vreads(0, 0)[7:]
    stamp(o, 1)
    o.append("s_cmp_eq_u32 s%d, 3" % S_W)
    o.append("s_cbranch_scc1 L_pro5")
    return o
V_RAW = V_O + 160
V_QA0 = V_O + 176
V_QA1 = V_O + 180
V_TMP = V_O + 184

def prologue(NQ):
    o = []
    par = lambda s, t: (s * NQ + t) % 2
    pend = [("q", t) for t in range(3, NQ)] + [("kv", s) for s in (1, 2, 3)]
    for t in range(NQ):
        o.append("s_waitcnt vmcnt(8)")
        base, off = (V_QA0, 0x8000 + t * 4096) if t < 2 else (V_QA1, (t - 2) * 4096)
        for ks in range(4):
            o.append("ds_read_b128 %s, v%d offset:%d" % (vr(V_RAW + 4 * ks), base + ks, off))
        kind, idx = pend.pop(0)
        o += q_dma(idx) if kind == "q" else with_m0_nops(kv_dma())
        o.append("s_waitcnt lgkmcnt(0)")
        for i in range(16):
            a, b = V_TMP + 2 * (i % 4), V_TMP + 2 * (i % 4) + 1
            o.append("v_lshlrev_b32 v%d, 16, v%d" % (a, V_RAW + i))
            o.append("v_and_b32 v%d, 0xffff0000, v%d" % (b, V_RAW + i))
            o.append("v_mul_f32 v%d, s%d, v%d" % (a, S_SC, a))
            o.append("v_mul_f32 v%d, s%d, v%d" % (b, S_SC, b))
            o.append("v_cvt_pk_bf16_f32 v%d, v%d, v%d" % (a, a, b))
            o.append("v_accvgpr_write_b32 a%d, v%d" % (A_Q + 16 * t + i, a))
        o.append("s_nop 1")
        o += qk(0, t, par(0, t), first=True)
        if t > 0: o += pv(0, t - 1, par(0, t - 1), first=True)
        else: o.append("s_nop 7")
        S = V_S + 8 * par(0, t)
        m, m2 = V_TMP, V_TMP + 1
        o.append("v_max3_f32 v%d, v%d, v%d, v%d" % (m, S, S + 1, S + 2))
        o.append("v_max3_f32 v%d, v%d, v%d, v%d" % (m2, S + 3, S + 4, S + 5))
        o.append("v_max3_f32 v%d, v%d, v%d, v%d" % (m, m, S + 6, S + 7))
        o.append("v_max_f32 v%d, v%d, v%d" % (m, m, m2))
        o.append("v_mov_b32 v%d, v%d" % (m2, m)); o.append("s_nop 1")
        o.append("v_permlane32_swap_b32 v%d, v%d" % (m, m2))
        o.append("v_max_f32 v%d, v%d, v%d" % (m, m, m2))
        o.append("v_mov_b32 v%d, v%d" % (m2, m)); o.append("s_nop 1")
        o.append("v_permlane16_swap_b32 v%d, v%d" % (m, m2))
        o.append("v_max_f32 v%d, v%d, v%d" % (m, m, m2))
        N = V_NEGM + 4 * t
        o.append("v_min_f32 v%d, -v%d, v%d" % (N, m, N))
        for i in range(1, 4): o.append("v_mov_b32 v%d, v%d" % (N + i, N))
        for i in range(8): o.append("v_add_f32 v%d, v%d, v%d" % (S + i, S + i, N))
        ex, cv = softmax_items(par(0, t))
        o += ex + cv
    stamp(o, 2)
    assert not pend
    for i in range(32): o.append("v_mov_b32 v%d, 0" % (V_O + 32 * (NQ - 1) + i))
    for i in range(4): o.append("v_accvgpr_write_b32 a%d, 0" % (A_L + 4 * (NQ - 1) + i))
    o.append("s_waitcnt vmcnt(8)")
    o.append("s_barrier")
    o += kreads(1, 1)
    o += vreads(1, 1)[:7]
    o += with_m0_nops(kv_dma())
    o.append("s_waitcnt lgkmcnt(7)")
    o += vreads(1, 1)[7:]
    o += qk(1, 0, par(1, 0))
    o += with_m0_nops(kv_dma())
    o.append("s_mov_b32 s%d, 0x4000" % S_XM)
    for ks in range(4): o.append("v_xor_b32 v%d, s%d, v%d" % (V_KA + ks, S_XM, V_KA + ks))
    o.append("s_mov_b32 s%d, 15" % S_CNT)
    o.append("s_waitcnt lgkmcnt(0)")
    stamp(o, 3)
    return o

def loop_body(NQ):
    o = []
    par = lambda s, t: (s * NQ + t) % 2
    dma = kv_dma() + kv_dma()
    groups = []
    for half in range(2):
        d = dma[7 * half: 7 * half + 7]
        groups += [[d[0]], [d[1]], [d[2], d[3]][:1], [d[3]], [d[4]], [d[5]], [d[6]]]
    for half, s in enumerate((1, 2)):
        buf = s % 2
        rd = kreads(1 - buf, half) + vreads(1 - buf, half)
        per = [4] * 6 if NQ == 6 else [4, 5, 5, 5, 5]
        g = groups[7 * half: 7 * half + 7]
        for t in range(NQ):
            pvb = pv(buf, t - 1, par(s, t - 1)) if t > 0 else pv(1 - buf, NQ - 1, par(s - 1, NQ - 1))
            qkb = qk(buf, t + 1, par(s, t + 1)) if t < NQ - 1 else qk(1 - buf, 0, par(s + 1, 0))
            reads = rd[:per[t]]; rd = rd[per[t]:]
            misc = {}
            if t == 0 and half == 0:
                misc[0] = ["s_waitcnt vmcnt(8)", "s_barrier"]
                x = ["v_xor_b32 v%d, s%d, v%d" % (V_VA + dt, S_XM, V_VA + dt) for dt in range(8)]
                misc[7] = x[0:2]; misc[11] = x[2:4]; misc[15] = x[4:6]; misc[16] = x[6:8]
            if t == 0:
                misc.setdefault(16, []).append("s_waitcnt lgkmcnt(4)")
            if t == 1:
                if half == 0: misc[0] = ["s_xor_b32 s%d, s%d, 0x8000" % (S_XM, S_XM)]
                misc[7] = g[0]; misc[11] = g[1]
            if t == 2:
                misc[0] = g[2]; misc[7] = g[3]; misc[11] = g[4]
            if t == 3:
                misc[0] = g[5]; misc[7] = g[6]
            if t == NQ - 1:
                misc.setdefault(7, []).append("s_waitcnt lgkmcnt(2)")
                if half == 1:
                    x = ["v_xor_b32 v%d, s%d, v%d" % (V_KA + ks, S_XM, V_KA + ks) for ks in range(4)]
                    misc[0] = x[0:2]; misc[11] = x[2:4]
                    misc.setdefault(15, []).append("s_sub_u32 s%d, s%d, 1" % (S_CNT, S_CNT))
                    misc.setdefault(16, []).append("s_cmp_lg_u32 s%d, 0" % S_CNT)
            o += slot(pvb + qkb, par(s, t), reads, misc)
        assert not rd
    return o

def tail(NQ):
    o = []
    par = lambda s, t: (s * NQ + t) % 2
    s = 1; buf = 1
    for t in range(NQ):
        pvb = pv(buf, t - 1, par(s, t - 1)) if t > 0 else pv(1 - buf, NQ - 1, par(s - 1, NQ - 1))
        qkb = qk(buf, t + 1, par(s, t + 1)) if t < NQ - 1 else []
        misc = {}
        if t == 0: misc[16] = ["s_waitcnt lgkmcnt(0)"]
        if t == NQ - 1: misc[9] = ["s_nop 0"]; misc[13] = ["s_nop 0"]; misc[16] = ["s_nop 1"]
        o += slot(pvb + qkb, par(s, t), [], misc)
    o += pv(buf, NQ - 1, par(s, NQ - 1))
    return o

def epilogue(NQ):
    o = []
    WA, RA, SA, ACC = V_KA, V_KA + 1, V_KA + 2, V_KA + 3
    Lr = V_VA; Rr = V_VA + 4
    stamp(o, 4)
    o.append("v_mbcnt_lo_u32_b32 v0, -1, 0"); o.append("v_mbcnt_hi_u32_b32 v0, -1, v0")
    o.append("s_lshl_b32 s%d, s%d, 13" % (S_T0, S_W)); o.append("s_add_u32 s%d, s%d, 0x%x" % (S_T0, S_T0, LDS_X))
    o.append("v_lshrrev_b32 v1, 4, v0")
    o.append("v_and_b32 v%d, 15, v0" % SA)
    o.append("v_mul_u32_u24 v%d, 40, v%d" % (WA, SA))
    o.append("v_lshl_add_u32 v%d, v1, 3, v%d" % (WA, WA))
    o.append("v_add_u32 v%d, s%d, v%d" % (WA, S_T0, WA))
    o.append("v_lshlrev_b32 v%d, 8, v%d" % (SA, SA))
    o.append("v_lshl_add_u32 v%d, v1, 4, v%d" % (SA, SA))
    o.append("v_bfe_u32 v%d, v0, 2, 2" % RA)
    o.append("v_lshl_add_u32 v%d, v1, 3, v%d" % (RA, RA))
    o.append("v_mul_u32_u24 v%d, 40, v%d" % (RA, RA))
    o.append("v_and_b32 v1, 3, v0")
    o.append("v_lshl_add_u32 v%d, v1, 3, v%d" % (RA, RA))
    o.append("v_add_u32 v%d, s%d, v%d" % (RA, S_T0, RA))
    o.append("v_mov_b32 v%d, 0" % ACC)
    o.append("s_mul_i32 s%d, s%d, 24576" % (S_QOFF, S_W))
    def stores(t):
        r = []
        for s in range(4):
            r.append("buffer_store_dwordx4 %s, v%d, %s, s%d offen offset:%d%s" % (ar(A_K + 16 * t + 4 * s), SA, sr(S_OD), S_QOFF, 64 * s, STNT))
        r.append("s_add_u32 s%d, s%d, 4096" % (S_QOFF, S_QOFF))
        return r
    for t in range(NQ):
        for r in range(4): o.append("v_accvgpr_read_b32 v%d, a%d" % (Lr + r, A_L + 4 * t + r))
        for r in range(4): o.append("v_add_f32 v%d, v%d, v%d" % (ACC, ACC, Lr + r))
        for r in range(4): o.append("v_rcp_f32_dpp v%d, v%d row_newbcast:0 row_mask:0xf bank_mask:0xf" % (Rr + r, Lr + r))
        o.append("s_nop 0")
        for dt in range(8):
            b = V_O + 32 * t + 4 * dt
            o.append("v_pk_mul_f32 %s, %s, %s" % (vr(b, 2), vr(b, 2), vr(Rr, 2)))
            o.append("v_pk_mul_f32 %s, %s, %s" % (vr(b + 2, 2), vr(b + 2, 2), vr(Rr + 2, 2)))
            o.append("v_cvt_pk_bf16_f32 v%d, v%d, v%d" % (b, b, b + 1))
            o.append("v_cvt_pk_bf16_f32 v%d, v%d, v%d" % (b + 1, b + 2, b + 3))
            o.append("ds_write_b64 v%d, %s offset:%d" % (WA, vr(b, 2), dt * 640))
            if dt == 3 and t > 0:
                o.append("s_waitcnt lgkmcnt(4)")
                o += stores(t - 1)
        for s in range(4):
            for hh in range(2):
                o.append("ds_read_b64_tr_b16 %s, v%d offset:%d" % (ar(A_K + 16 * t + 4 * s + 2 * hh, 2), RA, (32 * s + 4 * hh) * 40))
    o.append("s_waitcnt lgkmcnt(0)")
    o += stores(NQ - 1)
    stamp(o, 5)
    o.append("s_mov_b32 s%d, 0x%x" % (S_T1, THRESH))
    o.append("v_cmp_ngt_f32 vcc, s%d, v%d" % (S_T1, ACC))
    o.append("s_cmp_lg_u64 vcc, 0")
    o.append("s_cselect_b32 s%d, 1, 0" % S_T1)
    o.append("v_mov_b32 v1, s%d" % S_T1)
    o.append("v_mov_b32 v%d, s%d" % (WA, S_T0))
    o.append("ds_write_b32 v%d, v1 offset:6144" % WA)
    o.append("v_and_b32 v%d, 3, v0" % RA)
    o.append("v_lshlrev_b32 v%d, 13, v%d" % (RA, RA))
    o.append("v_add_u32 v%d, 0x%x, v%d" % (RA, LDS_X, RA))
    o.append("s_waitcnt lgkmcnt(0)")
    o.append("s_barrier")
    o.append("ds_read_b32 v1, v%d offset:6144" % RA)
    o.append("s_waitcnt lgkmcnt(0)")
    o.append("v_cmp_ne_u32 vcc, 0, v1")
    o.append("s_cmp_lg_u32 s%d, 0" % S_REDO)
    o.append("s_cbranch_scc1 L_fin")
    if "twice" in flags:
        o.append("s_waitcnt vmcnt(0)"); o.append("s_barrier"); o.append("s_mov_b32 s%d, 1" % S_REDO); o.append("s_branch L_restart")
    o.append("s_cbranch_vccz L_fin")
    return o

def redo(NQ):
    o = []
    o.append("s_waitcnt vmcnt(0)")
    o.append("s_barrier")
    o.append("s_mov_b32 s%d, 1" % S_REDO)
    M = V_O + 64
    AD = V_KA
    o.append("v_and_b32 v%d, 15, v0" % AD); o.append("v_lshlrev_b32 v%d, 8, v%d" % (AD, AD))
    o.append("v_lshrrev_b32 v1, 4, v0"); o.append("v_lshl_add_u32 v%d, v1, 4, v%d" % (AD, AD))
    for t in range(NQ): o.append("v_mov_b32 v%d, 0xff800000" % (M + t))
    o.append("s_mov_b32 s%d, 0" % S_T0)
    o.append("L_max%d:" % NQ)
    body = []
    for ks in range(4):
        body.append("buffer_load_dwordx4 %s, v%d, %s, s%d offen offset:%d" % (ar(A_K + 4 * ks), AD, sr(S_KD), S_T0, 64 * ks))
    body.append("s_waitcnt vmcnt(0)")
    for t in range(NQ):
        d = vr(V_O + 4 * t)
        for ks in range(4):
            body.append("%s %s, %s, %s, %s" % (MF, d, ar(A_K + 4 * ks), ar(A_Q + 16 * t + 4 * ks), d if ks else "0"))
    body.append("s_nop 7")
    for t in range(NQ):
        b = V_O + 4 * t
        body.append("v_max3_f32 v%d, v%d, v%d, v%d" % (M + t, M + t, b, b + 1))
        body.append("v_max3_f32 v%d, v%d, v%d, v%d" % (M + t, M + t, b + 2, b + 3))
    body.append("s_add_u32 s%d, s%d, 4096" % (S_T0, S_T0))
    body.append("s_cmp_lt_u32 s%d, 0x40000" % S_T0)
    o += body
    o.append("s_cbranch_scc1 L_max%d" % NQ)
    post = []
    for t in range(NQ):
        m, m2 = M + t, V_T1
        post.append("v_mov_b32 v%d, v%d" % (m2, m)); post.append("s_nop 1")
        post.append("v_permlane32_swap_b32 v%d, v%d" % (m, m2))
        post.append("v_max_f32 v%d, v%d, v%d" % (m, m, m2))
        post.append("v_mov_b32 v%d, v%d" % (m2, m)); post.append("s_nop 1")
        post.append("v_permlane16_swap_b32 v%d, v%d" % (m, m2))
        post.append("v_max_f32 v%d, v%d, v%d" % (m, m, m2))
        post.append("v_sub_f32 v%d, 0, v%d" % (V_NEGM + 4 * t, m))
    o += post
    o.append("s_branch L_restart")
    return o, body

def fin():
    o = ["L_fin:"]
    if STAMP:
        o.append("s_waitcnt vmcnt(0)")
        stamp(o, 6)
        w = int(opts.get("sw", 0))
        o.append("s_cmp_lg_u32 s%d, %d" % (S_W, w)); o.append("s_cbranch_scc1 L_end")
        o.append("s_lshl_b32 s3, s2, 9")
        o.append("s_add_u32 s%d, s%d, s3" % (S_WS, S_WS)); o.append("s_addc_u32 s%d, s%d, 0" % (S_WS + 1, S_WS + 1))
        n = nstamp[0]
        for i in range(4 * n): o.append("v_mov_b32 v%d, s%d" % (64 + i, S_ST + i))
        o.append("v_mov_b32 v1, 0"); o.append("s_mov_b64 exec, 1")
        for i in range(n): o.append("global_store_dwordx4 v1, %s, %s offset:%d" % (vr(64 + 4 * i), sr(S_WS, 2), 16 * i))
    o.append("L_end:")
    o.append("s_endpgm")
    return o

su = setup(); rc = restart_common()
code = su + rc
errs = []
for NQ in (6, 5):
    pro = prologue(NQ); lb = loop_body(NQ); tl = tail(NQ); ep = epilogue(NQ); rd, rbody = redo(NQ)
    errs += check(su + rc + pro + lb + ["s_cbranch_scc1 x"] + lb + ["s_cbranch_scc1 x"] + tl + ep + rd + rc, "NQ%d" % NQ)
    errs += check(rbody + ["s_cbranch_scc1 x"] + rbody, "max%d" % NQ)
    if NQ == 5: code.append("L_pro5:")
    code += pro
    code.append(".p2align 6")
    code.append("L_loop%d:" % NQ)
    code += lb
    code.append("s_cbranch_scc1 L_loop%d" % NQ)
    code += tl + ep + rd
code += fin()
for e in errs: print("ERR", e)
if errs: sys.exit(1)

hdr = open("standalone__mha_softmax__near_ridge.s.ref").read().split("; Override launch")[0]
L = hdr.rstrip("\n").split("\n")
L.append("; @launch grid=(256,1,1) block=(256,1,1) lds=163840")
if STAMP: L.append("; nstamps %d" % nstamp[0]); L.append("; variant: " + variant)
L += ['.amdgcn_target "amdgcn-amd-amdhsa--gfx950"', ".text", ".globl " + NAME, ".p2align 8", ".type %s,@function" % NAME, NAME + ":"]
for c in code:
    L.append(c if c.endswith(":") or c.startswith(".") else "    " + c)
L += ['.section .rodata,"a"', ".p2align 6", ".amdhsa_kernel " + NAME,
      "  .amdhsa_next_free_vgpr 512", "  .amdhsa_next_free_sgpr 96", "  .amdhsa_accum_offset 256",
      "  .amdhsa_group_segment_fixed_size 0", "  .amdhsa_kernarg_size 48", "  .amdhsa_user_sgpr_count 2",
      "  .amdhsa_user_sgpr_kernarg_segment_ptr 1", "  .amdhsa_system_sgpr_workgroup_id_x 1", ".end_amdhsa_kernel"]
open(sys.argv[1], "w").write("\n".join(L) + "\n")
```

```python
from chk import parse
def need_between(A, I):
    U = set(I["uses"]); D = set(I["defs"]); k = I["kind"]; AD = set(A["defs"])
    need = 0; why = ""
    def up(n, w):
        nonlocal need, why
        if n > need: need, why = n, w
    if A["kind"] == "valu":
        vd = {r for r in AD if r[0] in "va"}; sd = {r for r in AD if r[0] == "s"}
        if k == "mfma" and vd & U: up(2, "valu->mfma")
        if k == "valu":
            if A.get("trans") and not I.get("trans") and vd & U: up(1, "trans->valu")
            if (I.get("perm") or I.get("dpp")) and vd & U: up(2, "valu->perm/dpp")
            if I.get("rdl") and vd & U: up(1, "valu->readlane")
            if sd & U: up(2, "valu sgpr->valu")
        if k in ("vml", "vms", "dma") and sd & U: up(5, "valu sgpr->vmem")
        if A.get("trans") and k in ("dsw", "vms", "dsr") and vd & U: up(1, "trans->mem")
    if A["kind"] == "mfma":
        p = A["passes"]; big = {4: 8, 8: 12}[p]
        if k == "mfma":
            if AD & set(I["srcAB"]): up(big, "mfma D->AB")
            if AD & set(I["srcC"]) and (A["defs"] != I["srcC"] or A["passes"] != I["passes"]): up({4: 6, 8: 10}[p], "mfma D->C partial")
            if AD & D and A["defs"] != I["defs"]: up({4: 6, 8: 10}[p], "mfma WAW partial")
        elif k in ("valu", "dsr", "dsw", "vml", "vms", "dma"):
            if AD & (U | D): up(big, "mfma D->valu/mem")
            if k == "valu" and set(A["srcC"]) & D: up({4: 3, 8: 7}[p], "mfma C WAR")
    if A["kind"] == "salu" and ("s", "m0") in AD and k == "dma": up(1, "m0->dma")
    if A["kind"] == "vms" and len(A["data"]) > 2 and set(A["data"]) & D and k in ("valu", "dsr", "vml", "mfma"): up(2, "store data WAR")
    return need, why

def process(segs):
    hist = []
    lg = []; vm = []
    errs = []; out = {}
    cnt = [0]
    def push(I):
        I["at"] = cnt[0]; cnt[0] += 1
        hist.append(I)
        if len(hist) > 40: hist.pop(0)
    def apply_wait(I):
        if I["lgkm"] is not None:
            if any(x["kind"] == "smem" for x in lg) and I["lgkm"] > 0: errs.append("counted lgkmcnt with smem outstanding")
            while len(lg) > I["lgkm"]: lg.pop(0)
        if I["vm"] is not None:
            while len(vm) > I["vm"]: vm.pop(0)
    for name, lines, fix in segs:
        res = []
        for line in lines:
            I = parse(line)
            if I is None: res.append(line); continue
            if I["kind"] == "wait":
                assert (I["lgkm"] or 0) <= 15 and (I["vm"] or 0) <= 63
                apply_wait(I); res.append(line); push(I); continue
            T = set(I["uses"]) | set(I["defs"])
            idx = [n for n, x in enumerate(lg) if set(x["defs"]) & T]
            if idx:
                if fix:
                    n = sum(1 for x in lg[idx[-1] + 1:] if cnt[0] - x["at"] < 24)
                    if any(x["kind"] == "smem" for x in lg): n = 0
                    w = "s_waitcnt lgkmcnt(%d)" % min(n, 15)
                    W = parse(w); apply_wait(W); res.append(w); push(W)
                else: errs.append("%s: %s touches pending ds load %s" % (name, I["text"], lg[idx[-1]]["text"]))
            idx = [n for n, x in enumerate(vm) if set(x["defs"]) & T]
            if idx: errs.append("%s: %s touches pending vmem load %s" % (name, I["text"], vm[idx[-1]]["text"]))
            d = 0; short = 0; msg = ""
            for A in reversed(hist):
                need, why = need_between(A, I)
                if need - d > short: short = need - d; msg = "%s need %d have %d: %s -> %s" % (why, need, d, A["text"], I["text"])
                d += A["n"] if A["kind"] == "nop" else 1
                if d >= 20: break
            if short > 0:
                if fix:
                    w = "s_nop %d" % (short - 1); res.append(w); push(parse(w))
                else: errs.append("%s: hazard %s" % (name, msg))
            if I["kind"] in ("dsr", "dsw", "smem"): lg.append(I)
            if I["kind"] in ("vml", "vms", "dma"): vm.append(I)
            res.append(line); push(I)
        if name in out:
            if out[name] != res: errs.append("segment %s fixed differently on second visit" % name)
        else: out[name] = res
    return out, errs
```

```python
import sys, struct, math
sys.path.insert(0, "work")
from chk2 import process

NAME = "standalone__mha_softmax__near_ridge_kernel"
variant = sys.argv[2] if len(sys.argv) > 2 else ""
opts = dict(kv.split("=") for kv in variant.split(",") if "=" in kv)
flags = set(kv for kv in variant.split(",") if kv and "=" not in kv)
STAMP = "stamp" in flags
def f2u(x): return struct.unpack("<I", struct.pack("<f", x))[0]
SCALE = f2u(128 ** -0.5 * math.log2(math.e))
THRESH = f2u(2.0 ** int(opts.get("thr", 40)))
NVS = int(opts.get("nvs", 2))

V_LS = 0
V_OFFA, V_OFFB = 2, 3
V_KA = 4
V_VA = 8
V_NEGM = 16
V_S = 40
V_P = 56
V_O = 64
V_RAW = V_O + 160; V_QA0 = V_O + 176; V_QA1 = V_O + 180; V_TMP = V_O + 184
A_Q = 0; A_K = 96; A_V = 160; A_L = 224; A_ONE = 248
S_QD, S_KD, S_VD, S_OD = 4, 8, 12, 16
S_W, S_KV, S_CNT, S_XM, S_SC, S_REDO = 20, 21, 22, 23, 24, 25
S_T0, S_T1, S_T2, S_QOFF = 26, 27, 28, 29
S_WS = 30; S_ST = 36
LDS_V = 0x10000; LDS_X = 0x20000
NT = "".join(" " + x for x in opts.get("ld", "nt").split("+") if x)
STNT = "".join(" " + x for x in opts.get("st", "sc0+sc1+nt").split("+") if x)
def vr(b, n=4): return "v[%d:%d]" % (b, b + n - 1)
def ar(b, n=4): return "a[%d:%d]" % (b, b + n - 1)
def sr(b, n=4): return "s[%d:%d]" % (b, b + n - 1)
MF = "v_mfma_f32_16x16x32_bf16"
nstamp = [0]
def stamp(idx):
    if not STAMP: return []
    nstamp[0] = max(nstamp[0], idx + 1)
    return ["s_memtime %s" % sr(S_ST + 4 * idx, 2), "s_memrealtime %s" % sr(S_ST + 4 * idx + 2, 2), "s_waitcnt lgkmcnt(0)"]

def qk(buf, t, par, first=False):
    r = []
    for T in range(2):
        d = vr(V_S + 8 * par + 4 * T)
        for ks in range(4):
            c = d if ks else ("0" if first else vr(V_NEGM + 4 * t))
            r.append("%s %s, %s, %s, %s" % (MF, d, ar(A_K + 32 * buf + 16 * T + 4 * ks), ar(A_Q + 16 * t + 4 * ks), c))
    return r
def pv(buf, t, par, first=False, msum=True):
    r = []
    P = vr(V_P + 4 * par)
    for dt in range(8):
        o = vr(V_O + 32 * t + 4 * dt)
        r.append("%s %s, %s, %s, %s" % (MF, o, P, ar(A_V + 32 * buf + 4 * dt), "0" if first else o))
    if msum:
        l = ar(A_L + 4 * t)
        r.append("%s %s, %s, %s, %s" % (MF, l, P, ar(A_ONE), "0" if first else l))
    return r
def kreads(buf, sub):
    return ["ds_read_b128 %s, v%d offset:%d" % (ar(A_K + 32 * buf + 16 * T + 4 * ks), V_KA + ks, sub * 8192 + T * 4096) for T in range(2) for ks in range(4)]
def vreads(buf, sub):
    return ["ds_read_b64_tr_b16 %s, v%d offset:%d" % (ar(A_V + 32 * buf + 4 * dt + 2 * T, 2), V_VA + dt, sub * 8192 + T * 4096) for dt in range(8) for T in range(2)]
def kv_dma():
    return ["s_and_b32 m0, s%d, 0xffff" % S_KV,
            "buffer_load_dwordx4 v%d, %s, s%d offen%s lds" % (V_OFFA, sr(S_KD), S_KV, NT),
            "buffer_load_dwordx4 v%d, %s, s%d offen offset:1024%s lds" % (V_OFFB, sr(S_KD), S_KV, NT),
            "s_bitset1_b32 m0, 16",
            "buffer_load_dwordx4 v%d, %s, s%d offen%s lds" % (V_OFFA, sr(S_VD), S_KV, NT),
            "buffer_load_dwordx4 v%d, %s, s%d offen offset:1024%s lds" % (V_OFFB, sr(S_VD), S_KV, NT),
            "s_add_u32 s%d, s%d, 8192" % (S_KV, S_KV)]
def q_dma(t):
    r = []
    if t < 2: r.append("s_add_u32 m0, s%d, 0x%x" % (S_T1, 0x8000 + t * 4096))
    else: r.append("s_add_u32 m0, s%d, 0x%x" % (S_T2, 0x18000 + (t - 2) * 4096))
    for p in range(4):
        r.append("buffer_load_dwordx4 v%d, %s, s%d offen offset:%d%s lds" % (V_OFFA + (p & 1), sr(S_QD), S_QOFF, 1024 * p, NT))
    r.append("s_add_u32 s%d, s%d, 4096" % (S_QOFF, S_QOFF))
    return r
def sm_items(par):
    S = V_S + 8 * par; P = V_P + 4 * par
    ex = ["v_exp_f32 v%d, v%d" % (S + i, S + i) for i in range(8)]
    cv = ["v_cvt_pk_bf16_f32 v%d, v%d, v%d" % (P + i, S + 2 * i, S + 2 * i + 1) for i in range(4)]
    return ex, cv
def sm_seq(par):
    ex, cv = sm_items(par)
    return [ex[0], ex[1], ex[2], cv[0], ex[3], ex[4], cv[1], ex[5], ex[6], cv[2], ex[7], "@gap", cv[3]]
def cost(s):
    if s.startswith("v_exp") or s.startswith("v_rcp") or s.startswith("buffer_"): return 8
    return 4
def merge(a, b):
    ta = sum(map(cost, a)) or 1; tb = sum(map(cost, b)) or 1
    out = []; i = j = 0; ca = cb = 0
    while i < len(a) or j < len(b):
        if j >= len(b) or (i < len(a) and ca * tb <= cb * ta): out.append(a[i]); ca += cost(a[i]); i += 1
        else: out.append(b[j]); cb += cost(b[j]); j += 1
    return out
def weave(mf, fill, start=0, end=None):
    n = len(mf); end = n if end is None else end
    fill = [f for f in fill if f != "@gap"]
    tot = sum(map(cost, fill)); ng = max(end - start, 1)
    out = []; i = 0; used = 0
    for g in range(n):
        out.append(mf[g])
        if g < start or g >= end: continue
        per = max(8.0, tot / ng)
        lim = per * (g - start + 1)
        gap = 0
        while i < len(fill) and used + cost(fill[i]) <= lim + 0.01 and (gap + cost(fill[i]) <= max(8, math.ceil(per / 4) * 4 + 4)):
            out.append(fill[i]); used += cost(fill[i]); gap += cost(fill[i]); i += 1
        if g == end - 1:
            out += fill[i:]; i = len(fill)
    out += fill[i:]
    return out

def setup():
    o = ["s_cmp_ge_u32 s2, 256", "s_cbranch_scc1 L_end"]
    if STAMP:
        o.append("s_memtime %s" % sr(S_ST, 2)); o.append("s_memrealtime %s" % sr(S_ST + 2, 2)); nstamp[0] = 1
        o.append("s_load_dwordx2 %s, s[0:1], 40" % sr(S_WS, 2))
    o.append("s_load_dwordx4 s[4:7], s[0:1], 0")
    o.append("s_load_dwordx4 s[12:15], s[0:1], 16")
    o.append("v_lshrrev_b32 v1, 6, v0")
    o.append("s_mov_b32 s%d, 0" % S_REDO)
    o.append("v_readfirstlane_b32 s%d, v1" % S_W)
    for t in range(6): o.append("v_mov_b32 v%d, 0x7f800000" % (V_NEGM + 4 * t))
    o.append("s_lshl_b32 s32, s2, 18")
    o.append("s_mul_i32 s33, s2, 94208")
    o += offs()
    o.append("s_mov_b32 s10, 0x40000"); o.append("s_mov_b32 s11, 0x20000")
    o.append("s_mov_b32 s18, 94208"); o.append("s_mov_b32 s19, 0x20000")
    o.append("s_waitcnt lgkmcnt(0)")
    o.append("s_add_u32 s8, s6, s32"); o.append("s_addc_u32 s9, s7, 0")
    o.append("s_add_u32 s16, s14, s33"); o.append("s_addc_u32 s17, s15, 0")
    o.append("s_add_u32 s12, s12, s32"); o.append("s_addc_u32 s13, s13, 0")
    o.append("s_add_u32 s4, s4, s33"); o.append("s_addc_u32 s5, s5, 0")
    o.append("s_mov_b32 s14, 0x40000"); o.append("s_mov_b32 s15, 0x20000")
    o.append("s_mov_b32 s6, 94208"); o.append("s_mov_b32 s7, 0x20000")
    return o
def offs():
    o = []
    o.append("v_mbcnt_lo_u32_b32 v0, -1, 0"); o.append("v_mbcnt_hi_u32_b32 v0, -1, v0")
    o.append("v_lshrrev_b32 v1, 4, v0")
    o.append("v_lshlrev_b32 v%d, 2, v1" % V_OFFA)
    o.append("v_xor_b32 v%d, v%d, v0" % (V_OFFA, V_OFFA))
    o.append("v_and_b32 v%d, 15, v%d" % (V_OFFA, V_OFFA))
    o.append("v_lshlrev_b32 v%d, 4, v%d" % (V_OFFA, V_OFFA))
    o.append("v_lshl_add_u32 v%d, v1, 8, v%d" % (V_OFFA, V_OFFA))
    o.append("v_xor_b32 v%d, 32, v%d" % (V_OFFB, V_OFFA))
    o.append("s_lshl_b32 s%d, s%d, 11" % (S_KV, S_W))
    o.append("s_mul_i32 s%d, s%d, 24576" % (S_QOFF, S_W))
    o.append("s_lshl_b32 s%d, s%d, 13" % (S_T1, S_W))
    o.append("s_lshl_b32 s%d, s%d, 14" % (S_T2, S_W))
    return o
def common():
    o = ["L_restart:"]
    if "touch" in flags:
        o.append("v_and_b32 v%d, 7, v0" % V_P); o.append("v_lshlrev_b32 v%d, 12, v%d" % (V_P, V_P))
        o.append("buffer_load_dword v%d, v%d, %s, s%d offen nt" % (V_P + 1, V_P, sr(S_OD), S_QOFF))
    o += kv_dma() + kv_dma() + q_dma(0)
    o.append("s_mov_b32 s%d, 0x%x" % (S_SC, SCALE))
    t = V_S
    o.append("v_and_b32 v%d, 3, v0" % t); o.append("v_lshlrev_b32 v%d, 2, v%d" % (t, t))
    o.append("v_lshrrev_b32 v%d, 1, v0" % (t + 1)); o.append("v_and_b32 v%d, 2, v%d" % (t + 1, t + 1))
    o.append("v_or_b32 v%d, v%d, v%d" % (t, t, t + 1))
    o.append("v_xor_b32 v%d, v%d, v1" % (t, t))
    o.append("v_lshlrev_b32 v%d, 4, v%d" % (t, t))
    o.append("v_and_b32 v%d, 15, v0" % (t + 1))
    o.append("v_lshl_add_u32 v%d, v%d, 8, v%d" % (V_KA, t + 1, t))
    for ks in range(1, 4): o.append("v_xor_b32 v%d, %d, v%d" % (V_KA + ks, 64 * ks, V_KA))
    o.append("v_and_b32 v%d, 12, v0" % t)
    o.append("v_and_b32 v%d, 1, v1" % (t + 1)); o.append("v_lshlrev_b32 v%d, 1, v%d" % (t + 1, t + 1))
    o.append("v_or_b32 v%d, v%d, v%d" % (t, t, t + 1))
    o.append("v_lshlrev_b32 v%d, 4, v%d" % (t, t))
    o.append("v_and_b32 v%d, 3, v0" % (t + 1)); o.append("v_lshlrev_b32 v%d, 3, v%d" % (t + 1, t + 1))
    o.append("v_or_b32 v%d, v%d, v%d" % (t, t, t + 1))
    o.append("v_lshrrev_b32 v%d, 2, v0" % (t + 1))
    o.append("v_lshl_add_u32 v%d, v%d, 8, v%d" % (t, t + 1, t))
    o.append("v_add_u32 v%d, 0x%x, v%d" % (V_VA, LDS_V, t))
    for dt in range(1, 8): o.append("v_xor_b32 v%d, %d, v%d" % (V_VA + dt, 32 * dt, V_VA))
    o.append("v_and_b32 v%d, 15, v0" % t); o.append("v_cmp_eq_u32 vcc, 0, v%d" % t)
    o.append("v_mov_b32 v%d, 0x3f803f80" % (t + 1))
    o.append("v_cndmask_b32 v%d, 0, v%d, vcc" % (t, t + 1))
    for i in range(4): o.append("v_accvgpr_write_b32 a%d, v%d" % (A_ONE + i, t))
    for ks in range(4): o.append("v_add_u32 v%d, s%d, v%d" % (V_QA0 + ks, S_T1, V_KA + ks))
    o.append("s_add_u32 s%d, s%d, 0x18000" % (S_T0, S_T2))
    for ks in range(4): o.append("v_add_u32 v%d, s%d, v%d" % (V_QA1 + ks, S_T0, V_KA + ks))
    o.append("v_mov_b32 v0, 0"); o.append("v_mov_b32 v1, 0")
    o.append("s_waitcnt vmcnt(8)")
    o += q_dma(1)
    o.append("s_waitcnt vmcnt(8)")
    o += q_dma(2)
    o.append("s_barrier")
    o += kreads(0, 0) + kreads(1, 1) + vreads(0, 0) + vreads(1, 1)
    o += stamp(1)
    o.append("s_cmp_eq_u32 s%d, 3" % S_W)
    o.append("s_cbranch_scc1 L_pro5")
    return o

def prep(t):
    o = []
    for i in range(16):
        a, b = V_TMP + 2 * (i % 2), V_TMP + 2 * (i % 2) + 1
        o.append("v_lshlrev_b32 v%d, 16, v%d" % (a, V_RAW + i))
        o.append("v_and_b32 v%d, 0xffff0000, v%d" % (b, V_RAW + i))
        o.append("v_mul_f32 v%d, s%d, v%d" % (a, S_SC, a))
        o.append("v_mul_f32 v%d, s%d, v%d" % (b, S_SC, b))
        o.append("v_cvt_pk_bf16_f32 v%d, v%d, v%d" % (a, a, b))
        o.append("v_accvgpr_write_b32 a%d, v%d" % (A_Q + 16 * t + i, a))
    return o
def rowmax(t):
    S = V_S; m, m2 = V_TMP + 4, V_TMP + 5; N = V_NEGM + 4 * t
    o = ["v_max3_f32 v%d, v%d, v%d, v%d" % (m, S, S + 1, S + 2),
         "v_max3_f32 v%d, v%d, v%d, v%d" % (m2, S + 3, S + 4, S + 5),
         "v_max3_f32 v%d, v%d, v%d, v%d" % (m, m, S + 6, S + 7),
         "v_max_f32 v%d, v%d, v%d" % (m, m, m2),
         "v_mov_b32 v%d, v%d" % (m2, m),
         "v_permlane32_swap_b32 v%d, v%d" % (m, m2),
         "v_max_f32 v%d, v%d, v%d" % (m, m, m2),
         "v_mov_b32 v%d, v%d" % (m2, m),
         "v_permlane16_swap_b32 v%d, v%d" % (m, m2),
         "v_max_f32 v%d, v%d, v%d" % (m, m, m2),
         "v_min_f32 v%d, -v%d, v%d" % (N, m, N)]
    o += ["v_mov_b32 v%d, v%d" % (N + i, N) for i in range(1, 4)]
    return o

def prologue(NQ):
    o = []
    pend = [("q", t) for t in range(3, NQ)] + [("kv", 2), ("kv", 3), None]
    for t in range(NQ):
        o.append("s_waitcnt vmcnt(8)")
        base, off = (V_QA0, 0x8000 + t * 4096) if t < 2 else (V_QA1, (t - 2) * 4096)
        for ks in range(4): o.append("ds_read_b128 %s, v%d offset:%d" % (vr(V_RAW + 4 * ks), base + ks, off))
        nx = pend.pop(0)
        if nx: o += q_dma(nx[1]) if nx[0] == "q" else kv_dma()
        if t > 0:
            o += weave(pv(0, t - 1, 0, first=True), sm_seq(1)[:6] + prep(t))
            o += weave(qk(0, t, 0, first=True), sm_seq(1)[6:])
            o += weave(pv(1, t - 1, 1), rowmax(t), start=2)
        else:
            o += prep(t) + qk(0, t, 0, first=True) + rowmax(t)
        sub = ["v_add_f32 v%d, v%d, v%d" % (V_S + i, V_S + i, V_NEGM + 4 * t) for i in range(8)]
        o += sub[:2]
        o += weave(qk(1, t, 1), sub[2:] + sm_seq(0))
    o += stamp(2)
    o.append("s_mov_b32 s%d, 0x4000" % S_XM)
    x = ["v_xor_b32 v%d, s%d, v%d" % (V_KA + i, S_XM, V_KA + i) for i in range(12)]
    o += x
    o.append("s_mov_b32 s%d, 0xc000" % S_XM)
    o.append("s_mov_b32 s%d, 14" % S_CNT)
    o.append("s_waitcnt vmcnt(4)")
    o.append("s_barrier")
    o += kreads(0, 0)
    vr_ = vreads(0, 0)
    pvl = pv(0, NQ - 1, 0, first=True)
    sm = [s for s in sm_seq(1) if s != "@gap"]
    for g in range(9):
        o.append(pvl[g])
        if g >= 1: o += vr_[2 * (g - 1): 2 * g]
        if g < 8: o.append(sm.pop(0))
    o += weave(qk(0, 0, 0), merge(sm, kv_dma() + kv_dma()))
    o += stamp(3)
    return o

def slot(mf, par, reads, misc, vsum=None):
    ex, cv = sm_items(par)
    n = len(mf)
    fill = [[] for _ in range(n)]
    S = V_S + 8 * par
    if vsum is None:
        epos = [1, 2, 4, 5, 8, 9, 12, 13] if n == 17 else [1, 2, 4, 5, 7, 8, 11, 12]
        cpos = [3, 6, 10, 14] if n == 17 else [3, 6, 9, 13]
        free = [g for g in range(n) if g not in epos and g not in cpos]
        rpos = sorted(cpos + [free[2], free[2]]) if len(reads) > 4 else cpos
        for e, g in zip(ex, epos): fill[g].append(e)
        for r, g in zip(reads, rpos): fill[g].append(r)
        for c, g in zip(cv, cpos): fill[g].append(c)
        if len(reads) > 4: free.remove(free[2])
    else:
        assert not reads
        ad = ["v_add_f32 v%d, v%d, v%d" % (vsum, vsum, S + i) for i in range(8)]
        o0 = 1
        seq = [[ex[0]], [ex[1]], [ex[2]], [cv[0], ad[0]], [ex[3]], [ad[1], ad[2]], [ex[4]], [cv[1], ad[3]], [ex[5]], [ex[6]], [cv[2], ad[4]], [ex[7]], [ad[5], ad[6]], [cv[3], ad[7]]]
        for i, s in enumerate(seq): fill[o0 + i] += s
        free = [0] + list(range(o0 + len(seq), n))
    assert len(misc) <= len(free), (len(misc), free)
    for grp, g in zip(misc, free):
        if grp: fill[g] = list(grp) + fill[g]
    out = []
    for i in range(n):
        out.append(mf[i]); out += fill[i]
    return out

def loop_body(NQ):
    o = []
    par = lambda s, t: (s * NQ + t) % 2
    nvs = NVS if NQ == 6 else 0
    ysl = NQ - 4
    for half, s in enumerate((2, 3)):
        buf = s % 2
        rd = kreads(1 - buf, 1 - half) + vreads(1 - buf, 1 - half)
        d = kv_dma()
        x = ["v_xor_b32 v%d, s%d, v%d" % (V_KA + i, S_XM, V_KA + i) for i in range(12)]
        for t in range(NQ):
            pvb = pv(buf, t - 1, par(s, t - 1), msum=(t - 1 >= nvs)) if t > 0 else pv(1 - buf, NQ - 1, par(s - 1, NQ - 1))
            qkb = qk(buf, t + 1, par(s, t + 1)) if t < NQ - 1 else qk(1 - buf, 0, par(s + 1, 0))
            reads = []
            if t >= ysl: reads = rd[:6]; rd = rd[6:]
            misc = []
            wv = ["s_waitcnt lgkmcnt(0)"]
            if NQ == 6:
                if t == 0:
                    misc = [x[0:2], x[2:4], x[4:5] + wv] if half else [None, None, wv]
                    if nvs == 0: misc = [None, None] + misc
                if t == 1:
                    misc = [x[5:7], x[7:9]] if half else []
                if t == 2:
                    misc = [["s_waitcnt vmcnt(8)", "s_barrier"], d[0:1] + (x[9:10] if half else []), x[10:12] if half else None]
                if t == 3: misc = [d[1:2], d[2:3], d[3:4] + (["s_xor_b32 s%d, s%d, 0x8000" % (S_XM, S_XM)] if half else [])]
                if t == 4: misc = [d[4:5], d[5:6], d[6:7]]
                if t == 5: misc = [None, ["s_waitcnt lgkmcnt(2)"]] + ([["s_sub_u32 s%d, s%d, 1" % (S_CNT, S_CNT)], ["s_cmp_lg_u32 s%d, 0" % S_CNT]] if half else [])
            else:
                if t == 0: misc = [x[0:2], x[2:4], x[4:6], x[6:8], x[8:9] + wv] if half else [None, None, None, None, wv]
                if t == 1: misc = [["s_waitcnt vmcnt(8)", "s_barrier"], d[0:1] + (x[9:10] if half else []), x[10:12] if half else None]
                if t == 2: misc = [d[1:2], d[2:3], d[3:4] + (["s_xor_b32 s%d, s%d, 0x8000" % (S_XM, S_XM)] if half else [])]
                if t == 3: misc = [d[4:5], d[5:6], d[6:7]]
                if t == 4: misc = [None, ["s_waitcnt lgkmcnt(2)"]] + ([["s_sub_u32 s%d, s%d, 1" % (S_CNT, S_CNT)], ["s_cmp_lg_u32 s%d, 0" % S_CNT]] if half else [])
            o += slot(pvb + qkb, par(s, t), reads, misc, vsum=(V_LS + t if t < nvs else None))
        assert not rd
    return o

WA, RA, SA, ACC = V_OFFA, V_OFFB, V_LS, V_LS + 1
E_L = V_VA; E_R = V_VA + 4
def epi_setup():
    L0, G = V_KA, V_KA + 1
    o = ["v_mbcnt_lo_u32_b32 v%d, -1, 0" % L0, "v_mbcnt_hi_u32_b32 v%d, -1, v%d" % (L0, L0)]
    o.append("s_lshl_b32 s%d, s%d, 13" % (S_T0, S_W)); o.append("s_add_u32 s%d, s%d, 0x%x" % (S_T0, S_T0, LDS_X))
    o.append("v_lshrrev_b32 v%d, 4, v%d" % (G, L0))
    o.append("v_and_b32 v%d, 15, v%d" % (SA, L0))
    o.append("v_mul_u32_u24 v%d, 40, v%d" % (WA, SA))
    o.append("v_lshl_add_u32 v%d, v%d, 3, v%d" % (WA, G, WA))
    o.append("v_add_u32 v%d, s%d, v%d" % (WA, S_T0, WA))
    o.append("v_lshlrev_b32 v%d, 8, v%d" % (SA, SA))
    o.append("v_lshl_add_u32 v%d, v%d, 4, v%d" % (SA, G, SA))
    o.append("v_bfe_u32 v%d, v%d, 2, 2" % (RA, L0))
    o.append("v_lshl_add_u32 v%d, v%d, 3, v%d" % (RA, G, RA))
    o.append("v_mul_u32_u24 v%d, 40, v%d" % (RA, RA))
    o.append("v_and_b32 v%d, 3, v%d" % (G, L0))
    o.append("v_lshl_add_u32 v%d, v%d, 3, v%d" % (RA, G, RA))
    o.append("v_add_u32 v%d, s%d, v%d" % (RA, S_T0, RA))
    o.append("v_mov_b32 v%d, 0" % ACC)
    o.append("s_mul_i32 s%d, s%d, 24576" % (S_QOFF, S_W))
    return o
def epi(t, pk=False):
    o = []
    for r in range(4): o.append("v_accvgpr_read_b32 v%d, a%d" % (E_L + r, A_L + 4 * t + r))
    for r in range(4): o.append("v_add_f32 v%d, v%d, v%d" % (ACC, ACC, E_L + r))
    for r in range(4): o.append("v_rcp_f32_dpp v%d, v%d row_newbcast:0 row_mask:0xf bank_mask:0xf" % (E_R + r, E_L + r))
    for dt in range(8):
        b = V_O + 32 * t + 4 * dt
        if pk:
            o.append("v_pk_mul_f32 %s, %s, %s" % (vr(b, 2), vr(b, 2), vr(E_R, 2)))
            o.append("v_pk_mul_f32 %s, %s, %s" % (vr(b + 2, 2), vr(b + 2, 2), vr(E_R + 2, 2)))
        else:
            for r in range(4): o.append("v_mul_f32 v%d, v%d, v%d" % (b + r, b + r, E_R + r))
        o.append("v_cvt_pk_bf16_f32 v%d, v%d, v%d" % (b, b, b + 1))
        o.append("v_cvt_pk_bf16_f32 v%d, v%d, v%d" % (b + 1, b + 2, b + 3))
        o.append("ds_write_b64 v%d, %s offset:%d" % (WA, vr(b, 2), dt * 640))
    for s in range(4):
        for hh in range(2):
            o.append("ds_read_b64_tr_b16 %s, v%d offset:%d" % (vr(V_O + 32 * t + 4 * s + 2 * hh, 2), RA, (32 * s + 4 * hh) * 40))
    st = []
    for s in range(4):
        if "nost" in flags: continue
        st.append("buffer_store_dwordx4 %s, v%d, %s, s%d offen offset:%d%s" % (vr(V_O + 32 * t + 4 * s), SA, sr(S_OD), S_QOFF, 64 * s, STNT))
    st.append("s_add_u32 s%d, s%d, 4096" % (S_QOFF, S_QOFF))
    return o, st
def fold(t):
    x = V_LS + t; T = V_KA
    o = ["v_and_b32 v%d, 0xffff0000, v%d" % (T, x),
         "v_sub_f32 v%d, v%d, v%d" % (x, x, T),
         "v_and_b32 v%d, 0xffff0000, v%d" % (T + 1, x),
         "v_sub_f32 v%d, v%d, v%d" % (x, x, T + 1),
         "v_cvt_pk_bf16_f32 v%d, v%d, v%d" % (T, T, T + 1),
         "v_mov_b32 v%d, 0" % (T + 2),
         "v_mov_b32 v%d, 0" % (T + 3),
         "v_cvt_pk_bf16_f32 v%d, v%d, v%d" % (T + 1, x, T + 2)]
    l = ar(A_L + 4 * t)
    return o, "%s %s, %s, %s, %s" % (MF, l, vr(T), ar(A_ONE), l)

def tail(NQ):
    o = []
    nvs = NVS if NQ == 6 else 0
    U = [(0, 0), (0, 1), (1, 0), (1, 1)] + [(b, t) for t in range(2, NQ) for b in (0, 1)]
    n = len(U)
    kr = kreads(1, 1); vrd = vreads(1, 1)
    o += stamp(4)
    queue = []
    stq = []
    stores = {}
    nh = 2 * (n - 3) - 1
    left = [len(epi(0)[0]) * (NQ - 1), nh]
    def take():
        nonlocal stq
        r = stq; stq = []
        m = -(-left[0] // max(left[1], 1))
        left[1] -= 1
        for _ in range(min(m, len(queue))):
            x, t = queue.pop(0); r.append(x); left[0] -= 1
            if t is not None: stq = stq + stores[t]
        return r
    for k in range(n):
        par = k % 2
        pvb = pv(U[k - 1][0], U[k - 1][1], 1 - par) if k > 0 else pv(1, NQ - 1, 1)
        qkb = qk(U[k + 1][0], U[k + 1][1], 1 - par) if k + 1 < n else []
        sm = [s for s in sm_seq(par) if s != "@gap"]
        extraA, extraB = [], []
        endA, endB = None, None
        if k == 0:
            o.append(pvb.pop(0)); o += ["s_waitcnt vmcnt(8)", "s_barrier"]
            extraA = kr; extraB = vrd[:6]
        elif k == 1:
            extraA = vrd[6:]
            if nvs > 0:
                f, m = fold(0); extraB = f; endB = len(qkb); qkb = qkb + [m]
        elif k == 2:
            if nvs > 1:
                f, m = fold(1); extraA = f; endA = len(pvb); pvb = pvb + [m]
            extraB = epi_setup()
        fresh = False
        if k >= 3:
            if k > 3: extraA = take()
            if U[k - 1][0] == 1:
                t = U[k - 1][1]
                c, st = epi(t); stores[t] = st
                fresh = not queue
                queue += [(x, None) for x in c[:-1]] + [(c[-1], t)]
            if qkb: extraB = take()
        half = 6
        o += weave(pvb, merge(sm[:half], extraA), start=(0 if k == 0 or k >= 4 else 1), end=endA)
        if qkb:
            if fresh: o += weave(qkb, sm[half:half + 3] + merge(sm[half + 3:], extraB), end=endB)
            else: o += weave(qkb, merge(sm[half:], extraB), end=endB)
        else: o += sm[half:]
    left[1] = 1
    o += weave(pv(U[-1][0], U[-1][1], (n - 1) % 2), take())
    assert not queue
    o += stamp(5)
    c, st = epi(NQ - 1, pk=True)
    o += stq + c + st
    o += stamp(6)
    o.append("s_mov_b32 s%d, 0x%x" % (S_T1, THRESH))
    o.append("v_cmp_ngt_f32 vcc, s%d, v%d" % (S_T1, ACC))
    o.append("s_cmp_lg_u64 vcc, 0")
    o.append("s_cselect_b32 s%d, 1, 0" % S_T1)
    o.append("v_mov_b32 v5, s%d" % S_T1)
    o.append("v_mov_b32 v6, s%d" % S_T0)
    o.append("ds_write_b32 v6, v5 offset:6144")
    o.append("v_and_b32 v6, 3, v4")
    o.append("v_lshlrev_b32 v6, 13, v6")
    o.append("v_add_u32 v6, 0x%x, v6" % LDS_X)
    o.append("s_waitcnt lgkmcnt(0)")
    o.append("s_barrier")
    o.append("ds_read_b32 v5, v6 offset:6144")
    o.append("s_waitcnt lgkmcnt(0)")
    o.append("v_cmp_ne_u32 vcc, 0, v5")
    o.append("s_cmp_lg_u32 s%d, 0" % S_REDO)
    o.append("s_cbranch_scc1 L_fin")
    o.append("s_cbranch_vccz L_fin")
    return o

def redo(NQ):
    o = ["s_waitcnt vmcnt(0)", "s_barrier", "s_mov_b32 s%d, 1" % S_REDO]
    M = V_O + 64; AD = V_KA + 2
    o.append("v_and_b32 v%d, 15, v4" % AD); o.append("v_lshlrev_b32 v%d, 8, v%d" % (AD, AD))
    o.append("v_lshrrev_b32 v5, 4, v4"); o.append("v_lshl_add_u32 v%d, v5, 4, v%d" % (AD, AD))
    for t in range(NQ): o.append("v_mov_b32 v%d, 0xff800000" % (M + t))
    o.append("s_mov_b32 s%d, 0" % S_T0)
    body = []
    for ks in range(4):
        body.append("buffer_load_dwordx4 %s, v%d, %s, s%d offen offset:%d" % (ar(A_K + 4 * ks), AD, sr(S_KD), S_T0, 64 * ks))
    body.append("s_waitcnt vmcnt(0)")
    for t in range(NQ):
        d = vr(V_O + 4 * t)
        for ks in range(4):
            body.append("%s %s, %s, %s, %s" % (MF, d, ar(A_K + 4 * ks), ar(A_Q + 16 * t + 4 * ks), d if ks else "0"))
    body.append("s_nop 7")
    for t in range(NQ):
        b = V_O + 4 * t
        body.append("v_max3_f32 v%d, v%d, v%d, v%d" % (M + t, M + t, b, b + 1))
        body.append("v_max3_f32 v%d, v%d, v%d, v%d" % (M + t, M + t, b + 2, b + 3))
    body.append("s_add_u32 s%d, s%d, 4096" % (S_T0, S_T0))
    body.append("s_cmp_lt_u32 s%d, 0x40000" % S_T0)
    body.append("s_cbranch_scc1 L_max%d" % NQ)
    post = []
    for t in range(NQ):
        m, m2 = M + t, 5
        post += ["v_mov_b32 v%d, v%d" % (m2, m), "v_permlane32_swap_b32 v%d, v%d" % (m, m2), "v_max_f32 v%d, v%d, v%d" % (m, m, m2),
                 "v_mov_b32 v%d, v%d" % (m2, m), "v_permlane16_swap_b32 v%d, v%d" % (m, m2), "v_max_f32 v%d, v%d, v%d" % (m, m, m2),
                 "v_sub_f32 v%d, 0, v%d" % (V_NEGM + 4 * t, m)]
    post += offs()
    post.append("s_branch L_restart")
    return o, body, post

def fin():
    o = ["L_fin:"]
    if STAMP:
        o.append("s_waitcnt vmcnt(0)")
        o += stamp(7)
        w = int(opts.get("sw", 0))
        o.append("s_cmp_lg_u32 s%d, %d" % (S_W, w)); o.append("s_cbranch_scc1 L_end")
        o.append("s_lshl_b32 s3, s2, 9")
        o.append("s_add_u32 s%d, s%d, s3" % (S_WS, S_WS)); o.append("s_addc_u32 s%d, s%d, 0" % (S_WS + 1, S_WS + 1))
        n = nstamp[0]
        for i in range(4 * n): o.append("v_mov_b32 v%d, s%d" % (64 + i, S_ST + i))
        o.append("v_mov_b32 v1, 0"); o.append("s_mov_b64 exec, 1")
        for i in range(n): o.append("global_store_dwordx4 v1, %s, %s offset:%d" % (vr(64 + 4 * i), sr(S_WS, 2), 16 * i))
    o.append("L_end:"); o.append("s_endpgm")
    return o

su = setup(); cm = common()
code = None; errs = []
for NQ in (6, 5):
    lb = loop_body(NQ) + ["s_cbranch_scc1 L_loop%d" % NQ]
    r1, rb, r2 = redo(NQ)
    segs = [("su", su, True), ("cm", cm, True), ("pro", prologue(NQ), True), ("lb", lb, False), ("lb", lb, False),
            ("tail", tail(NQ), True), ("r1", r1, True), ("rb", rb, False), ("rb", rb, False), ("r2", r2, True), ("cm", cm, True)]
    out, e = process(segs)
    errs += ["NQ%d: %s" % (NQ, x) for x in e]
    if code is None: code = out["su"] + out["cm"]
    else: code.append("L_pro5:")
    code += out["pro"] + [".p2align 6", "L_loop%d:" % NQ] + out["lb"] + out["tail"] + out["r1"] + ["L_max%d:" % NQ] + out["rb"] + out["r2"]
code += fin()
for e in errs: print("ERR", e)
if errs: sys.exit(1)
hdr = open("standalone__mha_softmax__near_ridge.s.ref").read().split("; Override launch")[0]
L = hdr.rstrip("\n").split("\n")
L.append("; @launch grid=(256,1,1) block=(256,1,1) lds=163840")
if STAMP: L.append("; nstamps %d" % nstamp[0]); L.append("; variant: " + variant)
L += ['.amdgcn_target "amdgcn-amd-amdhsa--gfx950"', ".text", ".globl " + NAME, ".p2align 8", ".type %s,@function" % NAME, NAME + ":"]
for c in code: L.append(c if c.endswith(":") or c.startswith(".") else "    " + c)
L += ['.section .rodata,"a"', ".p2align 6", ".amdhsa_kernel " + NAME,
      "  .amdhsa_next_free_vgpr 512", "  .amdhsa_next_free_sgpr 96", "  .amdhsa_accum_offset 256",
      "  .amdhsa_group_segment_fixed_size 0", "  .amdhsa_kernarg_size 48", "  .amdhsa_user_sgpr_count 2",
      "  .amdhsa_user_sgpr_kernarg_segment_ptr 1", "  .amdhsa_system_sgpr_workgroup_id_x 1", ".end_amdhsa_kernel"]
open(sys.argv[1], "w").write("\n".join(L) + "\n")
```

```python
import sys, struct, math
sys.path.insert(0, "work")
from chk2 import process

NAME = "standalone__mha_softmax__near_ridge_kernel"
variant = sys.argv[2] if len(sys.argv) > 2 else ""
opts = dict(kv.split("=") for kv in variant.split(",") if "=" in kv)
flags = set(kv for kv in variant.split(",") if kv and "=" not in kv)
STAMP = "stamp" in flags
def f2u(x): return struct.unpack("<I", struct.pack("<f", x))[0]
SCALE = f2u(128 ** -0.5 * math.log2(math.e))
THRESH = f2u(2.0 ** int(opts.get("thr", 40)))
NVS = int(opts.get("nvs", 2))

V_LS = 0
V_OFFA, V_OFFB = 2, 3
V_KA = 4
V_VA = 8
V_NEGM = 16
V_S = 40
V_P = 56
V_O = 64
V_RAW = V_O + 160; V_QA0 = V_O + 176; V_QA1 = V_O + 180; V_TMP = V_O + 184
A_Q = 0; A_K = 96; A_V = 160; A_L = 224; A_ONE = 248
S_QD, S_KD, S_VD, S_OD = 4, 8, 12, 16
S_W, S_KV, S_CNT, S_XM, S_SC, S_REDO = 20, 21, 22, 23, 24, 25
S_T0, S_T1, S_T2, S_QOFF = 26, 27, 28, 29
S_WS = 30; S_ST = 36
LDS_V = 0x10000; LDS_X = 0x20000
NT = "".join(" " + x for x in opts.get("ld", "nt").split("+") if x)
STNT = "".join(" " + x for x in opts.get("st", "sc0+sc1+nt").split("+") if x)
def vr(b, n=4): return "v[%d:%d]" % (b, b + n - 1)
def ar(b, n=4): return "a[%d:%d]" % (b, b + n - 1)
def sr(b, n=4): return "s[%d:%d]" % (b, b + n - 1)
MF = "v_mfma_f32_16x16x32_bf16"
nstamp = [0]
def stamp(idx):
    if not STAMP: return []
    nstamp[0] = max(nstamp[0], idx + 1)
    return ["s_memtime %s" % sr(S_ST + 4 * idx, 2), "s_memrealtime %s" % sr(S_ST + 4 * idx + 2, 2), "s_waitcnt lgkmcnt(0)"]

def qk(buf, t, par, first=False):
    r = []
    for T in range(2):
        d = vr(V_S + 8 * par + 4 * T)
        for ks in range(4):
            c = d if ks else ("0" if first else vr(V_NEGM + 4 * t))
            r.append("%s %s, %s, %s, %s" % (MF, d, ar(A_K + 32 * buf + 16 * T + 4 * ks), ar(A_Q + 16 * t + 4 * ks), c))
    return r
def pv(buf, t, par, first=False, msum=True):
    r = []
    P = vr(V_P + 4 * par)
    for dt in range(8):
        o = vr(V_O + 32 * t + 4 * dt)
        r.append("%s %s, %s, %s, %s" % (MF, o, P, ar(A_V + 32 * buf + 4 * dt), "0" if first else o))
    if msum:
        l = ar(A_L + 4 * t)
        r.append("%s %s, %s, %s, %s" % (MF, l, P, ar(A_ONE), "0" if first else l))
    return r
def kreads(buf, sub):
    return ["ds_read_b128 %s, v%d offset:%d" % (ar(A_K + 32 * buf + 16 * T + 4 * ks), V_KA + ks, sub * 8192 + T * 4096) for T in range(2) for ks in range(4)]
def vreads(buf, sub):
    return ["ds_read_b64_tr_b16 %s, v%d offset:%d" % (ar(A_V + 32 * buf + 4 * dt + 2 * T, 2), V_VA + dt, sub * 8192 + T * 4096) for dt in range(8) for T in range(2)]
def kv_dma():
    return ["s_and_b32 m0, s%d, 0xffff" % S_KV,
            "buffer_load_dwordx4 v%d, %s, s%d offen%s lds" % (V_OFFA, sr(S_KD), S_KV, NT),
            "buffer_load_dwordx4 v%d, %s, s%d offen offset:1024%s lds" % (V_OFFB, sr(S_KD), S_KV, NT),
            "s_bitset1_b32 m0, 16",
            "buffer_load_dwordx4 v%d, %s, s%d offen%s lds" % (V_OFFA, sr(S_VD), S_KV, NT),
            "buffer_load_dwordx4 v%d, %s, s%d offen offset:1024%s lds" % (V_OFFB, sr(S_VD), S_KV, NT),
            "s_add_u32 s%d, s%d, 8192" % (S_KV, S_KV)]
def q_dma(t):
    r = []
    if t < 2: r.append("s_add_u32 m0, s%d, 0x%x" % (S_T1, 0x8000 + t * 4096))
    else: r.append("s_add_u32 m0, s%d, 0x%x" % (S_T2, 0x18000 + (t - 2) * 4096))
    for p in range(4):
        r.append("buffer_load_dwordx4 v%d, %s, s%d offen offset:%d%s lds" % (V_OFFA + (p & 1), sr(S_QD), S_QOFF, 1024 * p, NT))
    r.append("s_add_u32 s%d, s%d, 4096" % (S_QOFF, S_QOFF))
    return r
def sm_items(par):
    S = V_S + 8 * par; P = V_P + 4 * par
    ex = ["v_exp_f32 v%d, v%d" % (S + i, S + i) for i in range(8)]
    cv = ["v_cvt_pk_bf16_f32 v%d, v%d, v%d" % (P + i, S + 2 * i, S + 2 * i + 1) for i in range(4)]
    return ex, cv
def sm_seq(par):
    ex, cv = sm_items(par)
    return [ex[0], ex[1], ex[2], cv[0], ex[3], ex[4], cv[1], ex[5], ex[6], cv[2], ex[7], "@gap", cv[3]]
def cost(s):
    if s.startswith("v_exp") or s.startswith("v_rcp") or s.startswith("buffer_"): return 8
    return 4
def merge(a, b):
    ta = sum(map(cost, a)) or 1; tb = sum(map(cost, b)) or 1
    out = []; i = j = 0; ca = cb = 0
    while i < len(a) or j < len(b):
        if j >= len(b) or (i < len(a) and ca * tb <= cb * ta): out.append(a[i]); ca += cost(a[i]); i += 1
        else: out.append(b[j]); cb += cost(b[j]); j += 1
    return out
def weave(mf, fill, start=0, end=None):
    n = len(mf); end = n if end is None else end
    fill = [f for f in fill if f != "@gap"]
    tot = sum(map(cost, fill)); ng = max(end - start, 1)
    out = []; i = 0; used = 0
    for g in range(n):
        out.append(mf[g])
        if g < start or g >= end: continue
        per = max(8.0, tot / ng)
        lim = per * (g - start + 1)
        gap = 0
        while i < len(fill) and used + cost(fill[i]) <= lim + 0.01 and (gap + cost(fill[i]) <= max(8, math.ceil(per / 4) * 4 + 4)):
            out.append(fill[i]); used += cost(fill[i]); gap += cost(fill[i]); i += 1
        if g == end - 1:
            out += fill[i:]; i = len(fill)
    out += fill[i:]
    return out

def setup():
    o = ["s_cmp_ge_u32 s2, 256", "s_cbranch_scc1 L_end"]
    if STAMP:
        o.append("s_memtime %s" % sr(S_ST, 2)); o.append("s_memrealtime %s" % sr(S_ST + 2, 2)); nstamp[0] = 1
        o.append("s_load_dwordx2 %s, s[0:1], 40" % sr(S_WS, 2))
    o.append("s_load_dwordx4 s[4:7], s[0:1], 0")
    o.append("s_load_dwordx4 s[12:15], s[0:1], 16")
    o.append("v_lshrrev_b32 v1, 6, v0")
    o.append("s_mov_b32 s%d, 0" % S_REDO)
    o.append("v_readfirstlane_b32 s%d, v1" % S_W)
    for t in range(6): o.append("v_mov_b32 v%d, 0x7f800000" % (V_NEGM + 4 * t))
    o.append("s_lshl_b32 s32, s2, 18")
    o.append("s_mul_i32 s33, s2, 94208")
    o += offs()
    o.append("s_mov_b32 s10, 0x40000"); o.append("s_mov_b32 s11, 0x20000")
    o.append("s_mov_b32 s18, 94208"); o.append("s_mov_b32 s19, 0x20000")
    o.append("s_waitcnt lgkmcnt(0)")
    o.append("s_add_u32 s8, s6, s32"); o.append("s_addc_u32 s9, s7, 0")
    o.append("s_add_u32 s16, s14, s33"); o.append("s_addc_u32 s17, s15, 0")
    o.append("s_add_u32 s12, s12, s32"); o.append("s_addc_u32 s13, s13, 0")
    o.append("s_add_u32 s4, s4, s33"); o.append("s_addc_u32 s5, s5, 0")
    o.append("s_mov_b32 s14, 0x40000"); o.append("s_mov_b32 s15, 0x20000")
    o.append("s_mov_b32 s6, 94208"); o.append("s_mov_b32 s7, 0x20000")
    return o
def offs():
    o = []
    o.append("v_mbcnt_lo_u32_b32 v0, -1, 0"); o.append("v_mbcnt_hi_u32_b32 v0, -1, v0")
    o.append("v_lshrrev_b32 v1, 4, v0")
    o.append("v_lshlrev_b32 v%d, 2, v1" % V_OFFA)
    o.append("v_xor_b32 v%d, v%d, v0" % (V_OFFA, V_OFFA))
    o.append("v_and_b32 v%d, 15, v%d" % (V_OFFA, V_OFFA))
    o.append("v_lshlrev_b32 v%d, 4, v%d" % (V_OFFA, V_OFFA))
    o.append("v_lshl_add_u32 v%d, v1, 8, v%d" % (V_OFFA, V_OFFA))
    o.append("v_xor_b32 v%d, 32, v%d" % (V_OFFB, V_OFFA))
    o.append("s_lshl_b32 s%d, s%d, 11" % (S_KV, S_W))
    o.append("s_mul_i32 s%d, s%d, 24576" % (S_QOFF, S_W))
    o.append("s_lshl_b32 s%d, s%d, 13" % (S_T1, S_W))
    o.append("s_lshl_b32 s%d, s%d, 14" % (S_T2, S_W))
    return o
def common():
    o = ["L_restart:"]
    if "touch" in flags:
        o.append("v_and_b32 v%d, 7, v0" % V_P); o.append("v_lshlrev_b32 v%d, 12, v%d" % (V_P, V_P))
        o.append("buffer_load_dword v%d, v%d, %s, s%d offen nt" % (V_P + 1, V_P, sr(S_OD), S_QOFF))
    o += kv_dma() + kv_dma() + q_dma(0)
    o.append("s_mov_b32 s%d, 0x%x" % (S_SC, SCALE))
    t = V_S
    o.append("v_and_b32 v%d, 3, v0" % t); o.append("v_lshlrev_b32 v%d, 2, v%d" % (t, t))
    o.append("v_lshrrev_b32 v%d, 1, v0" % (t + 1)); o.append("v_and_b32 v%d, 2, v%d" % (t + 1, t + 1))
    o.append("v_or_b32 v%d, v%d, v%d" % (t, t, t + 1))
    o.append("v_xor_b32 v%d, v%d, v1" % (t, t))
    o.append("v_lshlrev_b32 v%d, 4, v%d" % (t, t))
    o.append("v_and_b32 v%d, 15, v0" % (t + 1))
    o.append("v_lshl_add_u32 v%d, v%d, 8, v%d" % (V_KA, t + 1, t))
    for ks in range(1, 4): o.append("v_xor_b32 v%d, %d, v%d" % (V_KA + ks, 64 * ks, V_KA))
    o.append("v_and_b32 v%d, 12, v0" % t)
    o.append("v_and_b32 v%d, 1, v1" % (t + 1)); o.append("v_lshlrev_b32 v%d, 1, v%d" % (t + 1, t + 1))
    o.append("v_or_b32 v%d, v%d, v%d" % (t, t, t + 1))
    o.append("v_lshlrev_b32 v%d, 4, v%d" % (t, t))
    o.append("v_and_b32 v%d, 3, v0" % (t + 1)); o.append("v_lshlrev_b32 v%d, 3, v%d" % (t + 1, t + 1))
    o.append("v_or_b32 v%d, v%d, v%d" % (t, t, t + 1))
    o.append("v_lshrrev_b32 v%d, 2, v0" % (t + 1))
    o.append("v_lshl_add_u32 v%d, v%d, 8, v%d" % (t, t + 1, t))
    o.append("v_add_u32 v%d, 0x%x, v%d" % (V_VA, LDS_V, t))
    for dt in range(1, 8): o.append("v_xor_b32 v%d, %d, v%d" % (V_VA + dt, 32 * dt, V_VA))
    o.append("v_and_b32 v%d, 15, v0" % t); o.append("v_cmp_eq_u32 vcc, 0, v%d" % t)
    o.append("v_mov_b32 v%d, 0x3f803f80" % (t + 1))
    o.append("v_cndmask_b32 v%d, 0, v%d, vcc" % (t, t + 1))
    for i in range(4): o.append("v_accvgpr_write_b32 a%d, v%d" % (A_ONE + i, t))
    for ks in range(4): o.append("v_add_u32 v%d, s%d, v%d" % (V_QA0 + ks, S_T1, V_KA + ks))
    o.append("s_add_u32 s%d, s%d, 0x18000" % (S_T0, S_T2))
    for ks in range(4): o.append("v_add_u32 v%d, s%d, v%d" % (V_QA1 + ks, S_T0, V_KA + ks))
    o.append("v_mov_b32 v0, 0"); o.append("v_mov_b32 v1, 0")
    o.append("s_waitcnt vmcnt(8)")
    o += q_dma(1)
    o.append("s_waitcnt vmcnt(8)")
    o += q_dma(2)
    o.append("s_barrier")
    o += kreads(0, 0) + kreads(1, 1) + vreads(0, 0) + vreads(1, 1)
    o += stamp(1)
    o.append("s_cmp_eq_u32 s%d, 3" % S_W)
    o.append("s_cbranch_scc1 L_pro5")
    return o

def prep(t):
    o = []
    for i in range(16):
        a, b = V_TMP + 2 * (i % 2), V_TMP + 2 * (i % 2) + 1
        o.append("v_lshlrev_b32 v%d, 16, v%d" % (a, V_RAW + i))
        o.append("v_and_b32 v%d, 0xffff0000, v%d" % (b, V_RAW + i))
        o.append("v_mul_f32 v%d, s%d, v%d" % (a, S_SC, a))
        o.append("v_mul_f32 v%d, s%d, v%d" % (b, S_SC, b))
        o.append("v_cvt_pk_bf16_f32 v%d, v%d, v%d" % (a, a, b))
        o.append("v_accvgpr_write_b32 a%d, v%d" % (A_Q + 16 * t + i, a))
    return o
def rowmax(t):
    S = V_S; m, m2 = V_TMP + 4, V_TMP + 5; N = V_NEGM + 4 * t
    o = ["v_max3_f32 v%d, v%d, v%d, v%d" % (m, S, S + 1, S + 2),
         "v_max3_f32 v%d, v%d, v%d, v%d" % (m2, S + 3, S + 4, S + 5),
         "v_max3_f32 v%d, v%d, v%d, v%d" % (m, m, S + 6, S + 7),
         "v_max_f32 v%d, v%d, v%d" % (m, m, m2),
         "v_mov_b32 v%d, v%d" % (m2, m),
         "v_permlane32_swap_b32 v%d, v%d" % (m, m2),
         "v_max_f32 v%d, v%d, v%d" % (m, m, m2),
         "v_mov_b32 v%d, v%d" % (m2, m),
         "v_permlane16_swap_b32 v%d, v%d" % (m, m2),
         "v_max_f32 v%d, v%d, v%d" % (m, m, m2),
         "v_min_f32 v%d, -v%d, v%d" % (N, m, N)]
    o += ["v_mov_b32 v%d, v%d" % (N + i, N) for i in range(1, 4)]
    return o

def prologue(NQ):
    o = []
    pend = [("q", t) for t in range(3, NQ)] + [("kv", 2), ("kv", 3), None]
    for t in range(NQ):
        o.append("s_waitcnt vmcnt(8)")
        base, off = (V_QA0, 0x8000 + t * 4096) if t < 2 else (V_QA1, (t - 2) * 4096)
        for ks in range(4): o.append("ds_read_b128 %s, v%d offset:%d" % (vr(V_RAW + 4 * ks), base + ks, off))
        nx = pend.pop(0)
        if nx: o += q_dma(nx[1]) if nx[0] == "q" else kv_dma()
        if t > 0:
            o += weave(pv(0, t - 1, 0, first=True), sm_seq(1)[:6] + prep(t))
            o += weave(qk(0, t, 0, first=True), sm_seq(1)[6:])
            o += weave(pv(1, t - 1, 1), rowmax(t), start=2)
        else:
            o += prep(t) + qk(0, t, 0, first=True) + rowmax(t)
        sub = ["v_add_f32 v%d, v%d, v%d" % (V_S + i, V_S + i, V_NEGM + 4 * t) for i in range(8)]
        o += sub[:2]
        o += weave(qk(1, t, 1), sub[2:] + sm_seq(0))
    o += stamp(2)
    o.append("s_mov_b32 s%d, 0x4000" % S_XM)
    x = ["v_xor_b32 v%d, s%d, v%d" % (V_KA + i, S_XM, V_KA + i) for i in range(12)]
    o += x
    o.append("s_mov_b32 s%d, 0xc000" % S_XM)
    o.append("s_mov_b32 s%d, 14" % S_CNT)
    o.append("s_waitcnt vmcnt(4)")
    o.append("s_barrier")
    o += kreads(0, 0)
    vr_ = vreads(0, 0)
    pvl = pv(0, NQ - 1, 0, first=True)
    sm = [s for s in sm_seq(1) if s != "@gap"]
    for g in range(9):
        o.append(pvl[g])
        if g >= 1: o += vr_[2 * (g - 1): 2 * g]
        if g < 8: o.append(sm.pop(0))
    o += weave(qk(0, 0, 0), merge(sm, kv_dma() + kv_dma()))
    o += stamp(3)
    return o

def slot(mf, par, reads, misc, vsum=None):
    ex, cv = sm_items(par)
    n = len(mf)
    fill = [[] for _ in range(n)]
    S = V_S + 8 * par
    if vsum is None:
        epos = [1, 2, 4, 5, 8, 9, 12, 13] if n == 17 else [1, 2, 4, 5, 7, 8, 11, 12]
        cpos = [3, 6, 10, 14] if n == 17 else [3, 6, 9, 13]
        free = [g for g in range(n) if g not in epos and g not in cpos]
        rpos = sorted(cpos + [free[2], free[2]]) if len(reads) > 4 else cpos
        for e, g in zip(ex, epos): fill[g].append(e)
        for r, g in zip(reads, rpos): fill[g].append(r)
        for c, g in zip(cv, cpos): fill[g].append(c)
        if len(reads) > 4: free.remove(free[2])
    else:
        assert not reads
        ad = ["v_add_f32 v%d, v%d, v%d" % (vsum, vsum, S + i) for i in range(8)]
        o0 = 1
        seq = [[ex[0]], [ex[1]], [ex[2]], [cv[0], ad[0]], [ex[3]], [ad[1], ad[2]], [ex[4]], [cv[1], ad[3]], [ex[5]], [ex[6]], [cv[2], ad[4]], [ex[7]], [ad[5], ad[6]], [cv[3], ad[7]]]
        for i, s in enumerate(seq): fill[o0 + i] += s
        free = [0] + list(range(o0 + len(seq), n))
    assert len(misc) <= len(free), (len(misc), free)
    for grp, g in zip(misc, free):
        if grp: fill[g] = list(grp) + fill[g]
    out = []
    for i in range(n):
        out.append(mf[i]); out += fill[i]
    return out

def loop_body(NQ):
    o = []
    par = lambda s, t: (s * NQ + t) % 2
    nvs = NVS if NQ == 6 else 0
    ysl = NQ - 4
    for half, s in enumerate((2, 3)):
        buf = s % 2
        rd = kreads(1 - buf, 1 - half) + vreads(1 - buf, 1 - half)
        d = kv_dma()
        x = ["v_xor_b32 v%d, s%d, v%d" % (V_KA + i, S_XM, V_KA + i) for i in range(12)]
        for t in range(NQ):
            pvb = pv(buf, t - 1, par(s, t - 1), msum=(t - 1 >= nvs)) if t > 0 else pv(1 - buf, NQ - 1, par(s - 1, NQ - 1))
            qkb = qk(buf, t + 1, par(s, t + 1)) if t < NQ - 1 else qk(1 - buf, 0, par(s + 1, 0))
            reads = []
            if t >= ysl: reads = rd[:6]; rd = rd[6:]
            misc = []
            wv = ["s_waitcnt lgkmcnt(0)"]
            if NQ == 6:
                if t == 0:
                    misc = [x[0:2], x[2:4], x[4:5] + wv] if half else [None, None, wv]
                    if nvs == 0: misc = [None, None] + misc
                if t == 1:
                    misc = [x[5:7], x[7:9]] if half else []
                if t == 2:
                    misc = [["s_waitcnt vmcnt(8)", "s_barrier"], d[0:1] + (x[9:10] if half else []), x[10:12] if half else None]
                if t == 3: misc = [d[1:2], d[2:3], d[3:4] + (["s_xor_b32 s%d, s%d, 0x8000" % (S_XM, S_XM)] if half else [])]
                if t == 4: misc = [d[4:5], d[5:6], d[6:7]]
                if t == 5: misc = [None, ["s_waitcnt lgkmcnt(2)"]] + ([["s_sub_u32 s%d, s%d, 1" % (S_CNT, S_CNT)], ["s_cmp_lg_u32 s%d, 0" % S_CNT]] if half else [])
            else:
                if t == 0: misc = [x[0:2], x[2:4], x[4:6], x[6:8], x[8:9] + wv] if half else [None, None, None, None, wv]
                if t == 1: misc = [["s_waitcnt vmcnt(8)", "s_barrier"], d[0:1] + (x[9:10] if half else []), x[10:12] if half else None]
                if t == 2: misc = [d[1:2], d[2:3], d[3:4] + (["s_xor_b32 s%d, s%d, 0x8000" % (S_XM, S_XM)] if half else [])]
                if t == 3: misc = [d[4:5], d[5:6], d[6:7]]
                if t == 4: misc = [None, ["s_waitcnt lgkmcnt(2)"]] + ([["s_sub_u32 s%d, s%d, 1" % (S_CNT, S_CNT)], ["s_cmp_lg_u32 s%d, 0" % S_CNT]] if half else [])
            o += slot(pvb + qkb, par(s, t), reads, misc, vsum=(V_LS + t if t < nvs else None))
        assert not rd
    return o

WA, RA, SA, ACC = V_OFFA, V_OFFB, V_LS, V_LS + 1
E_L = V_VA; E_R = V_VA + 4
def epi_setup():
    L0, G = V_KA, V_KA + 1
    o = ["v_mbcnt_lo_u32_b32 v%d, -1, 0" % L0, "v_mbcnt_hi_u32_b32 v%d, -1, v%d" % (L0, L0)]
    o.append("s_lshl_b32 s%d, s%d, 13" % (S_T0, S_W)); o.append("s_add_u32 s%d, s%d, 0x%x" % (S_T0, S_T0, LDS_X))
    o.append("v_lshrrev_b32 v%d, 4, v%d" % (G, L0))
    o.append("v_and_b32 v%d, 15, v%d" % (SA, L0))
    o.append("v_mul_u32_u24 v%d, 40, v%d" % (WA, SA))
    o.append("v_lshl_add_u32 v%d, v%d, 3, v%d" % (WA, G, WA))
    o.append("v_add_u32 v%d, s%d, v%d" % (WA, S_T0, WA))
    o.append("v_lshlrev_b32 v%d, 8, v%d" % (SA, SA))
    o.append("v_lshl_add_u32 v%d, v%d, 4, v%d" % (SA, G, SA))
    o.append("v_bfe_u32 v%d, v%d, 2, 2" % (RA, L0))
    o.append("v_lshl_add_u32 v%d, v%d, 3, v%d" % (RA, G, RA))
    o.append("v_mul_u32_u24 v%d, 40, v%d" % (RA, RA))
    o.append("v_and_b32 v%d, 3, v%d" % (G, L0))
    o.append("v_lshl_add_u32 v%d, v%d, 3, v%d" % (RA, G, RA))
    o.append("v_add_u32 v%d, s%d, v%d" % (RA, S_T0, RA))
    o.append("v_mov_b32 v%d, 0" % ACC)
    o.append("s_mul_i32 s%d, s%d, 24576" % (S_QOFF, S_W))
    return o
def epi(t, pk=False):
    o = []
    for r in range(4): o.append("v_accvgpr_read_b32 v%d, a%d" % (E_L + r, A_L + 4 * t + r))
    for r in range(4): o.append("v_add_f32 v%d, v%d, v%d" % (ACC, ACC, E_L + r))
    for r in range(4): o.append("v_rcp_f32_dpp v%d, v%d row_newbcast:0 row_mask:0xf bank_mask:0xf" % (E_R + r, E_L + r))
    for dt in range(8):
        b = V_O + 32 * t + 4 * dt
        if pk:
            o.append("v_pk_mul_f32 %s, %s, %s" % (vr(b, 2), vr(b, 2), vr(E_R, 2)))
            o.append("v_pk_mul_f32 %s, %s, %s" % (vr(b + 2, 2), vr(b + 2, 2), vr(E_R + 2, 2)))
        else:
            for r in range(4): o.append("v_mul_f32 v%d, v%d, v%d" % (b + r, b + r, E_R + r))
        o.append("v_cvt_pk_bf16_f32 v%d, v%d, v%d" % (b, b, b + 1))
        o.append("v_cvt_pk_bf16_f32 v%d, v%d, v%d" % (b + 1, b + 2, b + 3))
        o.append("ds_write_b64 v%d, %s offset:%d" % (WA, vr(b, 2), dt * 640))
    for s in range(4):
        for hh in range(2):
            o.append("ds_read_b64_tr_b16 %s, v%d offset:%d" % (vr(V_O + 32 * t + 4 * s + 2 * hh, 2), RA, (32 * s + 4 * hh) * 40))
    st = []
    for s in range(4):
        if "nost" in flags: continue
        st.append("buffer_store_dwordx4 %s, v%d, %s, s%d offen offset:%d%s" % (vr(V_O + 32 * t + 4 * s), SA, sr(S_OD), S_QOFF, 64 * s, STNT))
    st.append("s_add_u32 s%d, s%d, 4096" % (S_QOFF, S_QOFF))
    return o, st
def fold(t):
    x = V_LS + t; T = V_KA
    o = ["v_and_b32 v%d, 0xffff0000, v%d" % (T, x),
         "v_sub_f32 v%d, v%d, v%d" % (x, x, T),
         "v_and_b32 v%d, 0xffff0000, v%d" % (T + 1, x),
         "v_sub_f32 v%d, v%d, v%d" % (x, x, T + 1),
         "v_cvt_pk_bf16_f32 v%d, v%d, v%d" % (T, T, T + 1),
         "v_mov_b32 v%d, 0" % (T + 2),
         "v_mov_b32 v%d, 0" % (T + 3),
         "v_cvt_pk_bf16_f32 v%d, v%d, v%d" % (T + 1, x, T + 2)]
    l = ar(A_L + 4 * t)
    return o, "%s %s, %s, %s, %s" % (MF, l, vr(T), ar(A_ONE), l)

def tail(NQ):
    o = []
    nvs = NVS if NQ == 6 else 0
    U = [(0, 0), (0, 1), (1, 0), (1, 1)] + [(b, t) for t in range(2, NQ) for b in (0, 1)]
    n = len(U)
    kr = kreads(1, 1); vrd = vreads(1, 1)
    o += stamp(4)
    queue = []
    stq = []
    stores = {}
    nh = 2 * (n - 3) - 1
    left = [len(epi(0)[0]) * (NQ - 1), nh]
    def take():
        nonlocal stq
        r = stq; stq = []
        m = -(-left[0] // max(left[1], 1))
        left[1] -= 1
        for _ in range(min(m, len(queue))):
            x, t = queue.pop(0); r.append(x); left[0] -= 1
            if t is not None: stq = stq + stores[t]
        return r
    for k in range(n):
        par = k % 2
        pvb = pv(U[k - 1][0], U[k - 1][1], 1 - par) if k > 0 else pv(1, NQ - 1, 1)
        qkb = qk(U[k + 1][0], U[k + 1][1], 1 - par) if k + 1 < n else []
        sm = [s for s in sm_seq(par) if s != "@gap"]
        extraA, extraB = [], []
        endA, endB = None, None
        if k == 0:
            o.append(pvb.pop(0)); o += ["s_waitcnt vmcnt(8)", "s_barrier"]
            extraA = kr; extraB = vrd[:6]
        elif k == 1:
            extraA = vrd[6:]
            if nvs > 0:
                f, m = fold(0); extraB = f; endB = len(qkb); qkb = qkb + [m]
        elif k == 2:
            if nvs > 1:
                f, m = fold(1); extraA = f; endA = len(pvb); pvb = pvb + [m]
            extraB = epi_setup()
        fresh = False
        if k >= 3:
            if k > 3: extraA = take()
            if U[k - 1][0] == 1:
                t = U[k - 1][1]
                c, st = epi(t); stores[t] = st
                fresh = not queue
                queue += [(x, None) for x in c[:-1]] + [(c[-1], t)]
            if qkb: extraB = take()
        half = 6
        o += weave(pvb, merge(sm[:half], extraA), start=(0 if k == 0 or k >= 4 else 1), end=endA)
        if qkb:
            if fresh: o += weave(qkb, sm[half:half + 3] + merge(sm[half + 3:], extraB), end=endB)
            else: o += weave(qkb, merge(sm[half:], extraB), end=endB)
        else: o += sm[half:]
    left[1] = 1
    o += weave(pv(U[-1][0], U[-1][1], (n - 1) % 2), take())
    assert not queue
    o += stamp(5)
    c, st = epi(NQ - 1, pk=True)
    o += stq + c + st
    o += stamp(6)
    o.append("s_mov_b32 s%d, 0x%x" % (S_T1, THRESH))
    o.append("v_cmp_ngt_f32 vcc, s%d, v%d" % (S_T1, ACC))
    o.append("s_cmp_lg_u64 vcc, 0")
    o.append("s_cselect_b32 s%d, 1, 0" % S_T1)
    o.append("v_mov_b32 v5, s%d" % S_T1)
    o.append("v_mov_b32 v6, s%d" % S_T0)
    o.append("ds_write_b32 v6, v5 offset:6144")
    o.append("v_and_b32 v6, 3, v4")
    o.append("v_lshlrev_b32 v6, 13, v6")
    o.append("v_add_u32 v6, 0x%x, v6" % LDS_X)
    o.append("s_waitcnt lgkmcnt(0)")
    o.append("s_barrier")
    o.append("ds_read_b32 v5, v6 offset:6144")
    o.append("s_waitcnt lgkmcnt(0)")
    o.append("v_cmp_ne_u32 vcc, 0, v5")
    o.append("s_cmp_lg_u32 s%d, 0" % S_REDO)
    o.append("s_cbranch_scc1 L_fin")
    o.append("s_cbranch_vccz L_fin")
    return o

def redo(NQ):
    o = ["s_waitcnt vmcnt(0)", "s_barrier", "s_mov_b32 s%d, 1" % S_REDO]
    M = V_O + 64; AD = V_KA + 2
    o.append("v_and_b32 v%d, 15, v4" % AD); o.append("v_lshlrev_b32 v%d, 8, v%d" % (AD, AD))
    o.append("v_lshrrev_b32 v5, 4, v4"); o.append("v_lshl_add_u32 v%d, v5, 4, v%d" % (AD, AD))
    for t in range(NQ): o.append("v_mov_b32 v%d, 0xff800000" % (M + t))
    o.append("s_mov_b32 s%d, 0" % S_T0)
    body = []
    for ks in range(4):
        body.append("buffer_load_dwordx4 %s, v%d, %s, s%d offen offset:%d" % (ar(A_K + 4 * ks), AD, sr(S_KD), S_T0, 64 * ks))
    body.append("s_waitcnt vmcnt(0)")
    for t in range(NQ):
        d = vr(V_O + 4 * t)
        for ks in range(4):
            body.append("%s %s, %s, %s, %s" % (MF, d, ar(A_K + 4 * ks), ar(A_Q + 16 * t + 4 * ks), d if ks else "0"))
    body.append("s_nop 7")
    for t in range(NQ):
        b = V_O + 4 * t
        body.append("v_max3_f32 v%d, v%d, v%d, v%d" % (M + t, M + t, b, b + 1))
        body.append("v_max3_f32 v%d, v%d, v%d, v%d" % (M + t, M + t, b + 2, b + 3))
    body.append("s_add_u32 s%d, s%d, 4096" % (S_T0, S_T0))
    body.append("s_cmp_lt_u32 s%d, 0x40000" % S_T0)
    body.append("s_cbranch_scc1 L_max%d" % NQ)
    post = []
    for t in range(NQ):
        m, m2 = M + t, 5
        post += ["v_mov_b32 v%d, v%d" % (m2, m), "v_permlane32_swap_b32 v%d, v%d" % (m, m2), "v_max_f32 v%d, v%d, v%d" % (m, m, m2),
                 "v_mov_b32 v%d, v%d" % (m2, m), "v_permlane16_swap_b32 v%d, v%d" % (m, m2), "v_max_f32 v%d, v%d, v%d" % (m, m, m2),
                 "v_sub_f32 v%d, 0, v%d" % (V_NEGM + 4 * t, m)]
    post += offs()
    post.append("s_branch L_restart")
    return o, body, post

def fin():
    o = ["L_fin:"]
    if STAMP:
        o.append("s_waitcnt vmcnt(0)")
        o += stamp(7)
        if "pad" in opts:
            o.append("s_mov_b32 s80, %d" % (int(opts["pad"]) * 100))
            if "pb" in opts:
                cyc = 0 if "pcyc" in flags else 2
                o.append("s_sub_u32 s81, s%d, s%d" % (S_ST + 4 * int(opts["pb"]) + cyc, S_ST + 4 * int(opts.get("pa", 0)) + cyc))
                if "pcyc" in flags: o.append("s_lshr_b32 s81, s81, 4")
                o.append("s_add_u32 s80, s80, s81")
            o.append("L_spin:")
            o.append("s_memrealtime s[82:83]"); o.append("s_waitcnt lgkmcnt(0)")
            o.append("s_sub_u32 s81, s82, s%d" % (S_ST + 2))
            o.append("s_cmp_lt_u32 s81, s80"); o.append("s_cbranch_scc1 L_spin")
            o.append("s_branch L_end")
        w = int(opts.get("sw", 0))
        o.append("s_cmp_lg_u32 s%d, %d" % (S_W, w)); o.append("s_cbranch_scc1 L_end")
        o.append("s_lshl_b32 s3, s2, 9")
        o.append("s_add_u32 s%d, s%d, s3" % (S_WS, S_WS)); o.append("s_addc_u32 s%d, s%d, 0" % (S_WS + 1, S_WS + 1))
        n = nstamp[0]
        for i in range(4 * n): o.append("v_mov_b32 v%d, s%d" % (64 + i, S_ST + i))
        o.append("v_mov_b32 v1, 0"); o.append("s_mov_b64 exec, 1")
        for i in range(n): o.append("global_store_dwordx4 v1, %s, %s offset:%d" % (vr(64 + 4 * i), sr(S_WS, 2), 16 * i))
    o.append("L_end:"); o.append("s_endpgm")
    return o

su = setup(); cm = common()
code = None; errs = []
for NQ in (6, 5):
    lb = loop_body(NQ) + ["s_cbranch_scc1 L_loop%d" % NQ]
    r1, rb, r2 = redo(NQ)
    segs = [("su", su, True), ("cm", cm, True), ("pro", prologue(NQ), True), ("lb", lb, False), ("lb", lb, False),
            ("tail", tail(NQ), True), ("r1", r1, True), ("rb", rb, False), ("rb", rb, False), ("r2", r2, True), ("cm", cm, True)]
    out, e = process(segs)
    errs += ["NQ%d: %s" % (NQ, x) for x in e]
    if code is None: code = out["su"] + out["cm"]
    else: code.append("L_pro5:")
    code += out["pro"] + [".p2align 6", "L_loop%d:" % NQ] + out["lb"] + out["tail"] + out["r1"] + ["L_max%d:" % NQ] + out["rb"] + out["r2"]
code += fin()
for e in errs: print("ERR", e)
if errs: sys.exit(1)
hdr = open("standalone__mha_softmax__near_ridge.s.ref").read().split("; Override launch")[0]
L = hdr.rstrip("\n").split("\n")
L.append("; @launch grid=(256,1,1) block=(256,1,1) lds=163840")
if STAMP: L.append("; nstamps %d" % nstamp[0]); L.append("; variant: " + variant)
L += ['.amdgcn_target "amdgcn-amd-amdhsa--gfx950"', ".text", ".globl " + NAME, ".p2align 8", ".type %s,@function" % NAME, NAME + ":"]
for c in code: L.append(c if c.endswith(":") or c.startswith(".") else "    " + c)
L += ['.section .rodata,"a"', ".p2align 6", ".amdhsa_kernel " + NAME,
      "  .amdhsa_next_free_vgpr 512", "  .amdhsa_next_free_sgpr 96", "  .amdhsa_accum_offset 256",
      "  .amdhsa_group_segment_fixed_size 0", "  .amdhsa_kernarg_size 48", "  .amdhsa_user_sgpr_count 2",
      "  .amdhsa_user_sgpr_kernarg_segment_ptr 1", "  .amdhsa_system_sgpr_workgroup_id_x 1", ".end_amdhsa_kernel"]
open(sys.argv[1], "w").write("\n".join(L) + "\n")
```

```python
import sys, struct, math
sys.path.insert(0, "work")
from chk2 import process

NAME = "standalone__mha_softmax__near_ridge_kernel"
variant = sys.argv[2] if len(sys.argv) > 2 else ""
opts = dict(kv.split("=") for kv in variant.split(",") if "=" in kv)
flags = set(kv for kv in variant.split(",") if kv and "=" not in kv)
STAMP = "stamp" in flags
def f2u(x): return struct.unpack("<I", struct.pack("<f", x))[0]
SCALE = f2u(128 ** -0.5 * math.log2(math.e))
THRESH = f2u(2.0 ** int(opts.get("thr", 40)))
NVS = int(opts.get("nvs", 2))

V_LS = 0
V_OFFA, V_OFFB = 2, 3
V_KA = 4
V_VA = 8
V_NEGM = 16
V_S = 40
V_P = 56
V_O = 64
V_RAW = V_O + 160; V_QA0 = V_O + 176; V_QA1 = V_O + 180; V_TMP = V_O + 184
A_Q = 0; A_K = 96; A_V = 160; A_L = 224; A_ONE = 248
S_QD, S_KD, S_VD, S_OD = 4, 8, 12, 16
S_W, S_KV, S_CNT, S_XM, S_SC, S_REDO = 20, 21, 22, 23, 24, 25
S_T0, S_T1, S_T2, S_QOFF = 26, 27, 28, 29
S_WS = 30; S_ST = 36
LDS_V = 0x10000; LDS_X = 0x20000
NT = "".join(" " + x for x in opts.get("ld", "nt").split("+") if x)
STNT = "".join(" " + x for x in opts.get("st", "sc0+sc1+nt").split("+") if x)
STL = "".join(" " + x for x in opts.get("stl", opts.get("st", "sc0+sc1+nt")).split("+") if x)
def vr(b, n=4): return "v[%d:%d]" % (b, b + n - 1)
def ar(b, n=4): return "a[%d:%d]" % (b, b + n - 1)
def sr(b, n=4): return "s[%d:%d]" % (b, b + n - 1)
MF = "v_mfma_f32_16x16x32_bf16"
nstamp = [0]
def stamp(idx):
    if not STAMP: return []
    nstamp[0] = max(nstamp[0], idx + 1)
    return ["s_memtime %s" % sr(S_ST + 4 * idx, 2), "s_memrealtime %s" % sr(S_ST + 4 * idx + 2, 2), "s_waitcnt lgkmcnt(0)"]

def qk(buf, t, par, first=False):
    r = []
    for T in range(2):
        d = vr(V_S + 8 * par + 4 * T)
        for ks in range(4):
            c = d if ks else ("0" if first else vr(V_NEGM + 4 * t))
            r.append("%s %s, %s, %s, %s" % (MF, d, ar(A_K + 32 * buf + 16 * T + 4 * ks), ar(A_Q + 16 * t + 4 * ks), c))
    if "qkil" in flags: r = [r[0], r[4], r[1], r[5], r[2], r[6], r[3], r[7]]
    return r
def pv(buf, t, par, first=False, msum=True, sumfirst=False):
    r = []
    P = vr(V_P + 4 * par)
    for dt in range(8):
        o = vr(V_O + 32 * t + 4 * dt)
        r.append("%s %s, %s, %s, %s" % (MF, o, ar(A_V + 32 * buf + 4 * dt), P, "0" if first else o))
    if msum:
        l = ar(A_L + 4 * t)
        m = "%s %s, %s, %s, %s" % (MF, l, ar(A_ONE), P, "0" if first else l)
        r = [m] + r if sumfirst else r + [m]
    return r
def kreads(buf, sub):
    return ["ds_read_b128 %s, v%d offset:%d" % (ar(A_K + 32 * buf + 16 * T + 4 * ks), V_KA + ks, sub * 8192 + T * 4096) for T in range(2) for ks in range(4)]
def vreads(buf, sub):
    return ["ds_read_b64_tr_b16 %s, v%d offset:%d" % (ar(A_V + 32 * buf + 4 * dt + 2 * T, 2), V_VA + dt, sub * 8192 + T * 4096) for dt in range(8) for T in range(2)]
def kv_dma():
    return ["s_and_b32 m0, s%d, 0xffff" % S_KV,
            "buffer_load_dwordx4 v%d, %s, s%d offen%s lds" % (V_OFFA, sr(S_KD), S_KV, NT),
            "buffer_load_dwordx4 v%d, %s, s%d offen offset:1024%s lds" % (V_OFFB, sr(S_KD), S_KV, NT),
            "s_bitset1_b32 m0, 16",
            "buffer_load_dwordx4 v%d, %s, s%d offen%s lds" % (V_OFFA, sr(S_VD), S_KV, NT),
            "buffer_load_dwordx4 v%d, %s, s%d offen offset:1024%s lds" % (V_OFFB, sr(S_VD), S_KV, NT),
            "s_add_u32 s%d, s%d, 8192" % (S_KV, S_KV)]
def q_dma(t):
    r = []
    if t < 2: r.append("s_add_u32 m0, s%d, 0x%x" % (S_T1, 0x8000 + t * 4096))
    else: r.append("s_add_u32 m0, s%d, 0x%x" % (S_T2, 0x18000 + (t - 2) * 4096))
    for p in range(4):
        r.append("buffer_load_dwordx4 v%d, %s, s%d offen offset:%d%s lds" % (V_OFFA + (p & 1), sr(S_QD), S_QOFF, 1024 * p, NT))
    r.append("s_add_u32 s%d, s%d, 4096" % (S_QOFF, S_QOFF))
    return r
def sm_items(par):
    S = V_S + 8 * par; P = V_P + 4 * par
    ex = ["v_exp_f32 v%d, v%d" % (S + i, S + i) for i in range(8)]
    cv = ["v_cvt_pk_bf16_f32 v%d, v%d, v%d" % (P + i, S + 2 * i, S + 2 * i + 1) for i in range(4)]
    return ex, cv
def sm_seq(par):
    ex, cv = sm_items(par)
    return [ex[0], ex[1], ex[2], cv[0], ex[3], ex[4], cv[1], ex[5], ex[6], cv[2], ex[7], "@gap", cv[3]]
def cost(s):
    if s.startswith("v_exp") or s.startswith("v_rcp") or s.startswith("buffer_"): return 8
    return 4
def merge(a, b):
    ta = sum(map(cost, a)) or 1; tb = sum(map(cost, b)) or 1
    out = []; i = j = 0; ca = cb = 0
    while i < len(a) or j < len(b):
        if j >= len(b) or (i < len(a) and ca * tb <= cb * ta): out.append(a[i]); ca += cost(a[i]); i += 1
        else: out.append(b[j]); cb += cost(b[j]); j += 1
    return out
def weave(mf, fill, start=0, end=None):
    n = len(mf); end = n if end is None else end
    fill = [f for f in fill if f != "@gap"]
    tot = sum(map(cost, fill)); ng = max(end - start, 1)
    out = []; i = 0; used = 0
    for g in range(n):
        out.append(mf[g])
        if g < start or g >= end: continue
        per = max(8.0, tot / ng)
        lim = per * (g - start + 1)
        gap = 0
        while i < len(fill) and used + cost(fill[i]) <= lim + 0.01 and (gap + cost(fill[i]) <= max(8, math.ceil(per / 4) * 4 + 4)):
            out.append(fill[i]); used += cost(fill[i]); gap += cost(fill[i]); i += 1
        if g == end - 1:
            out += fill[i:]; i = len(fill)
    out += fill[i:]
    return out

def setup():
    o = ["s_cmp_ge_u32 s2, 256", "s_cbranch_scc1 L_end"]
    if STAMP:
        o.append("s_memtime %s" % sr(S_ST, 2)); o.append("s_memrealtime %s" % sr(S_ST + 2, 2)); nstamp[0] = 1
        o.append("s_load_dwordx2 %s, s[0:1], 40" % sr(S_WS, 2))
    o.append("s_load_dwordx4 s[4:7], s[0:1], 0")
    o.append("s_load_dwordx4 s[12:15], s[0:1], 16")
    if "pf" in flags: o += codepf(V_S, "v0")
    o.append("v_lshrrev_b32 v1, 6, v0")
    o.append("s_mov_b32 s%d, 0" % S_REDO)
    o.append("v_readfirstlane_b32 s%d, v1" % S_W)
    for t in range(6): o.append("v_mov_b32 v%d, 0x7f800000" % (V_NEGM + 4 * t))
    if "remap" in flags:
        o.append("s_and_b32 s3, s2, 7"); o.append("s_lshl_b32 s3, s3, 5"); o.append("s_lshr_b32 s32, s2, 3"); o.append("s_or_b32 s3, s3, s32")
    else: o.append("s_mov_b32 s3, s2")
    o.append("s_lshl_b32 s32, s3, 18")
    o.append("s_mul_i32 s33, s3, 94208")
    o += offs()
    o.append("s_mov_b32 s10, 0x40000"); o.append("s_mov_b32 s11, 0x20000")
    o.append("s_mov_b32 s18, 94208"); o.append("s_mov_b32 s19, 0x20000")
    o.append("s_waitcnt lgkmcnt(0)")
    o.append("s_add_u32 s8, s6, s32"); o.append("s_addc_u32 s9, s7, 0")
    o.append("s_add_u32 s16, s14, s33"); o.append("s_addc_u32 s17, s15, 0")
    o.append("s_add_u32 s12, s12, s32"); o.append("s_addc_u32 s13, s13, 0")
    o.append("s_add_u32 s4, s4, s33"); o.append("s_addc_u32 s5, s5, 0")
    o.append("s_mov_b32 s14, 0x40000"); o.append("s_mov_b32 s15, 0x20000")
    o.append("s_mov_b32 s6, 94208"); o.append("s_mov_b32 s7, 0x20000")
    return o
def codepf(T, tid):
    o = ["s_getpc_b64 s[34:35]", "L_pc:"]
    o.append("v_lshlrev_b32 v%d, 7, %s" % (T, tid))
    for k in range(2):
        a = T + 2 + 2 * k
        if k: o.append("v_add_u32 v%d, 0x8000, v%d" % (T, T))
        o.append("v_min_u32 v%d, L_end-L_pc, v%d" % (T + 1, T))
        o.append("v_mov_b32 v%d, s35" % (a + 1))
        o.append("v_add_co_u32 v%d, vcc, s34, v%d" % (a, T + 1))
        o.append("v_addc_co_u32 v%d, vcc, 0, v%d, vcc" % (a + 1, a + 1))
        o.append("global_load_dword v%d, %s, off" % (V_P + 2 + k, vr(a, 2)))
    return o
def offs():
    o = []
    o.append("v_mbcnt_lo_u32_b32 v0, -1, 0"); o.append("v_mbcnt_hi_u32_b32 v0, -1, v0")
    o.append("v_lshrrev_b32 v1, 4, v0")
    o.append("v_lshlrev_b32 v%d, 2, v1" % V_OFFA)
    o.append("v_xor_b32 v%d, v%d, v0" % (V_OFFA, V_OFFA))
    o.append("v_and_b32 v%d, 15, v%d" % (V_OFFA, V_OFFA))
    o.append("v_lshlrev_b32 v%d, 4, v%d" % (V_OFFA, V_OFFA))
    o.append("v_lshl_add_u32 v%d, v1, 8, v%d" % (V_OFFA, V_OFFA))
    o.append("v_xor_b32 v%d, 32, v%d" % (V_OFFB, V_OFFA))
    o.append("s_lshl_b32 s%d, s%d, 11" % (S_KV, S_W))
    o.append("s_mul_i32 s%d, s%d, 24576" % (S_QOFF, S_W))
    o.append("s_lshl_b32 s%d, s%d, 13" % (S_T1, S_W))
    o.append("s_lshl_b32 s%d, s%d, 14" % (S_T2, S_W))
    return o
def common():
    o = ["L_restart:"]
    if "touch" in flags:
        o.append("v_and_b32 v%d, 7, v0" % V_P); o.append("v_lshlrev_b32 v%d, 12, v%d" % (V_P, V_P))
        o.append("buffer_load_dword v%d, v%d, %s, s%d offen nt" % (V_P + 1, V_P, sr(S_OD), S_QOFF))
    o += kv_dma() + kv_dma() + q_dma(0)
    o.append("s_mov_b32 s%d, 0x%x" % (S_SC, SCALE))
    t = V_S
    o.append("v_and_b32 v%d, 3, v0" % t); o.append("v_lshlrev_b32 v%d, 2, v%d" % (t, t))
    o.append("v_lshrrev_b32 v%d, 1, v0" % (t + 1)); o.append("v_and_b32 v%d, 2, v%d" % (t + 1, t + 1))
    o.append("v_or_b32 v%d, v%d, v%d" % (t, t, t + 1))
    o.append("v_xor_b32 v%d, v%d, v1" % (t, t))
    o.append("v_lshlrev_b32 v%d, 4, v%d" % (t, t))
    o.append("v_and_b32 v%d, 15, v0" % (t + 1))
    o.append("v_lshl_add_u32 v%d, v%d, 8, v%d" % (V_KA, t + 1, t))
    for ks in range(1, 4): o.append("v_xor_b32 v%d, %d, v%d" % (V_KA + ks, 64 * ks, V_KA))
    o.append("v_and_b32 v%d, 12, v0" % t)
    o.append("v_and_b32 v%d, 1, v1" % (t + 1)); o.append("v_lshlrev_b32 v%d, 1, v%d" % (t + 1, t + 1))
    o.append("v_or_b32 v%d, v%d, v%d" % (t, t, t + 1))
    o.append("v_lshlrev_b32 v%d, 4, v%d" % (t, t))
    o.append("v_and_b32 v%d, 3, v0" % (t + 1)); o.append("v_lshlrev_b32 v%d, 3, v%d" % (t + 1, t + 1))
    o.append("v_or_b32 v%d, v%d, v%d" % (t, t, t + 1))
    o.append("v_lshrrev_b32 v%d, 2, v0" % (t + 1))
    o.append("v_lshl_add_u32 v%d, v%d, 8, v%d" % (t, t + 1, t))
    o.append("v_add_u32 v%d, 0x%x, v%d" % (V_VA, LDS_V, t))
    for dt in range(1, 8): o.append("v_xor_b32 v%d, %d, v%d" % (V_VA + dt, 32 * dt, V_VA))
    o.append("v_and_b32 v%d, 3, v0" % t); o.append("v_cmp_eq_u32 vcc, 0, v%d" % t)
    o.append("v_mov_b32 v%d, 0x3f803f80" % (t + 1))
    o.append("v_cndmask_b32 v%d, 0, v%d, vcc" % (t, t + 1))
    for i in range(4): o.append("v_accvgpr_write_b32 a%d, v%d" % (A_ONE + i, t))
    for ks in range(4): o.append("v_add_u32 v%d, s%d, v%d" % (V_QA0 + ks, S_T1, V_KA + ks))
    o.append("s_add_u32 s%d, s%d, 0x18000" % (S_T0, S_T2))
    for ks in range(4): o.append("v_add_u32 v%d, s%d, v%d" % (V_QA1 + ks, S_T0, V_KA + ks))
    o.append("v_mov_b32 v0, 0"); o.append("v_mov_b32 v1, 0")
    o.append("s_waitcnt vmcnt(8)")
    o += q_dma(1)
    o.append("s_waitcnt vmcnt(8)")
    o += q_dma(2)
    o.append("s_barrier")
    o += kreads(0, 0) + kreads(1, 1) + vreads(0, 0) + vreads(1, 1)
    o += stamp(1)
    o.append("s_cmp_eq_u32 s%d, 3" % S_W)
    o.append("s_cbranch_scc1 L_pro5")
    return o

def prep(t):
    o = []
    for i in range(16):
        a, b = V_TMP + 2 * (i % 2), V_TMP + 2 * (i % 2) + 1
        o.append("v_lshlrev_b32 v%d, 16, v%d" % (a, V_RAW + i))
        o.append("v_and_b32 v%d, 0xffff0000, v%d" % (b, V_RAW + i))
        o.append("v_mul_f32 v%d, s%d, v%d" % (a, S_SC, a))
        o.append("v_mul_f32 v%d, s%d, v%d" % (b, S_SC, b))
        o.append("v_cvt_pk_bf16_f32 v%d, v%d, v%d" % (a, a, b))
        o.append("v_accvgpr_write_b32 a%d, v%d" % (A_Q + 16 * t + i, a))
    return o
def rowmax(t):
    S = V_S; m, m2 = V_TMP + 4, V_TMP + 5; N = V_NEGM + 4 * t
    o = ["v_max3_f32 v%d, v%d, v%d, v%d" % (m, S, S + 1, S + 2),
         "v_max3_f32 v%d, v%d, v%d, v%d" % (m2, S + 3, S + 4, S + 5),
         "v_max3_f32 v%d, v%d, v%d, v%d" % (m, m, S + 6, S + 7),
         "v_max_f32 v%d, v%d, v%d" % (m, m, m2),
         "v_mov_b32 v%d, v%d" % (m2, m),
         "v_permlane32_swap_b32 v%d, v%d" % (m, m2),
         "v_max_f32 v%d, v%d, v%d" % (m, m, m2),
         "v_mov_b32 v%d, v%d" % (m2, m),
         "v_permlane16_swap_b32 v%d, v%d" % (m, m2),
         "v_max_f32 v%d, v%d, v%d" % (m, m, m2),
         "v_min_f32 v%d, -v%d, v%d" % (N, m, N)]
    o += ["v_mov_b32 v%d, v%d" % (N + i, N) for i in range(1, 4)]
    return o

def prologue(NQ):
    o = []
    pend = [("q", t) for t in range(3, NQ)] + [("kv", 2), ("kv", 3), None]
    for t in range(NQ):
        o.append("s_waitcnt vmcnt(8)")
        base, off = (V_QA0, 0x8000 + t * 4096) if t < 2 else (V_QA1, (t - 2) * 4096)
        for ks in range(4): o.append("ds_read_b128 %s, v%d offset:%d" % (vr(V_RAW + 4 * ks), base + ks, off))
        nx = pend.pop(0)
        if nx: o += q_dma(nx[1]) if nx[0] == "q" else kv_dma()
        if t > 0:
            o += weave(pv(0, t - 1, 0, first=True), sm_seq(1)[:6] + prep(t))
            o += weave(qk(0, t, 0, first=True), sm_seq(1)[6:])
            o += weave(pv(1, t - 1, 1), rowmax(t), start=2)
        else:
            o += prep(t) + qk(0, t, 0, first=True) + rowmax(t)
        sub = ["v_add_f32 v%d, v%d, v%d" % (V_S + i, V_S + i, V_NEGM + 4 * t) for i in range(8)]
        o += sub[:2]
        o += weave(qk(1, t, 1), sub[2:] + sm_seq(0))
    o += stamp(2)
    o.append("s_mov_b32 s%d, 0x4000" % S_XM)
    x = ["v_xor_b32 v%d, s%d, v%d" % (V_KA + i, S_XM, V_KA + i) for i in range(12)]
    o += x
    o.append("s_mov_b32 s%d, 0xc000" % S_XM)
    o.append("s_mov_b32 s%d, 14" % S_CNT)
    o.append("s_waitcnt vmcnt(4)")
    o.append("s_barrier")
    o += kreads(0, 0)
    vr_ = vreads(0, 0)
    pvl = pv(0, NQ - 1, 0, first=True)
    sm = [s for s in sm_seq(1) if s != "@gap"]
    for g in range(9):
        o.append(pvl[g])
        if g >= 1: o += vr_[2 * (g - 1): 2 * g]
        if g < 8: o.append(sm.pop(0))
    o += weave(qk(0, 0, 0), merge(sm, kv_dma() + kv_dma()))
    o += stamp(3)
    return o

def slot(mf, par, reads, misc, vsum=None):
    ex, cv = sm_items(par)
    n = len(mf)
    fill = [[] for _ in range(n)]
    S = V_S + 8 * par
    if vsum is None:
        epos = [1, 2, 4, 5, 8, 9, 12, 13] if n == 17 else [1, 2, 4, 5, 7, 8, 11, 12]
        cpos = [3, 6, 10, 14] if n == 17 else [3, 6, 9, 13]
        free = [g for g in range(n) if g not in epos and g not in cpos]
        rpos = sorted(cpos + [free[2], free[2]]) if len(reads) > 4 else cpos
        for e, g in zip(ex, epos): fill[g].append(e)
        for r, g in zip(reads, rpos): fill[g].append(r)
        for c, g in zip(cv, cpos): fill[g].append(c)
        if len(reads) > 4: free.remove(free[2])
    else:
        assert not reads
        ad = ["v_add_f32 v%d, v%d, v%d" % (vsum, vsum, S + i) for i in range(8)]
        o0 = 1
        seq = [[ex[0]], [ex[1]], [ex[2]], [cv[0], ad[0]], [ex[3]], [ad[1], ad[2]], [ex[4]], [cv[1], ad[3]], [ex[5]], [ex[6]], [cv[2], ad[4]], [ex[7]], [ad[5], ad[6]], [cv[3], ad[7]]]
        for i, s in enumerate(seq): fill[o0 + i] += s
        free = [0] + list(range(o0 + len(seq), n))
    assert len(misc) <= len(free), (len(misc), free)
    for grp, g in zip(misc, free):
        if grp: fill[g] = list(grp) + fill[g]
    out = []
    for i in range(n):
        out.append(mf[i]); out += fill[i]
    return out

def loop_body(NQ):
    o = []
    par = lambda s, t: (s * NQ + t) % 2
    nvs = NVS if NQ == 6 else 0
    ysl = NQ - 4
    for half, s in enumerate((2, 3)):
        buf = s % 2
        rd = kreads(1 - buf, 1 - half) + vreads(1 - buf, 1 - half)
        d = kv_dma()
        x = ["v_xor_b32 v%d, s%d, v%d" % (V_KA + i, S_XM, V_KA + i) for i in range(12)]
        for t in range(NQ):
            pvb = pv(buf, t - 1, par(s, t - 1), msum=(t - 1 >= nvs)) if t > 0 else pv(1 - buf, NQ - 1, par(s - 1, NQ - 1))
            qkb = qk(buf, t + 1, par(s, t + 1)) if t < NQ - 1 else qk(1 - buf, 0, par(s + 1, 0))
            reads = []
            if t >= ysl: reads = rd[:6]; rd = rd[6:]
            misc = []
            wv = ["s_waitcnt lgkmcnt(0)"]
            if NQ == 6:
                if t == 0:
                    misc = [x[0:2], x[2:4], x[4:5] + wv] if half else [None, None, wv]
                    if nvs == 0: misc = [None, None] + misc
                if t == 1:
                    misc = [x[5:7], x[7:9]] if half else []
                if t == 2:
                    misc = [["s_waitcnt vmcnt(8)", "s_barrier"], d[0:1] + (x[9:10] if half else []), x[10:12] if half else None]
                if t == 3: misc = [d[1:2], d[2:3], d[3:4] + (["s_xor_b32 s%d, s%d, 0x8000" % (S_XM, S_XM)] if half else [])]
                if t == 4: misc = [d[4:5], d[5:6], d[6:7]]
                if t == 5: misc = [None, ["s_waitcnt lgkmcnt(2)"]] + ([["s_sub_u32 s%d, s%d, 1" % (S_CNT, S_CNT)], ["s_cmp_lg_u32 s%d, 0" % S_CNT]] if half else [])
            else:
                if t == 0: misc = [x[0:2], x[2:4], x[4:6], x[6:8], x[8:9] + wv] if half else [None, None, None, None, wv]
                if t == 1: misc = [["s_waitcnt vmcnt(8)", "s_barrier"], d[0:1] + (x[9:10] if half else []), x[10:12] if half else None]
                if t == 2: misc = [d[1:2], d[2:3], d[3:4] + (["s_xor_b32 s%d, s%d, 0x8000" % (S_XM, S_XM)] if half else [])]
                if t == 3: misc = [d[4:5], d[5:6], d[6:7]]
                if t == 4: misc = [None, ["s_waitcnt lgkmcnt(2)"]] + ([["s_sub_u32 s%d, s%d, 1" % (S_CNT, S_CNT)], ["s_cmp_lg_u32 s%d, 0" % S_CNT]] if half else [])
            o += slot(pvb + qkb, par(s, t), reads, misc, vsum=(V_LS + t if t < nvs else None))
        assert not rd
    return o

SA, ACC = V_OFFA, V_OFFB
E_L = V_KA + 2; E_T = V_KA + 3
def epi_setup():
    L0, G = V_KA, V_KA + 1
    o = ["v_mbcnt_lo_u32_b32 v%d, -1, 0" % L0, "v_mbcnt_hi_u32_b32 v%d, -1, v%d" % (L0, L0)]
    o.append("v_and_b32 v%d, 14, v%d" % (SA, L0))
    o.append("v_lshlrev_b32 v%d, 8, v%d" % (SA, SA))
    o.append("v_and_b32 v%d, 1, v%d" % (G, L0))
    o.append("v_lshl_add_u32 v%d, v%d, 6, v%d" % (SA, G, SA))
    o.append("v_and_b32 v%d, 16, v%d" % (G, L0))
    o.append("v_lshl_add_u32 v%d, v%d, 1, v%d" % (SA, G, SA))
    o.append("v_lshrrev_b32 v%d, 5, v%d" % (G, L0))
    o.append("v_lshl_add_u32 v%d, v%d, 4, v%d" % (SA, G, SA))
    o.append("v_mov_b32 v%d, 0" % ACC)
    o.append("s_mul_i32 s%d, s%d, 24576" % (S_QOFF, S_W))
    o.append("s_mov_b32 vcc_lo, 0x55555555"); o.append("s_mov_b32 vcc_hi, 0x55555555")
    return o
def vsum_reduce(t):
    x = V_LS + t; T = V_VA + t
    return ["v_mov_b32 v%d, v%d" % (T, x), "v_permlane32_swap_b32 v%d, v%d" % (x, T), "v_add_f32 v%d, v%d, v%d" % (x, x, T),
            "v_mov_b32 v%d, v%d" % (T, x), "v_permlane16_swap_b32 v%d, v%d" % (x, T), "v_add_f32 v%d, v%d, v%d" % (x, x, T)]
DPPX = "quad_perm:[1,0,3,2] row_mask:0xf bank_mask:0xf"
def epi(t, vs, pk=False):
    h = ["v_accvgpr_read_b32 v%d, a%d" % (E_L, A_L + 4 * t)]
    if vs: h.append("v_add_f32 v%d, v%d, v%d" % (E_L, E_L, V_LS + t))
    h.append("v_add_f32 v%d, v%d, v%d" % (ACC, ACC, E_L))
    h.append("v_rcp_f32 v%d, v%d" % (E_L, E_L))
    m = []; sw = []; x = []
    pol = STL if t == LASTT[0] else STNT
    for s in range(4):
        b = V_O + 32 * t + 8 * s
        g = []
        if pk:
            for i in range(0, 8, 2): g.append("v_pk_mul_f32 %s, %s, %s op_sel_hi:[1,0]" % (vr(b + i, 2), vr(b + i, 2), vr(E_L, 2)))
        else:
            for i in range(8): g.append("v_mul_f32 v%d, v%d, v%d" % (b + i, b + i, E_L))
        for i in range(4): g.append("v_cvt_pk_bf16_f32 v%d, v%d, v%d" % (b + i, b + 2 * i, b + 2 * i + 1))
        m.append(g)
        sw.append(["v_permlane16_swap_b32 v%d, v%d" % (b, b + 2), "v_permlane16_swap_b32 v%d, v%d" % (b + 1, b + 3)])
    for p in range(2):
        X = V_O + 32 * t + 16 * p; Y = X + 8
        A = ["v_cndmask_b32_dpp v%d, v%d, v%d, vcc %s" % (X + 4 + i, Y + i, X + i, DPPX) for i in (0, 2, 1, 3)] + ["s_not_b64 vcc, vcc"]
        B = ["v_cndmask_b32_dpp v%d, v%d, v%d, vcc %s" % (Y + i, X + i, Y + i, DPPX) for i in range(4)] + ["s_not_b64 vcc, vcc"]
        if "nost" not in flags:
            A.append("buffer_store_dwordx4 %s, v%d, %s, s%d offen offset:%d%s" % (vr(X + 4), SA, sr(S_OD), S_QOFF, 128 * p, pol))
            B.append("buffer_store_dwordx4 %s, v%d, %s, s%d offen offset:%d%s" % (vr(Y), SA, sr(S_OD), S_QOFF, 128 * p + 256, pol))
        if p == 1: B.append("s_add_u32 s%d, s%d, 4096" % (S_QOFF, S_QOFF))
        x.append((A, B))
    return h, m, sw, x
LASTT = [None]
def epi_body(m, sw, x):
    k = 2
    return (m[1][:k] + sw[0] + m[1][k:] + m[2][:k] + sw[1] + m[2][k:k + 2] + x[0][0] + m[2][k + 2:] + m[3][:k] + sw[2] + x[0][1][:3] + m[3][k:]
            + x[0][1][3:] + sw[3]), x[1][0] + x[1][1]
def epi_flat(t, vs):
    h, m, sw, x = epi(t, vs)
    body, fin = epi_body(m, sw, x)
    return h + m[0] + body, fin

def tail(NQ):
    o = []
    LASTT[0] = NQ - 1
    nvs = NVS if NQ == 6 else 0
    U = [(0, 0), (0, 1), (1, 0), (1, 1)] + [(b, t) for t in range(2, NQ) for b in (0, 1)]
    n = len(U)
    kr = kreads(1, 1); vrd = vreads(1, 1)
    o += stamp(4)
    queue = []
    nh = 2 * (n - 3) - 1
    left = [sum(len(x) for t in range(NQ - 1) for x in epi_flat(t, t < nvs)), nh]
    def take():
        m = -(-left[0] // max(left[1], 1)); left[1] -= 1
        r = queue[:m]; del queue[:m]; left[0] -= len(r)
        return r
    for k in range(n):
        par = k % 2
        pvb = pv(U[k - 1][0], U[k - 1][1], 1 - par, sumfirst=True) if k > 0 else pv(1, NQ - 1, 1)
        qkb = qk(U[k + 1][0], U[k + 1][1], 1 - par) if k + 1 < n else []
        sm = [s for s in sm_seq(par) if s != "@gap"]
        extraA, extraB = [], []
        if k == 0:
            o.append(pvb.pop(0)); o += ["s_waitcnt vmcnt(8)", "s_barrier"]
            extraA = kr; extraB = vrd[:6]
        elif k == 1:
            extraA = vrd[6:12]; extraB = vrd[12:]
        elif k == 2:
            extraA = epi_setup()
            if nvs == 1: extraB = vsum_reduce(0)
            if nvs >= 2: extraB = [x for p in zip(*[vsum_reduce(t) for t in range(nvs)]) for x in p]
        if k >= 3:
            if k > 3: extraA = take()
            if U[k - 1][0] == 1:
                t = U[k - 1][1]
                c, fin = epi_flat(t, t < nvs)
                queue += c + ["@hold"] + fin
                left[0] += 1
            if qkb: extraB = take()
        half = 6
        fa = [x for x in extraA if x != "@hold"]; fb = [x for x in extraB if x != "@hold"]
        o += weave(pvb, merge(sm[:half], fa), start=(0 if k == 0 or k >= 4 else 1))
        if qkb: o += weave(qkb, merge(sm[half:], fb))
        else: o += merge(sm[half:], fb)
    rest = [x for x in queue if x != "@hold"]
    pvl = pv(U[-1][0], U[-1][1], (n - 1) % 2, sumfirst=True)
    h, m, sw, x = epi(NQ - 1, False)
    hp, mp, swp, xp = epi(NQ - 1, False, pk=True)
    o += stamp(5)
    o += weave(pvl[:6], rest)
    o += h[:2] + pvl[6:7] + h[2:] + pvl[7:8] + m[0][:2] + pvl[8:9] + m[0][2:]
    body, fin = epi_body(mp, swp, xp)
    o += body + fin
    o += stamp(6)
    o.append("s_lshl_b32 s%d, s%d, 13" % (S_T0, S_W)); o.append("s_add_u32 s%d, s%d, 0x%x" % (S_T0, S_T0, LDS_X))
    o.append("s_mov_b32 s%d, 0x%x" % (S_T1, THRESH))
    o.append("v_cmp_ngt_f32 vcc, s%d, v%d" % (S_T1, ACC))
    o.append("s_cmp_lg_u64 vcc, 0")
    o.append("s_cselect_b32 s%d, 1, 0" % S_T1)
    o.append("v_mov_b32 v5, s%d" % S_T1)
    o.append("v_mov_b32 v6, s%d" % S_T0)
    o.append("ds_write_b32 v6, v5 offset:6144")
    o.append("v_and_b32 v6, 3, v4")
    o.append("v_lshlrev_b32 v6, 13, v6")
    o.append("v_add_u32 v6, 0x%x, v6" % LDS_X)
    o.append("s_waitcnt lgkmcnt(0)")
    o.append("s_barrier")
    o.append("ds_read_b32 v5, v6 offset:6144")
    o.append("s_waitcnt lgkmcnt(0)")
    o.append("v_cmp_ne_u32 vcc, 0, v5")
    o.append("s_cmp_lg_u32 s%d, 0" % S_REDO)
    o.append("s_cbranch_scc1 L_fin")
    o.append("s_cbranch_vccz L_fin")
    return o

def redo(NQ):
    o = ["s_waitcnt vmcnt(0)", "s_barrier", "s_mov_b32 s%d, 1" % S_REDO]
    M = V_O + 64; AD = V_KA + 2
    o.append("v_and_b32 v%d, 15, v4" % AD); o.append("v_lshlrev_b32 v%d, 8, v%d" % (AD, AD))
    o.append("v_lshrrev_b32 v5, 4, v4"); o.append("v_lshl_add_u32 v%d, v5, 4, v%d" % (AD, AD))
    for t in range(NQ): o.append("v_mov_b32 v%d, 0xff800000" % (M + t))
    o.append("s_mov_b32 s%d, 0" % S_T0)
    body = []
    for ks in range(4):
        body.append("buffer_load_dwordx4 %s, v%d, %s, s%d offen offset:%d" % (ar(A_K + 4 * ks), AD, sr(S_KD), S_T0, 64 * ks))
    body.append("s_waitcnt vmcnt(0)")
    for t in range(NQ):
        d = vr(V_O + 4 * t)
        for ks in range(4):
            body.append("%s %s, %s, %s, %s" % (MF, d, ar(A_K + 4 * ks), ar(A_Q + 16 * t + 4 * ks), d if ks else "0"))
    body.append("s_nop 7")
    for t in range(NQ):
        b = V_O + 4 * t
        body.append("v_max3_f32 v%d, v%d, v%d, v%d" % (M + t, M + t, b, b + 1))
        body.append("v_max3_f32 v%d, v%d, v%d, v%d" % (M + t, M + t, b + 2, b + 3))
    body.append("s_add_u32 s%d, s%d, 4096" % (S_T0, S_T0))
    body.append("s_cmp_lt_u32 s%d, 0x40000" % S_T0)
    body.append("s_cbranch_scc1 L_max%d" % NQ)
    post = []
    for t in range(NQ):
        m, m2 = M + t, 5
        post += ["v_mov_b32 v%d, v%d" % (m2, m), "v_permlane32_swap_b32 v%d, v%d" % (m, m2), "v_max_f32 v%d, v%d, v%d" % (m, m, m2),
                 "v_mov_b32 v%d, v%d" % (m2, m), "v_permlane16_swap_b32 v%d, v%d" % (m, m2), "v_max_f32 v%d, v%d, v%d" % (m, m, m2),
                 "v_sub_f32 v%d, 0, v%d" % (V_NEGM + 4 * t, m)]
    post += offs()
    post.append("s_branch L_restart")
    return o, body, post

def fin():
    o = ["L_fin:"]
    if STAMP:
        o.append("s_waitcnt vmcnt(0)")
        o += stamp(7)
        if "pad" in opts:
            o.append("s_mov_b32 s80, %d" % (int(opts["pad"]) * 100))
            if "pb" in opts:
                cyc = 0 if "pcyc" in flags else 2
                o.append("s_sub_u32 s81, s%d, s%d" % (S_ST + 4 * int(opts["pb"]) + cyc, S_ST + 4 * int(opts.get("pa", 0)) + cyc))
                if "pcyc" in flags: o.append("s_lshr_b32 s81, s81, 4")
                o.append("s_add_u32 s80, s80, s81")
            o.append("L_spin:")
            o.append("s_memrealtime s[82:83]"); o.append("s_waitcnt lgkmcnt(0)")
            o.append("s_sub_u32 s81, s82, s%d" % (S_ST + 2))
            o.append("s_cmp_lt_u32 s81, s80"); o.append("s_cbranch_scc1 L_spin")
            o.append("s_branch L_end")
        w = int(opts.get("sw", 0))
        o.append("s_cmp_lg_u32 s%d, %d" % (S_W, w)); o.append("s_cbranch_scc1 L_end")
        o.append("s_lshl_b32 s3, s2, 9")
        o.append("s_add_u32 s%d, s%d, s3" % (S_WS, S_WS)); o.append("s_addc_u32 s%d, s%d, 0" % (S_WS + 1, S_WS + 1))
        n = nstamp[0]
        for i in range(4 * n): o.append("v_mov_b32 v%d, s%d" % (64 + i, S_ST + i))
        o.append("v_mov_b32 v1, 0"); o.append("s_mov_b64 exec, 1")
        for i in range(n): o.append("global_store_dwordx4 v1, %s, %s offset:%d" % (vr(64 + 4 * i), sr(S_WS, 2), 16 * i))
    o.append("L_end:"); o.append("s_endpgm")
    return o

su = setup(); cm = common()
code = None; errs = []
for NQ in (6, 5):
    lb = loop_body(NQ) + ["s_cbranch_scc1 L_loop%d" % NQ]
    r1, rb, r2 = redo(NQ)
    segs = [("su", su, True), ("cm", cm, True), ("pro", prologue(NQ), True), ("lb", lb, False), ("lb", lb, False),
            ("tail", tail(NQ), True), ("r1", r1, True), ("rb", rb, False), ("rb", rb, False), ("r2", r2, True), ("cm", cm, True)]
    out, e = process(segs)
    errs += ["NQ%d: %s" % (NQ, x) for x in e]
    if code is None: code = out["su"] + out["cm"]
    else: code.append("L_pro5:")
    code += out["pro"] + [".p2align 6", "L_loop%d:" % NQ] + out["lb"] + out["tail"] + out["r1"] + ["L_max%d:" % NQ] + out["rb"] + out["r2"]
code += fin()
for e in errs: print("ERR", e)
if errs: sys.exit(1)
hdr = open("standalone__mha_softmax__near_ridge.s.ref").read().split("; Override launch")[0]
L = hdr.rstrip("\n").split("\n")
L.append("; @launch grid=(256,1,1) block=(256,1,1) lds=163840")
if STAMP: L.append("; nstamps %d" % nstamp[0]); L.append("; variant: " + variant)
L += ['.amdgcn_target "amdgcn-amd-amdhsa--gfx950"', ".text", ".globl " + NAME, ".p2align 8", ".type %s,@function" % NAME, NAME + ":"]
for c in code: L.append(c if c.endswith(":") or c.startswith(".") else "    " + c)
L += ['.section .rodata,"a"', ".p2align 6", ".amdhsa_kernel " + NAME,
      "  .amdhsa_next_free_vgpr 512", "  .amdhsa_next_free_sgpr 96", "  .amdhsa_accum_offset 256",
      "  .amdhsa_group_segment_fixed_size 0", "  .amdhsa_kernarg_size 48", "  .amdhsa_user_sgpr_count 2",
      "  .amdhsa_user_sgpr_kernarg_segment_ptr 1", "  .amdhsa_system_sgpr_workgroup_id_x 1", ".end_amdhsa_kernel"]
open(sys.argv[1], "w").write("\n".join(L) + "\n")
```

```python
import re
REG = re.compile(r"^(-|\|)?([vas])(\d+|\[(\d+):(\d+)\])\|?$")
def regs(op):
    op = op.strip()
    if op in ("vcc",): return [("s", "vcc")]
    if op == "m0": return [("s", "m0")]
    if op == "exec": return [("s", "exec")]
    m = REG.match(op)
    if not m: return []
    k = m.group(2)
    if m.group(4) is not None: return [(k, i) for i in range(int(m.group(4)), int(m.group(5)) + 1)]
    return [(k, int(m.group(3)))]
TRANS = ("v_exp_f32", "v_rcp_f32", "v_log_f32", "v_sqrt_f32")
def parse(line):
    s = line.split(";")[0].strip()
    if not s or s.endswith(":") or s.startswith("."): return None
    parts = s.split(None, 1)
    op = parts[0]
    rest = parts[1] if len(parts) > 1 else ""
    rest2 = re.sub(r"\s+(op_sel_hi|op_sel|quad_perm|neg_lo|neg_hi):\[[^\]]*\]", "", rest)
    ops = [o.strip() for o in rest2.split(",")]
    if ops:
        ops[-1] = ops[-1].split()[0] if ops[-1] else ""
    if op not in ("s_waitcnt",):
        for o in ops:
            assert o == "" or regs(o) or re.match(r"^(-?\d+(\.\d+)?|0x[0-9a-f]+|off|vcc_lo|vcc_hi|L_\w+(-L_\w+)?|x)$", o), (s, o)
    d = dict(op=op, text=s, defs=[], uses=[], kind="other", srcC=[], srcAB=[])
    R = [regs(o) for o in ops]
    base = op.replace("_e32", "").replace("_e64", "").replace("_dpp", "")
    if op.startswith("v_mfma"):
        d["kind"] = "mfma"; d["defs"] = R[0]; d["srcAB"] = R[1] + R[2]; d["srcC"] = R[3]; d["uses"] = R[1] + R[2] + R[3]
        d["passes"] = 4 if "16x16x32" in op else 8
    elif op.startswith("ds_read"):
        d["kind"] = "dsr"; d["defs"] = R[0]; d["uses"] = R[1]
    elif op.startswith("ds_write"):
        d["kind"] = "dsw"; d["uses"] = sum(R, [])
    elif op.startswith("ds_bpermute"):
        d["kind"] = "dsr"; d["defs"] = R[0]; d["uses"] = R[1] + R[2]
    elif op.startswith("buffer_load") or op.startswith("global_load"):
        if " lds" in s or "_lds_" in op:
            d["kind"] = "dma"; d["uses"] = sum(R, []) + [("s", "m0")]
        else:
            d["kind"] = "vml"; d["defs"] = R[0]; d["uses"] = sum(R[1:], [])
    elif op.startswith("buffer_store") or op.startswith("global_store"):
        d["kind"] = "vms"; d["uses"] = sum(R, [])
        d["data"] = R[0] if op.startswith("buffer") else R[1]
    elif op.startswith("v_"):
        d["kind"] = "valu"
        if base.startswith("v_cmp"):
            d["defs"] = R[0]; d["uses"] = sum(R[1:], [])
        elif base.startswith("v_add_co") or base.startswith("v_addc_co"):
            d["defs"] = R[0] + R[1]; d["uses"] = sum(R[2:], [])
        elif base.startswith("v_permlane"):
            d["defs"] = R[0] + R[1]; d["uses"] = R[0] + R[1]; d["perm"] = True
        elif base in ("v_readfirstlane_b32", "v_readlane_b32"):
            d["defs"] = R[0]; d["uses"] = sum(R[1:], []); d["rdl"] = True
        else:
            d["defs"] = R[0]; d["uses"] = sum(R[1:], [])
            if base.startswith("v_fmac") or base.startswith("v_dot2c"): d["uses"] += R[0]
        d["trans"] = base in TRANS
        d["dpp"] = "_dpp" in op
    elif op == "s_waitcnt":
        d["kind"] = "wait"
        m = re.search(r"vmcnt\((\d+)\)", s); d["vm"] = int(m.group(1)) if m else None
        m = re.search(r"lgkmcnt\((\d+)\)", s); d["lgkm"] = int(m.group(1)) if m else None
    elif op == "s_nop":
        d["kind"] = "nop"; d["n"] = int(rest) + 1
    elif op.startswith("s_load") or op.startswith("s_memtime") or op.startswith("s_memrealtime"):
        d["kind"] = "smem"; d["defs"] = R[0]; d["uses"] = sum(R[1:], [])
    elif op.startswith("s_"):
        d["kind"] = "salu"
        if op.startswith("s_cmp") or op.startswith("s_cbranch") or op in ("s_branch", "s_barrier", "s_endpgm", "s_setprio", "s_sleep"):
            d["uses"] = sum(R, [])
            if op.startswith("s_cbranch_vcc"): d["uses"] = [("s", "vcc")]
        else:
            d["defs"] = R[0]; d["uses"] = sum(R[1:], [])
            if op.startswith("s_bitset") or op.startswith("s_addk"): d["uses"] += R[0]
    return d

def check(lines, name=""):
    ins = [p for p in (parse(l) for l in lines) if p]
    errs = []
    pos = []; t = 0
    for i in ins:
        pos.append(t); t += i["n"] if i["kind"] == "nop" else 1
    def dist(a, b):
        return pos[b] - pos[a] - (ins[a]["n"] if ins[a]["kind"] == "nop" else 1)
    lg = []
    vm = []
    for b, I in enumerate(ins):
        U = set(I["uses"]); D = set(I["defs"])
        k = I["kind"]
        if k == "wait":
            if I["lgkm"] is not None:
                assert I["lgkm"] <= 15
                if any(ins[x]["kind"] == "smem" for x in lg) and I["lgkm"] > 0:
                    errs.append("%s: counted lgkmcnt with smem outstanding: %s" % (name, I["text"]))
                while len(lg) > I["lgkm"]: lg.pop(0)
            if I["vm"] is not None:
                assert I["vm"] <= 63
                while len(vm) > I["vm"]: vm.pop(0)
        else:
            for x in lg + vm:
                if set(ins[x]["defs"]) & (U | D):
                    errs.append("%s: [%d] %s touches pending load dest of [%d] %s" % (name, b, I["text"], x, ins[x]["text"]))
        if k in ("dsr", "dsw", "smem"): lg.append(b)
        if k in ("vml", "vms", "dma"): vm.append(b)
        a = b - 1
        while a >= 0 and dist(a, b) < 20:
            A = ins[a]; AD = set(A["defs"]); d = dist(a, b)
            need = 0; why = ""
            if A["kind"] == "valu":
                vd = {r for r in AD if r[0] in "va"}; sd = {r for r in AD if r[0] == "s"}
                if k == "mfma" and vd & U: need, why = 2, "valu->mfma"
                if k == "valu":
                    if A.get("trans") and not I.get("trans") and vd & U: need, why = max(need, 1), "trans->valu"
                    if (I.get("perm") or I.get("dpp")) and vd & U: need, why = 2, "valu->perm/dpp"
                    if I.get("rdl") and vd & U: need, why = max(need, 1), "valu->readlane"
                    if sd & U: need, why = max(need, 2), "valu sgpr->valu"
                if k in ("vml", "vms", "dma") and sd & U: need, why = 5, "valu sgpr->vmem"
                if A.get("trans") and k in ("dsw", "vms", "dsr") and vd & U: need, why = max(need, 1), "trans->mem"
            if A["kind"] == "mfma":
                p = A["passes"]
                big = {4: 8, 8: 12}[p]
                if k == "mfma":
                    if AD & set(I["srcAB"]): need, why = big, "mfma D->AB"
                    elif AD & set(I["srcC"]):
                        if A["defs"] != I["srcC"] or A["passes"] != I["passes"]: need, why = {4: 6, 8: 10}[p], "mfma D->C partial"
                    elif AD & D and A["defs"] != I["defs"]: need, why = {4: 6, 8: 10}[p], "mfma WAW partial"
                elif k in ("valu", "dsr", "dsw", "vml", "vms", "dma"):
                    if AD & (U | D): need, why = big, "mfma D->valu/mem"
                    if k == "valu" and set(A["srcC"]) & D: need, why = max(need, {4: 3, 8: 7}[p]), "mfma C WAR"
            if A["kind"] == "salu" and ("s", "m0") in AD and k == "dma": need, why = 1, "m0->dma"
            if A["kind"] == "vms" and len(A["data"]) > 2 and set(A["data"]) & D and k in ("valu", "dsr", "vml", "mfma"): need, why = 2, "store data WAR"
            if d < need:
                errs.append("%s: hazard %s need %d have %d: [%d] %s -> [%d] %s" % (name, why, need, d, a, A["text"], b, I["text"]))
            a -= 1
    return errs
```

```python
from chk import parse
from chk2 import need_between
STC = [36]
def icost(I):
    if "grp" in I: return 4 * len(I["grp"]) + 12
    if I["kind"] == "mfma": return 8
    if I.get("trans") or I.get("perm"): return 8
    if I["kind"] in ("dma", "vml"): return 8
    if I["kind"] == "vms": return STC[0]
    if I["kind"] == "dsw": return 20
    return 4
SCC = ("s", "scc")
def schedule(lines, pre=(), dslat=130, pin_waits=True):
    ins = []
    for l in lines:
        if "\n" in l:
            parts = [parse(x) for x in l.split("\n")]
            I = dict(parts[0]); I["defs"] = sum([p["defs"] for p in parts], []); I["uses"] = sum([p["uses"] for p in parts], [])
            I["grp"] = parts
        else: I = parse(l)
        I["line"] = l
        op = I["op"]
        if I["kind"] == "salu" and not op.startswith("s_mov") and op not in ("s_barrier",) and not op.startswith("s_bitset"):
            I["defs"] = I["defs"] + [SCC]
            if op.startswith("s_addc") or op.startswith("s_cselect") or op.startswith("s_cbranch"): I["uses"] = I["uses"] + [SCC]
        if "vcc" in l:
            if op.startswith("v_cndmask"): I["uses"] = I["uses"] + [("s", "vcc")]
            if "vcc_lo" in l or "vcc_hi" in l: I["defs"] = I["defs"] + [("s", "vcc")]; I["uses"] = I["uses"] + [("s", "vcc")]
        ins.append(I)
    n = len(ins)
    preds = [set() for _ in range(n)]
    lat = {}
    lastw = {}; readers = {}
    lastmem = None; lastmf = None
    for i, I in enumerate(ins):
        for r in I["uses"]:
            if r in lastw:
                preds[i].add(lastw[r])
                if ins[lastw[r]]["kind"] == "dsr": lat[(lastw[r], i)] = dslat
        for r in I["defs"]:
            if r in lastw: preds[i].add(lastw[r])
            for x in readers.get(r, ()): preds[i].add(x)
        for r in I["uses"]: readers.setdefault(r, []).append(i)
        for r in I["defs"]: lastw[r] = i; readers[r] = []
        mem = I["kind"] in ("dsr", "dsw", "dma", "vml", "vms", "wait", "smem") or I["op"] == "s_barrier"
        if mem:
            if lastmem is not None: preds[i].add(lastmem)
            lastmem = i
        if I["kind"] == "mfma":
            if lastmf is not None: preds[i].add(lastmf)
            lastmf = i
        if pin_waits and (I["kind"] in ("wait", "smem")) and lastmf is not None: preds[i].add(lastmf)
        preds[i].discard(i)
    import re
    tags = {}
    for i, I in enumerate(ins):
        m = re.search(r"tag=(\w+)", I["line"])
        if m: tags[m.group(1)] = i
        m = re.search(r"after=(\w+)", I["line"])
        if m: preds[i].add(tags[m.group(1)])
        I["line"] = I["line"].split(";")[0].rstrip()
    urgent = [False] * n
    for i in range(n - 1, -1, -1):
        if ins[i]["kind"] in ("dma", "vms", "wait") or ins[i]["op"] == "s_barrier": urgent[i] = True
        if urgent[i] and ins[i]["kind"] in ("dma", "dsr", "salu") and ins[i]["op"] != "s_barrier":
            for p in preds[i]:
                if ins[p]["kind"] in ("dsr", "salu"): urgent[p] = True
    succs = [[] for _ in range(n)]
    for i in range(n):
        for p in preds[i]: succs[p].append(i)
    prio = [0] * n
    for i in range(n - 1, -1, -1):
        best = 0
        for s in succs[i]:
            w = lat.get((i, s), 0)
            nd, _ = need_between(ins[i], ins[s])
            w = max(w, 4 * nd + icost(ins[i]), 16 if ins[i]["kind"] == "mfma" and ins[s]["kind"] == "mfma" else 0)
            best = max(best, w + prio[s])
        prio[i] = max(best, icost(ins[i]))
    hist = [p for p in (parse(l) for l in pre) if p][-30:]
    done_at = {}
    left = [len(preds[i]) for i in range(n)]
    ready = [i for i in range(n) if left[i] == 0]
    out = []; t = 0; lastm = -100; cntout = [0]
    def deficit(I):
        d = 0; short = 0
        for A in reversed(hist):
            nd, _ = need_between(A, I)
            short = max(short, nd - d)
            d += A["n"] if A["kind"] == "nop" else 1
            if d >= 12: break
        return short
    def stall(i):
        s = 4 * max(0, deficit(ins[i]))
        for p in preds[i]:
            if (p, i) in lat: s = max(s, done_at[p] + lat[(p, i)] - t)
        if ins[i]["kind"] == "mfma" or "grp" in ins[i]: s = max(s, lastm + 16 - t)
        return max(s, 0)
    while ready:
        st = {i: stall(i) for i in ready}
        mf = [i for i in ready if ins[i]["kind"] == "mfma"]
        fl = [i for i in ready if ins[i]["kind"] != "mfma" and st[i] == 0]
        pick = None
        rec = [h for h in hist if h["kind"] in ("valu", "mfma")][-3:]
        if sum(1 for h in rec if h["op"].startswith("v_cndmask")) >= 2 and not any(h["kind"] == "mfma" for h in rec):
            alt = [i for i in fl if not ins[i]["op"].startswith("v_cndmask") and ins[i]["kind"] == "valu"]
            if alt or mf: fl = [i for i in fl if not ins[i]["op"].startswith("v_cndmask")]
        gp = [i for i in fl if "grp" in ins[i]]
        sts = [i for i in fl if ins[i]["kind"] == "vms"]
        if gp: pick = gp[0]
        elif mf and st[mf[0]] == 0: pick = mf[0]
        elif sts and (t == lastm + 8 or not mf): pick = sts[0]
        elif fl:
            room = st[mf[0]] if mf else 1000
            nst = [i for i in fl if ins[i]["kind"] != "vms"]
            if nst: fl = nst
            fit = [i for i in fl if icost(ins[i]) <= room]
            top = max(fl, key=lambda i: (urgent[i], prio[i], -i))
            if urgent[top] and (icost(ins[top]) <= room + 8): pick = top
            elif fit:
                pick = max(fit, key=lambda i: (urgent[i], prio[i], -i))
            elif mf and prio[mf[0]] > prio[top] + 40: pick = mf[0]
            else: pick = top
        else:
            pick = min(ready, key=lambda i: (st[i] + (6 if ins[i]["op"].startswith("v_cndmask") else 0), -prio[i]))
        t += st[pick]
        I = ins[pick]
        if I["kind"] == "mfma": lastm = t
        done_at[pick] = t
        t += icost(I)
        d = deficit(I)
        if d > 0: hist.append(parse("s_nop %d" % (d - 1)))
        hist.extend(I.get("grp", [I]))
        if len(hist) > 40: del hist[:10]
        out += I["line"].split("\n"); cntout[0] += 1
        ready.remove(pick)
        for s in succs[pick]:
            left[s] -= 1
            if left[s] == 0: ready.append(s)
    assert cntout[0] == n
    return out, t
```

```python
import sys, struct, math
sys.path.insert(0, "work")
from chk2 import process
from sched import schedule

NAME = "standalone__mha_softmax__near_ridge_kernel"
variant = sys.argv[2] if len(sys.argv) > 2 else ""
opts = dict(kv.split("=") for kv in variant.split(",") if "=" in kv)
flags = set(kv for kv in variant.split(",") if kv and "=" not in kv)
STAMP = "stamp" in flags
def f2u(x): return struct.unpack("<I", struct.pack("<f", x))[0]
SCALE = f2u(128 ** -0.5 * math.log2(math.e))
THRESH = f2u(2.0 ** int(opts.get("thr", 40)))
NVS = int(opts.get("nvs", 2))

V_LS = 0
V_OFF = 3
V_KA = 4
V_VA = 8
V_NEGM = 16
V_S = 40
V_P = 56
V_O = 64
V_SEL = V_O + 160; V_OFF2 = V_O + 170; V_QA = V_O + 172; V_D = V_O + 176
def bf16r(x):
    u = f2u(x); return (u + 0x7fff + ((u >> 16) & 1)) >> 16
def u2f(u): return struct.unpack("<f", struct.pack("<I", u))[0]
C_HI = bf16r(u2f(SCALE)); C_LO = bf16r(u2f(SCALE) - u2f(C_HI << 16))
A_Q = 0; A_K = 96; A_V = 160; A_L = 224; A_ONE = 248
S_QD, S_KD, S_VD, S_OD = 4, 8, 12, 16
S_W, S_KV, S_CNT, S_XM, S_SC, S_REDO = 20, 21, 22, 23, 24, 25
S_T0, S_T1, S_T2, S_QOFF = 26, 27, 28, 29
S_WS = 30; S_MSK = 32; S_SC2 = 34; S_ST = 36
LDS_V = 0x10000; LDS_X = 0x20000
NT = "".join(" " + x for x in opts.get("ld", "nt").split("+") if x)
STNT = "".join(" " + x for x in opts.get("st", "sc0+sc1+nt").split("+") if x)
STL = "".join(" " + x for x in opts.get("stl", opts.get("st", "sc0+sc1+nt")).split("+") if x)
def vr(b, n=4): return "v[%d:%d]" % (b, b + n - 1)
def ar(b, n=4): return "a[%d:%d]" % (b, b + n - 1)
def sr(b, n=4): return "s[%d:%d]" % (b, b + n - 1)
MF = "v_mfma_f32_16x16x32_bf16"
nstamp = [0]
def stamp(idx):
    if not STAMP: return []
    nstamp[0] = max(nstamp[0], idx + 1)
    return ["s_memtime %s" % sr(S_ST + 4 * idx, 2), "s_memrealtime %s" % sr(S_ST + 4 * idx + 2, 2), "s_waitcnt lgkmcnt(0)"]

def LS(i): return (0, 1, 2, 12, 13, 14)[i]
def qk(buf, t, par, first=False):
    r = []
    for T in range(2):
        d = vr(V_S + 8 * par + 4 * T)
        for ks in range(4):
            c = d if ks else ("0" if first else vr(V_NEGM + 4 * t))
            r.append("%s %s, %s, %s, %s" % (MF, d, ar(A_K + 32 * buf + 16 * T + 4 * ks), ar(A_Q + 16 * t + 4 * ks), c))
    if "qkil" in flags: r = [r[0], r[4], r[1], r[5], r[2], r[6], r[3], r[7]]
    return r
def pv(buf, t, par, first=False, msum=True, sumfirst=False):
    r = []
    P = vr(V_P + 4 * par)
    for dt in range(8):
        o = vr(V_O + 32 * t + 4 * dt)
        PP = P
        if "pvchain" in flags and not first:
            o = vr(V_O + 32 * t + 4 * (4 * buf + dt // 2)); PP = vr(V_P + 4 * ((par + dt) % 2))
        if "pvchainb" in flags and not first:
            o = vr(V_O + 32 * t + 4 * (4 * buf + dt // 2))
        if "pvalt" in flags and not first:
            PP = vr(V_P + 4 * ((par + dt) % 2))
        r.append("%s %s, %s, %s, %s" % (MF, o, ar(A_V + 32 * buf + 4 * dt), PP, "0" if first else o))
    if msum:
        l = ar(A_L + 4 * t)
        m = "%s %s, %s, %s, %s" % (MF, l, ar(A_ONE), P, "0" if first else l)
        r = [m] + r if (sumfirst or "sf" in flags) else r + [m]
    if "swp" in flags:
        def swp0(s):
            h, r = s.split(" ", 1); p = r.split(", "); return h + " " + ", ".join([p[0], p[2], p[1], p[3]])
        r = [swp0(x) for x in r]
    return r
def kreads(buf, sub):
    return ["ds_read_b128 %s, v%d offset:%d" % (ar(A_K + 32 * buf + 16 * T + 4 * ks), V_KA + ks, sub * 8192 + T * 4096) for T in range(2) for ks in range(4)]
VMAP = True
NVA = 4 if VMAP else 8
def vreads(buf, sub):
    if VMAP:
        return ["ds_read_b64_tr_b16 %s, v%d offset:%d" % (ar(A_V + 32 * buf + 4 * dt + 2 * T, 2), V_VA + (dt >> 1), sub * 8192 + T * 4096 + 8 * (dt & 1)) for dt in range(8) for T in range(2)]
    return ["ds_read_b64_tr_b16 %s, v%d offset:%d" % (ar(A_V + 32 * buf + 4 * dt + 2 * T, 2), V_VA + dt, sub * 8192 + T * 4096) for dt in range(8) for T in range(2)]
def dma2(srd, soff):
    return ["buffer_load_dwordx4 v%d, %s, s%d offen%s lds" % (V_OFF, sr(srd), soff, NT),
            "buffer_load_dwordx4 v%d, %s, s%d offen offset:2048%s lds" % (V_OFF, sr(srd), soff, NT)]
def kv_dma():
    return (["s_and_b32 m0, s%d, 0xffff" % S_KV] + dma2(S_KD, S_KV) + ["s_bitset1_b32 m0, 16"] + dma2(S_VD, S_KV)
            + ["s_add_u32 s%d, s%d, 8192" % (S_KV, S_KV)])
def two_dma(srd, ldsbase):
    return (["s_add_u32 m0, s%d, 0x%x" % (S_T0, ldsbase)] + dma2(srd, S_T0) + ["s_add_u32 m0, s%d, 0x%x" % (S_T1, ldsbase)] + dma2(srd, S_T1))
def qlds(t):
    return (0x8000, 0xc000, 0x18000, 0x1c000, 0x20000, 0x24000)[t]
def q_dma(t):
    r = ["s_add_u32 m0, s%d, 0x%x" % (S_T2, qlds(t))]
    for p in range(4):
        r.append("buffer_load_dwordx4 v%d, %s, s%d offen offset:%d%s lds" % (V_OFF2 if p & 1 else V_OFF, sr(S_QD), S_QOFF, 1024 * p, NT))
    r.append("s_add_u32 s%d, s%d, 4096" % (S_QOFF, S_QOFF))
    return r
def q_read(t):
    r = []
    if t == 2: r += ["v_add_u32 v%d, 0x18000, v%d" % (V_QA + ks, V_QA + ks) for ks in range(4)]
    off = qlds(t) - (0x18000 if t >= 2 else 0)
    return r + ["ds_read_b128 %s, v%d offset:%d" % (ar(A_Q + 16 * t + 4 * ks), V_QA + ks, off) for ks in range(4)]
def sm_items(par):
    S = V_S + 8 * par; P = V_P + 4 * par
    ex = ["v_exp_f32 v%d, v%d" % (S + i, S + i) for i in range(8)]
    cv = ["v_cvt_pk_bf16_f32 v%d, v%d, v%d" % (P + i, S + 2 * i, S + 2 * i + 1) for i in range(4)]
    return ex, cv
def sm_seq(par):
    ex, cv = sm_items(par)
    return [ex[0], ex[1], ex[2], cv[0], ex[3], ex[4], cv[1], ex[5], ex[6], cv[2], ex[7], "@gap", cv[3]]
def cost(s):
    if s.startswith("v_exp") or s.startswith("v_rcp") or s.startswith("buffer_"): return 8
    return 4
def merge(a, b):
    ta = sum(map(cost, a)) or 1; tb = sum(map(cost, b)) or 1
    out = []; i = j = 0; ca = cb = 0
    while i < len(a) or j < len(b):
        if j >= len(b) or (i < len(a) and ca * tb <= cb * ta): out.append(a[i]); ca += cost(a[i]); i += 1
        else: out.append(b[j]); cb += cost(b[j]); j += 1
    return out
def weave(mf, fill, start=0, end=None):
    n = len(mf); end = n if end is None else end
    fill = [f for f in fill if f != "@gap"]
    tot = sum(map(cost, fill)); ng = max(end - start, 1)
    out = []; i = 0; used = 0
    for g in range(n):
        out.append(mf[g])
        if g < start or g >= end: continue
        per = max(8.0, tot / ng)
        lim = per * (g - start + 1)
        gap = 0
        while i < len(fill) and used + cost(fill[i]) <= lim + 0.01 and (gap + cost(fill[i]) <= max(8, math.ceil(per / 4) * 4 + 4)):
            out.append(fill[i]); used += cost(fill[i]); gap += cost(fill[i]); i += 1
        if g == end - 1:
            out += fill[i:]; i = len(fill)
    out += fill[i:]
    return out

def setup():
    o = []
    o.append("s_load_dwordx4 s[4:7], s[0:1], 0")
    o.append("s_load_dwordx4 s[12:15], s[0:1], 16")
    o += ["s_cmp_ge_u32 s2, 256", "s_cbranch_scc1 L_end"]
    if STAMP:
        o.append("s_memtime %s" % sr(S_ST, 2)); o.append("s_memrealtime %s" % sr(S_ST + 2, 2)); nstamp[0] = 1
        o.append("s_load_dwordx2 %s, s[0:1], 40" % sr(S_WS, 2))
    if "nopf" not in flags: o += codepf(V_S, "v0")
    o.append("v_lshrrev_b32 v1, 6, v0")
    o.append("s_mov_b32 s%d, 0" % S_REDO)
    o.append("v_readfirstlane_b32 s%d, v1" % S_W)
    o.append("v_mov_b32 v%d, 0x7f800000" % V_NEGM)
    for t in range(1, 6): o.append("v_mov_b32 v%d, v%d" % (V_NEGM + 4 * t, V_NEGM))
    o.append("s_lshl_b32 s3, s2, 18")
    o.append("s_mul_i32 s33, s2, 94208")
    o += offs()
    o.append("s_mov_b32 s10, 0x40000"); o.append("s_mov_b32 s11, 0x20000")
    o.append("s_mov_b32 s18, 94208"); o.append("s_mov_b32 s19, 0x20000")
    o.append("s_waitcnt lgkmcnt(0)")
    o.append("s_add_u32 s8, s6, s3"); o.append("s_addc_u32 s9, s7, 0")
    o.append("s_add_u32 s4, s4, s33"); o.append("s_addc_u32 s5, s5, 0")
    o.append("s_mov_b32 s6, s18"); o.append("s_mov_b32 s7, s19")
    o.append("s_add_u32 s16, s14, s33"); o.append("s_addc_u32 s17, s15, 0")
    o.append("s_add_u32 s12, s12, s3"); o.append("s_addc_u32 s13, s13, 0")
    o.append("s_mov_b32 s14, s10"); o.append("s_mov_b32 s15, s11")
    return o
def codepf(T, tid):
    o = ["s_getpc_b64 s[34:35]", "L_pc:"]
    o.append("v_lshlrev_b32 v%d, 7, %s" % (T, tid))
    for k in range(2):
        a = T + 2 + 2 * k
        if k: o.append("v_add_u32 v%d, 0x8000, v%d" % (T, T))
        o.append("v_min_u32 v%d, L_end-L_pc, v%d" % (T + 1, T))
        o.append("v_mov_b32 v%d, s35" % (a + 1))
        o.append("v_add_co_u32 v%d, vcc, s34, v%d" % (a, T + 1))
        o.append("v_addc_co_u32 v%d, vcc, 0, v%d, vcc" % (a + 1, a + 1))
        o.append("global_load_dword v%d, %s, off" % (V_P + 2 + k, vr(a, 2)))
    return o
def offs():
    o = []
    o.append("v_mbcnt_lo_u32_b32 v0, -1, 0"); o.append("v_mbcnt_hi_u32_b32 v0, -1, v0")
    o.append("s_and_b32 s%d, s%d, 1" % (S_T0, S_W))
    o.append("s_lshl_b32 s%d, s%d, 5" % (S_XM, S_T0))
    o.append("v_lshrrev_b32 v1, 4, v0")
    o.append("v_lshlrev_b32 v%d, 2, v1" % V_OFF)
    o.append("v_xor_b32 v%d, v%d, v0" % (V_OFF, V_OFF))
    o.append("v_and_b32 v%d, 15, v%d" % (V_OFF, V_OFF))
    o.append("v_lshlrev_b32 v%d, 4, v%d" % (V_OFF, V_OFF))
    o.append("v_lshl_add_u32 v%d, v1, 8, v%d" % (V_OFF, V_OFF))
    o.append("v_xor_b32 v%d, s%d, v%d" % (V_OFF, S_XM, V_OFF))
    o.append("v_xor_b32 v%d, 32, v%d" % (V_OFF2, V_OFF))
    o.append("s_and_b32 s%d, s%d, 2" % (S_T1, S_W))
    o.append("s_lshl1_add_u32 s%d, s%d, s%d" % (S_T0, S_T1, S_T0))
    o.append("s_lshl_b32 s%d, s%d, 10" % (S_T0, S_T0))
    o.append("s_add_u32 s%d, s%d, 8192" % (S_T1, S_T0))
    o.append("s_add_u32 s%d, s%d, 16384" % (S_KV, S_T0))
    o.append("s_mul_i32 s%d, s%d, 24576" % (S_QOFF, S_W))
    o.append("s_lshl_b32 s%d, s%d, 12" % (S_T2, S_W))
    return o
def common():
    o = ["L_restart:"]
    o += q_dma(0) + two_dma(S_KD, 0) + q_dma(1)
    t = V_S
    for i in (0, 1, 4, 5, 8, 9): o.append("v_mov_b32 v%d, 0" % (V_SEL + i))
    o.append("v_bfe_u32 v%d, v0, 1, 3" % t)
    o.append("v_lshlrev_b32 v%d, 1, v1" % (t + 1))
    o.append("v_and_b32 v%d, 1, v0" % (t + 2)); o.append("v_lshlrev_b32 v%d, 4, v%d" % (t + 2, t + 2))
    o.append("v_mov_b32 v%d, 0x%x" % (t + 3, C_HI)); o.append("v_mov_b32 v%d, 0x%x" % (t + 4, C_LO))
    o.append("v_cmp_eq_u32 vcc, v%d, v%d" % (t, t + 1))
    o.append("v_lshlrev_b32 v%d, v%d, v%d" % (t + 3, t + 2, t + 3)); o.append("v_lshlrev_b32 v%d, v%d, v%d" % (t + 4, t + 2, t + 4))
    o.append("v_or_b32 v%d, 1, v%d" % (t + 1, t + 1))
    o.append("v_cndmask_b32 v%d, 0, v%d, vcc" % (V_SEL + 2, t + 3)); o.append("v_cndmask_b32 v%d, 0, v%d, vcc" % (V_SEL + 6, t + 4))
    o.append("v_cmp_eq_u32 vcc, v%d, v%d" % (t, t + 1))
    o.append("v_cndmask_b32 v%d, 0, v%d, vcc" % (V_SEL + 3, t + 3)); o.append("v_cndmask_b32 v%d, 0, v%d, vcc" % (V_SEL + 7, t + 4))
    o.append("v_and_b32 v%d, 3, v0" % t); o.append("v_lshlrev_b32 v%d, 2, v%d" % (t, t))
    o.append("v_lshrrev_b32 v%d, 1, v0" % (t + 1)); o.append("v_and_b32 v%d, 2, v%d" % (t + 1, t + 1))
    o.append("v_or_b32 v%d, v%d, v%d" % (t, t, t + 1))
    o.append("v_xor_b32 v%d, v%d, v1" % (t, t))
    o.append("v_lshlrev_b32 v%d, 4, v%d" % (t, t))
    o.append("v_and_b32 v%d, 15, v0" % (t + 1))
    o.append("v_lshl_add_u32 v%d, v%d, 8, v%d" % (V_KA, t + 1, t))
    for ks in range(1, 4): o.append("v_xor_b32 v%d, %d, v%d" % (V_KA + ks, 64 * ks, V_KA))
    o.append("v_and_b32 v%d, 12, v0" % t)
    o.append("v_and_b32 v%d, 1, v1" % (t + 1)); o.append("v_lshlrev_b32 v%d, 1, v%d" % (t + 1, t + 1))
    o.append("v_or_b32 v%d, v%d, v%d" % (t, t, t + 1))
    o.append("v_lshlrev_b32 v%d, 4, v%d" % (t, t))
    o.append("v_and_b32 v%d, 3, v0" % (t + 1)); o.append("v_lshlrev_b32 v%d, %d, v%d" % (t + 1, 4 if VMAP else 3, t + 1))
    o.append("v_xor_b32 v%d, v%d, v%d" % (t, t, t + 1))
    o.append("v_lshrrev_b32 v%d, 2, v0" % (t + 1))
    o.append("v_lshl_add_u32 v%d, v%d, 8, v%d" % (t, t + 1, t))
    o.append("v_add_u32 v%d, 0x%x, v%d" % (V_VA, LDS_V, t))
    for dt in range(1, NVA): o.append("v_xor_b32 v%d, %d, v%d" % (V_VA + dt, (64 if VMAP else 32) * dt, V_VA))
    o.append("v_and_b32 v%d, 3, v0" % t); o.append("v_cmp_eq_u32 vcc, 0, v%d" % t)
    o.append("v_mov_b32 v%d, 0x3f803f80" % (t + 1))
    o.append("s_or_b32 s%d, s%d, s%d" % (S_XM, S_XM, S_T2))
    o.append("v_cndmask_b32 v%d, 0, v%d, vcc" % (t, t + 1))
    for i in range(4): o.append("v_accvgpr_write_b32 a%d, v%d" % (A_ONE + i, t))
    for ks in range(4): o.append("v_xor_b32 v%d, s%d, v%d" % (V_QA + ks, S_XM, V_KA + ks))
    o.append("v_and_b32 v%d, 14, v0" % t); o.append("v_lshlrev_b32 v%d, 8, v%d" % (t, t))
    o.append("v_and_b32 v%d, 1, v0" % (t + 1)); o.append("v_lshl_add_u32 v%d, v%d, 6, v%d" % (t, t + 1, t))
    o.append("v_lshl_add_u32 v%d, v1, 4, v%d" % (t, t))
    o.append("v_accvgpr_write_b32 a%d, v%d" % (A_SA, t))
    if "fine" in flags: o += stamp(13)
    o.append("s_waitcnt vmcnt(8)")
    if "fine" in flags: o += stamp(14)
    o += q_read(0)
    o += two_dma(S_VD, LDS_V)
    o += schedule(sum([pm(0, k) + pc(0, k) for k in range(4)], []))[0]
    o.append("s_waitcnt vmcnt(8)")
    o += q_dma(2)
    o.append("s_barrier")
    o += kreads(0, 0) + kreads(1, 1)
    o += stamp(1)
    o.append("s_cmp_eq_u32 s%d, 3" % S_W)
    o.append("s_cbranch_scc1 L_pro5")
    return o

def pm(t, ks):
    q = ar(A_Q + 16 * t + 4 * ks); D = V_D + 8 * (ks % 2)
    r = []
    for h in range(2):
        d = vr(D + 4 * h)
        r.append("%s %s, %s, %s, 0" % (MF, d, vr(V_SEL + 2 - 2 * h), q))
        r.append("%s %s, %s, %s, %s" % (MF, d, vr(V_SEL + 6 - 2 * h), q, d))
    return r
def pc(t, ks):
    D = V_D + 8 * (ks % 2)
    r = ["v_cvt_pk_bf16_f32 v%d, v%d, v%d" % (D + 2 * i, D + 2 * i, D + 2 * i + 1) for i in range(4)]
    return r + ["v_accvgpr_write_b32 a%d, v%d" % (A_Q + 16 * t + 4 * ks + i, D + 2 * i) for i in range(4)]
def rowmax(t, par=0):
    S = V_S + 8 * par; m, m2 = V_LS, V_LS + 1; N = V_NEGM + 4 * t
    o = ["v_max3_f32 v%d, v%d, v%d, v%d" % (m, S, S + 1, S + 2),
         "v_max3_f32 v%d, v%d, v%d, v%d" % (m2, S + 3, S + 4, S + 5),
         "v_max3_f32 v%d, v%d, v%d, v%d" % (m, m, S + 6, S + 7),
         "v_max_f32 v%d, v%d, v%d" % (m, m, m2),
         "v_mov_b32 v%d, v%d" % (m2, m),
         "v_permlane32_swap_b32 v%d, v%d" % (m, m2),
         "v_max_f32 v%d, v%d, v%d" % (m, m, m2),
         "v_mov_b32 v%d, v%d" % (m2, m),
         "v_permlane16_swap_b32 v%d, v%d" % (m, m2),
         "v_max_f32 v%d, v%d, v%d" % (m, m, m2),
         "v_min_f32 v%d, -v%d, v%d" % (N, m, N)]
    o += ["v_mov_b32 v%d, v%d" % (N + i, N) for i in range(1, 4)]
    return o

def inter(a, b, k):
    out = []; b = list(b)
    for x in a:
        out.append(x); out += b[:k]; del b[:k]
    return out + b
def nogap(x): return [y for y in x if y != "@gap"]
CPRO = int(opts.get("C", 2))
TAILN = int(opts.get("T", 2))

class VM:
    def __init__(self, names): self.q = list(names)
    def issue(self, names): self.q += names
    def wait(self, name):
        last = max(i for i, x in enumerate(self.q) if x == name)
        n = len(self.q) - 1 - last
        self.q = self.q[last + 1:]
        return "s_waitcnt vmcnt(%d)" % n

def pipeline(units, p0, hooks, first_qk_done, prev_pv, last_qk, sumfirst=False):
    o = []
    n = len(units)
    H = lambda *k: hooks.get(k, [])
    def QK(k):
        buf, t, first = units[k]
        return H("bQK", k) + qk(buf, t, (p0 + k) % 2, first=first) + H("aQK", k)
    def SM(k):
        buf, t, first = units[k]
        par = (p0 + k) % 2
        r = []
        if first:
            r += rowmax(t, par) + ["v_add_f32 v%d, v%d, v%d" % (V_S + 8 * par + i, V_S + 8 * par + i, V_NEGM + 4 * t) for i in range(8)]
        return r + nogap(sm_seq(par))
    def PV(k):
        buf, t, first = units[k]
        blk = pv(buf, t, (p0 + k) % 2, first=first, sumfirst=sumfirst)
        return H("bPV", k) + blk[:2] + H("mPV", k) + blk[2:] + H("aPV", k)
    if not first_qk_done: o += QK(0)
    o += prev_pv + SM(0)
    for k in range(n):
        if k + 1 < n: o += QK(k + 1)
        elif last_qk is not None:
            o += last_qk; break
        o += PV(k)
        if k + 1 < n: o += SM(k + 1)
    return o

def auto_loads(seq, init, hooks, off, sync, late=lambda s_, k: False):
    for kind, key, fn in (("K", "aQK", kreads), ("V", "aPV", vreads)):
        cur = dict(init); lastuse = {}
        for k, (s_, t, buf) in enumerate(seq):
            if cur.get(buf) != s_:
                at = lastuse.get(buf, -1)
                if late(s_, k):
                    assert at <= k - 2
                    hooks.setdefault(("bPV" if kind == "K" else "aPV", k - 2), []).extend(sync(kind, s_) + fn(buf, off(s_)))
                else: hooks.setdefault((key, at), []).extend(fn(buf, off(s_)))
                cur[buf] = s_
            lastuse[buf] = k

def prologue(NQ):
    C = CPRO
    NA = NQ if C == 2 else 3
    seq = [(s_, t, s_) for t in range(NA) for s_ in (0, 1)]
    if C == 4:
        seq += [(s_, t, s_ % 2) for s_ in (2, 3) for t in range(NA)]
        for t in range(NA, NQ):
            seq += [(s_, t, s_ % 2) for s_ in ((2, 3, 0, 1) if (t - NA) % 2 == 0 else (0, 1, 2, 3))]
    seen = set(); units = []; firstk = {}
    for k, (s_, t, buf) in enumerate(seq):
        units.append((buf, t, t not in seen))
        if t not in seen: firstk[t] = k
        seen.add(t)
    n = len(seq)
    if C == 2: pend = ["q%d" % t for t in range(3, NQ)] + ["kv2", "kv3", None]
    else: pend = ["kv2", "kv3"] + ["q%d" % t for t in range(3, NQ)] + ["kv4", "kv5", None]
    hooks = {}
    def add(key, lines): hooks.setdefault(key, []).extend(lines)
    LW = int(opts.get("lw", 1))
    for u in range(1, NQ):
        k = firstk[u]
        span = 2 if (C == 2 or u < NA) else int(opts.get("span", 3))
        k0 = k - span
        P = [pm(u, i) + pc(u, i) for i in range(4)]
        W = ["@wait q%d" % u] + (stamp(7 + u) if "fine" in flags else []) + q_read(u) + ["@next"]
        if LW == 0:
            add(("bQK", k0), W); add(("aQK", k0), P[0] + P[1]); add(("aQK", k0 + 1), P[2] + P[3])
        else:
            add(("aQK", k0), W); add(("bQK", k0 + 1), P[0])
            if span == 2: add(("aQK", k0 + 1), P[1] + P[2] + P[3])
            else: add(("aQK", k0 + 1), P[1]); add(("bQK", k0 + 2), P[2]); add(("aQK", k0 + 2), P[3])
    add(("bPV", 0), ["@wait v01"] + (stamp(15) if "fine" in flags else []) + ["@next", "s_barrier"] + vreads(0, 0) + vreads(1, 1))
    synced = set()
    def sync(kind, s_):
        if s_ < 2 or (kind, s_) in synced: return []
        synced.add(("K", s_)); synced.add(("V", s_))
        return ["@wait v%d" % s_, "@next", "s_barrier"]
    firsts = {}
    for k, x in enumerate(seq): firsts.setdefault(x[0], k)
    auto_loads(seq, {0: 0, 1: 1}, hooks, lambda s_: s_, sync, lambda s_, k: firsts[s_] == k)
    ux = max(k for k in range(n) if seq[k][2] == 0)
    add(("aQK", ux), stamp(2))
    add(("mPV", ux - 1), ["@wait k%d" % C, "s_barrier"] + kreads(0, C) + ["@kv"])
    add(("mPV", ux), ["@wait v%d" % C, "s_barrier", "s_waitcnt lgkmcnt(0)"])
    st = (C // 2) % 4
    fin = ["s_mov_b32 s%d, 0x%x" % (S_XM, st * 0x4000)]
    fin += ["v_xor_b32 v%d, s%d, v%d" % (V_KA + i, S_XM, V_KA + i) for i in range(4 + NVA)]
    fin += ["s_mov_b32 s%d, 0x%x" % (S_XM, 0xc000 if st % 2 else 0x4000)]
    nper = 32 - TAILN - C
    fin += ["s_mov_b32 s%d, %d" % (S_CNT, (nper + 1) // 2)]
    fin += ["v_mov_b32 v%d, 0" % LS(i) for i in range(NVS)]
    add(("aPV", ux), vreads(0, C) + ["@kv"] + fin)
    o = pipeline(units, 0, hooks, False, [], qk(0, 0, 0))
    vm = VM(["q1"] * 4 + ["v01"] * 4 + ["q2"] * 4)
    nkv = [2]
    def do_kv():
        i = nkv[0]; nkv[0] += 1
        vm.issue(["k%d" % i] * 2 + ["v%d" % i] * 2); return kv_dma()
    r = []
    for x in o:
        if x.startswith("@wait"): r.append(vm.wait(x.split()[1]))
        elif x == "@kv": r += do_kv()
        elif x == "@next":
            nx = pend.pop(0)
            if nx is None: continue
            if nx[0] == "q": vm.issue([nx] * 4); r += q_dma(int(nx[1:]))
            else:
                assert int(nx[2:]) == nkv[0]; r += do_kv()
        else: r.append(x)
    assert not pend and nkv[0] == C + 4 and len(vm.q) == 12, (pend, nkv, vm.q)
    o, tc = schedule(r)
    print("prologue", NQ, "sched est", tc, "waits", " ".join(x[-3:] for x in o if "vmcnt" in x))
    o.append("s_nop 1")
    o += stamp(3)
    return o

def slot(mf, par, reads, misc, vsum=None):
    ex, cv = sm_items(par)
    n = len(mf)
    fill = [[] for _ in range(n)]
    S = V_S + 8 * par
    if vsum is None:
        epos = [1, 2, 4, 5, 8, 9, 12, 13] if n == 17 else [1, 2, 4, 5, 7, 8, 11, 12]
        cpos = [3, 6, 10, 14] if n == 17 else [3, 6, 9, 13]
        free = [g for g in range(n) if g not in epos and g not in cpos]
        rpos = sorted(cpos + [free[2], free[2]]) if len(reads) > 4 else cpos
        for e, g in zip(ex, epos): fill[g].append(e)
        for r, g in zip(reads, rpos): fill[g].append(r)
        for c, g in zip(cv, cpos): fill[g].append(c)
        if len(reads) > 4: free.remove(free[2])
    else:
        assert not reads
        ad = ["v_add_f32 v%d, v%d, v%d" % (vsum, vsum, S + i) for i in range(8)]
        o0 = 1
        seq = [[ex[0]], [ex[1]], [ex[2]], [cv[0], ad[0]], [ex[3]], [ad[1], ad[2]], [ex[4]], [cv[1], ad[3]], [ex[5]], [ex[6]], [cv[2], ad[4]], [ex[7]], [ad[5], ad[6]], [cv[3], ad[7]]]
        for i, s in enumerate(seq): fill[o0 + i] += s
        free = [0] + list(range(o0 + len(seq), n))
    assert len(misc) <= len(free), (len(misc), free)
    for grp, g in zip(misc, free):
        if grp: fill[g] = list(grp) + fill[g]
    out = []
    for i in range(n):
        out.append(mf[i]); out += fill[i]
    return out

def loop_body(NQ):
    ev, od = loop_halves(NQ)
    return ev + od if TAILN % 2 == 0 else od + ev
def loop_halves(NQ):
    res = []
    lasth = 1 if TAILN % 2 == 0 else 0
    par = lambda s, t: (s * NQ + t) % 2
    nvs = NVS if NQ == 6 else 0
    ysl = NQ - 4
    for half, s in enumerate((2, 3)):
        buf = s % 2
        o = []
        rd = kreads(1 - buf, 1 - half) + vreads(1 - buf, 1 - half)
        d = kv_dma()
        x = ["v_xor_b32 v%d, s%d, v%d" % (V_KA + i, S_XM, V_KA + i) for i in range(4 + NVA)]
        for t in range(NQ):
            pvb = pv(buf, t - 1, par(s, t - 1), msum=(t - 1 >= nvs)) if t > 0 else pv(1 - buf, NQ - 1, par(s - 1, NQ - 1))
            qkb = qk(buf, t + 1, par(s, t + 1)) if t < NQ - 1 else qk(1 - buf, 0, par(s + 1, 0))
            reads = []
            if t >= ysl: reads = rd[:6]; rd = rd[6:]
            misc = []
            wv = ["s_waitcnt lgkmcnt(0)"]
            if NQ == 6:
                if t == 0:
                    misc = [x[0:2], x[2:4], x[4:5] + wv] if half else [None, None, wv]
                    if nvs == 0: misc = [None, None] + misc
                if t == 1:
                    misc = [x[5:7], x[7:9]] if half else []
                if t == 2:
                    misc = [["s_waitcnt vmcnt(8)", "s_barrier"], d[0:1] + (x[9:10] if half else []), x[10:12] if half else None]
                if t == 3: misc = [d[1:2], d[2:3], d[3:4] + (["s_xor_b32 s%d, s%d, 0x8000" % (S_XM, S_XM)] if half else [])]
                if t == 4: misc = [d[4:5], d[5:6], d[6:7]]
                if t == 5: misc = [None, ["s_waitcnt lgkmcnt(2)"]] + ([["s_sub_u32 s%d, s%d, 1" % (S_CNT, S_CNT)], ["s_cmp_lg_u32 s%d, 0" % S_CNT]] if half == lasth else [])
            else:
                if t == 0: misc = [x[0:2], x[2:4], x[4:6], x[6:8], x[8:9] + wv] if half else [None, None, None, None, wv]
                if t == 1: misc = [["s_waitcnt vmcnt(8)", "s_barrier"], d[0:1] + (x[9:10] if half else []), x[10:12] if half else None]
                if t == 2: misc = [d[1:2], d[2:3], d[3:4] + (["s_xor_b32 s%d, s%d, 0x8000" % (S_XM, S_XM)] if half else [])]
                if t == 3: misc = [d[4:5], d[5:6], d[6:7]]
                if t == 4: misc = [None, ["s_waitcnt lgkmcnt(2)"]] + ([["s_sub_u32 s%d, s%d, 1" % (S_CNT, S_CNT)], ["s_cmp_lg_u32 s%d, 0" % S_CNT]] if half == lasth else [])
            o += slot(pvb + qkb, par(s, t), reads, misc, vsum=(LS(t) if t < nvs else None))
        assert not rd
        res.append(o)
    return res

SA, ACC = V_OFF, 15
A_SA = 252
def epi_setup():
    o = ["v_accvgpr_read_b32 v%d, a%d" % (SA, A_SA)]
    o.append("v_mov_b32 v%d, 0" % ACC)
    o.append("s_mul_i32 s%d, s%d, 24576" % (S_QOFF, S_W))
    o.append("s_mov_b32 vcc_lo, 0x55555555"); o.append("s_mov_b32 vcc_hi, 0x55555555")
    return o
def vsum_reduce(t):
    x = LS(t); T = V_NEGM + 4 * t + 2
    return ["v_mov_b32 v%d, v%d" % (T, x), "v_permlane32_swap_b32 v%d, v%d" % (x, T), "v_add_f32 v%d, v%d, v%d" % (x, x, T),
            "v_mov_b32 v%d, v%d" % (T, x), "v_permlane16_swap_b32 v%d, v%d" % (x, T), "v_add_f32 v%d, v%d, v%d" % (x, x, T)]
DPPX = "quad_perm:[1,0,3,2] row_mask:0xf bank_mask:0xf"
def epi(t, vs, pk=False):
    E_L = V_NEGM + 4 * t
    h = ["v_accvgpr_read_b32 v%d, a%d" % (E_L, A_L + 4 * t)]
    if vs: h.append("v_add_f32 v%d, v%d, v%d" % (E_L, E_L, LS(t)))
    h.append("v_add_f32 v%d, v%d, v%d" % (ACC, ACC, E_L))
    h.append("v_rcp_f32 v%d, v%d" % (E_L, E_L))
    m = []; sw = []; x = []
    pol = STL if t == LASTT[0] else STNT
    for s in range(4):
        b = V_O + 32 * t + 8 * s
        g = []
        if pk:
            for i in range(0, 8, 2): g.append("v_pk_mul_f32 %s, %s, %s op_sel_hi:[1,0]" % (vr(b + i, 2), vr(b + i, 2), vr(E_L, 2)))
        else:
            for i in range(8): g.append("v_mul_f32 v%d, v%d, v%d" % (b + i, b + i, E_L))
        for i in range(4): g.append("v_cvt_pk_bf16_f32 v%d, v%d, v%d" % (b + i, b + 2 * i, b + 2 * i + 1))
        m.append(g)
        sw.append([] if VMAP else ["v_permlane16_swap_b32 v%d, v%d" % (b, b + 2), "v_permlane16_swap_b32 v%d, v%d" % (b + 1, b + 3)])
    for p in range(2):
        X = V_O + 32 * t + 16 * p; Y = X + 8
        A = ["v_cndmask_b32_dpp v%d, v%d, v%d, vcc %s" % (X + 4 + i, Y + i, X + i, DPPX) for i in (0, 2, 1, 3)] + ["s_not_b64 vcc, vcc"]
        B = ["v_cndmask_b32_dpp v%d, v%d, v%d, vcc %s" % (Y + i, X + i, Y + i, DPPX) for i in range(4)] + ["s_not_b64 vcc, vcc"]
        if "nost" not in flags:
            A.append("buffer_store_dwordx4 %s, v%d, %s, s%d offen offset:%d%s" % (vr(X + 4), SA, sr(S_OD), S_QOFF, 128 * p, pol))
            B.append("buffer_store_dwordx4 %s, v%d, %s, s%d offen offset:%d%s" % (vr(Y), SA, sr(S_OD), S_QOFF, 128 * p + 256, pol))
        if p == 1: B.append("s_add_u32 s%d, s%d, 4096" % (S_QOFF, S_QOFF))
        x.append((A, B))
    return h, m, sw, x
LASTT = [None]
def epi_body(m, sw, x):
    k = 2
    return (m[1][:k] + sw[0] + m[1][k:] + m[2][:k] + sw[1] + m[2][k:k + 2] + x[0][0] + m[2][k + 2:] + m[3][:k] + sw[2] + x[0][1][:3] + m[3][k:]
            + x[0][1][3:] + sw[3]), x[1][0] + x[1][1]
def epi_flat(t, vs):
    h, m, sw, x = epi(t, vs)
    body, fin = epi_body(m, sw, x)
    return h + m[0] + body, fin

def tail(NQ):
    LASTT[0] = NQ - 1
    nvs = NVS if NQ == 6 else 0
    if TAILN == 2:
        seq = [(30, 0, 0), (30, 1, 0), (31, 0, 1), (31, 1, 1)] + [(30 + b, t, b) for t in range(2, NQ) for b in (0, 1)]
        init = {0: 30}; off = lambda s_: s_ - 30; s0 = 30; w = 8
    else:
        e = max(2, NQ - int(opts.get("post", 3)))
        seq = [(29, t, 1) for t in range(e)] + [(30, 0, 0), (30, 1, 0), (31, 0, 1), (31, 1, 1)]
        seq += [(30 + b, t, b) for t in range(2, e) for b in (0, 1)]
        seq += [(30, t, 0) for t in range(e, NQ)]
        seq += [x for t in range(e, NQ) for x in ((31, t, 1), (29, t, 0))]
        init = {1: 29}; off = lambda s_: s_ - 28; s0 = 29; w = 4
    n = len(seq)
    p0 = (s0 * NQ) % 2
    hooks = {}
    def add(key, lines): hooks.setdefault(key, []).extend(lines)
    auto_loads(seq, init, hooks, off, lambda kind, s_: [])
    ppv = pv(1 - s0 % 2, NQ - 1, 1 - p0)
    pre = ppv[:1] + ["s_waitcnt vmcnt(%d)" % w, "s_barrier"] + hooks.pop(("aQK", -1)) + ppv[1:] + hooks.pop(("aPV", -1))
    pre += epi_setup()
    DL = int(opts.get("dl", 2))
    lastk = {t: k for k, (s_, t, b) in enumerate(seq)}
    dead = {}; prevd = -1
    for t in sorted(lastk, key=lambda t: lastk[t]):
        k = lastk[t]
        if t < nvs: add(("aQK", k), vsum_reduce(t))
        h, m, sw, x = epi(t, t < nvs, pk=True)
        if k == n - 1: m[0] = epi(t, t < nvs)[1][0]
        else:
            h = h + ["\n".join(sum([g[:4] for g in m], []))]
            m = [g[4:] for g in m]
        e_ = h + m[0] + sw[0] + m[1] + sw[1] + x[0][0] + x[0][1] + m[2] + sw[2] + m[3] + sw[3] + x[1][0] + x[1][1]
        e_[-1] += " ; tag=e%d" % t
        add(("aPV", k), e_)
        d = max(k + DL, prevd + 1); prevd = d
        if d < n - 1: add(("bPV", d), ["@after e%d" % t])
    o = pipeline([(b, t, False) for (s_, t, b) in seq], p0, hooks, True, pre, None, sumfirst=True)
    r = []; pendtag = None
    for x in o:
        if x.startswith("@after"): pendtag = x.split()[1]
        else:
            r.append(x + (" ; after=" + pendtag if pendtag else "")); pendtag = None
    o, tc = schedule(r, pre=loop_body(NQ))
    print("tail", NQ, "sched est", tc)
    o = stamp(4) + o + stamp(5)
    o += stamp(6)
    o.append("s_lshl_b32 s%d, s%d, 13" % (S_T0, S_W)); o.append("s_add_u32 s%d, s%d, 0x%x" % (S_T0, S_T0, LDS_X))
    o.append("s_mov_b32 s%d, 0x%x" % (S_T1, THRESH))
    o.append("v_cmp_ngt_f32 vcc, s%d, v%d" % (S_T1, ACC))
    o.append("s_cmp_lg_u64 vcc, 0")
    o.append("s_cselect_b32 s%d, 1, 0" % S_T1)
    o.append("v_mbcnt_lo_u32_b32 v4, -1, 0"); o.append("v_mbcnt_hi_u32_b32 v4, -1, v4")
    o.append("v_mov_b32 v5, s%d" % S_T1)
    o.append("v_mov_b32 v6, s%d" % S_T0)
    o.append("ds_write_b32 v6, v5 offset:6144")
    o.append("v_and_b32 v6, 3, v4")
    o.append("v_lshlrev_b32 v6, 13, v6")
    o.append("v_add_u32 v6, 0x%x, v6" % LDS_X)
    o.append("s_waitcnt lgkmcnt(0)")
    o.append("s_barrier")
    o.append("ds_read_b32 v5, v6 offset:6144")
    o.append("s_waitcnt lgkmcnt(0)")
    o.append("v_cmp_ne_u32 vcc, 0, v5")
    o.append("s_cmp_lg_u32 s%d, 0" % S_REDO)
    o.append("s_cbranch_scc1 L_fin")
    o.append("s_branch L_fin" if "noredo" in flags else "s_cbranch_vccz L_fin")
    return o

def redo(NQ):
    o = ["s_waitcnt vmcnt(0)", "s_barrier", "s_mov_b32 s%d, 1" % S_REDO]
    M = V_O + 64; AD = V_KA + 2
    o.append("v_and_b32 v%d, 15, v4" % AD); o.append("v_lshlrev_b32 v%d, 8, v%d" % (AD, AD))
    o.append("v_lshrrev_b32 v5, 4, v4"); o.append("v_lshl_add_u32 v%d, v5, 4, v%d" % (AD, AD))
    for t in range(NQ): o.append("v_mov_b32 v%d, 0xff800000" % (M + t))
    o.append("s_mov_b32 s%d, 0" % S_T0)
    body = []
    for ks in range(4):
        body.append("buffer_load_dwordx4 %s, v%d, %s, s%d offen offset:%d" % (ar(A_K + 4 * ks), AD, sr(S_KD), S_T0, 64 * ks))
    body.append("s_waitcnt vmcnt(0)")
    for t in range(NQ):
        d = vr(V_O + 4 * t)
        for ks in range(4):
            body.append("%s %s, %s, %s, %s" % (MF, d, ar(A_K + 4 * ks), ar(A_Q + 16 * t + 4 * ks), d if ks else "0"))
    body.append("s_nop 7")
    for t in range(NQ):
        b = V_O + 4 * t
        body.append("v_max3_f32 v%d, v%d, v%d, v%d" % (M + t, M + t, b, b + 1))
        body.append("v_max3_f32 v%d, v%d, v%d, v%d" % (M + t, M + t, b + 2, b + 3))
    body.append("s_add_u32 s%d, s%d, 4096" % (S_T0, S_T0))
    body.append("s_cmp_lt_u32 s%d, 0x40000" % S_T0)
    body.append("s_cbranch_scc1 L_max%d" % NQ)
    post = []
    for t in range(NQ):
        m, m2 = M + t, 5
        post += ["v_mov_b32 v%d, v%d" % (m2, m), "v_permlane32_swap_b32 v%d, v%d" % (m, m2), "v_max_f32 v%d, v%d, v%d" % (m, m, m2),
                 "v_mov_b32 v%d, v%d" % (m2, m), "v_permlane16_swap_b32 v%d, v%d" % (m, m2), "v_max_f32 v%d, v%d, v%d" % (m, m, m2),
                 "v_sub_f32 v%d, 0, v%d" % (V_NEGM + 4 * t, m)]
    post += offs()
    post.append("s_branch L_restart")
    return o, body, post

def fin():
    o = ["L_fin:"]
    if STAMP:
        o.append("s_waitcnt vmcnt(0)")
        o += stamp(7)
        if "pad" in opts:
            o.append("s_mov_b32 s80, %d" % (int(opts["pad"]) * 100))
            if "pb" in opts:
                cyc = 0 if "pcyc" in flags else 2
                o.append("s_sub_u32 s81, s%d, s%d" % (S_ST + 4 * int(opts["pb"]) + cyc, S_ST + 4 * int(opts.get("pa", 0)) + cyc))
                if "pcyc" in flags: o.append("s_lshr_b32 s81, s81, 4")
                o.append("s_add_u32 s80, s80, s81")
            o.append("L_spin:")
            o.append("s_memrealtime s[82:83]"); o.append("s_waitcnt lgkmcnt(0)")
            o.append("s_sub_u32 s81, s82, s%d" % (S_ST + 2))
            o.append("s_cmp_lt_u32 s81, s80"); o.append("s_cbranch_scc1 L_spin")
            o.append("s_branch L_end")
        w = int(opts.get("sw", 0))
        o.append("s_cmp_lg_u32 s%d, %d" % (S_W, w)); o.append("s_cbranch_scc1 L_end")
        o.append("s_lshl_b32 s3, s2, 9")
        o.append("s_add_u32 s%d, s%d, s3" % (S_WS, S_WS)); o.append("s_addc_u32 s%d, s%d, 0" % (S_WS + 1, S_WS + 1))
        n = nstamp[0]
        for i in range(4 * n): o.append("v_mov_b32 v%d, s%d" % (64 + i, S_ST + i))
        o.append("v_mov_b32 v1, 0"); o.append("s_mov_b64 exec, 1")
        for i in range(n): o.append("global_store_dwordx4 v1, %s, %s offset:%d" % (vr(64 + 4 * i), sr(S_WS, 2), 16 * i))
    o.append("L_end:"); o.append("s_endpgm")
    return o

su = setup(); cm = common()
code = None; errs = []
for NQ in (6, 5):
    ev, od = loop_halves(NQ)
    br = ["s_cbranch_scc1 L_loop%d" % NQ]
    r1, rb, r2 = redo(NQ)
    pro = prologue(NQ)
    if TAILN % 2 == 0:
        lp = [("ev", ev, False), ("od", od + br, False)] * 2
    else:
        pro = pro + ["s_branch L_even%d" % NQ]
        lp = [("ev", ev + br, False), ("od", od, False)] * 2 + [("ev", ev + br, False)]
    segs = [("su", su, True), ("cm", cm, True), ("pro", pro, True)] + lp + [
            ("tail", tail(NQ), True), ("r1", r1, True), ("rb", rb, False), ("rb", rb, False), ("r2", r2, True), ("cm", cm, True)]
    out, e = process(segs)
    errs += ["NQ%d: %s" % (NQ, x) for x in e]
    if code is None: code = out["su"] + out["cm"]
    else: code.append("L_pro5:")
    code += out["pro"] + [".p2align 6", "L_loop%d:" % NQ]
    code += (out["ev"] + out["od"]) if TAILN % 2 == 0 else (out["od"] + ["L_even%d:" % NQ] + out["ev"])
    code += out["tail"] + out["r1"] + ["L_max%d:" % NQ] + out["rb"] + out["r2"]
code += fin()
if "force" not in flags:
    for e in errs[:10]: print("ERR", e)
    if errs: sys.exit(1)
hdr = open("standalone__mha_softmax__near_ridge.s.ref").read().split("; Override launch")[0]
L = hdr.rstrip("\n").split("\n")
L.append("; @launch grid=(256,1,1) block=(256,1,1) lds=163840")
if STAMP: L.append("; nstamps %d" % nstamp[0]); L.append("; variant: " + variant)
L += ['.amdgcn_target "amdgcn-amd-amdhsa--gfx950"', ".text", ".globl " + NAME, ".p2align 8", ".type %s,@function" % NAME, NAME + ":"]
for c in code: L.append(c if c.endswith(":") or c.startswith(".") else "    " + c)
L += ['.section .rodata,"a"', ".p2align 6", ".amdhsa_kernel " + NAME,
      "  .amdhsa_next_free_vgpr 512", "  .amdhsa_next_free_sgpr 102", "  .amdhsa_accum_offset 256",
      "  .amdhsa_group_segment_fixed_size 0", "  .amdhsa_kernarg_size 48", "  .amdhsa_user_sgpr_count 2",
      "  .amdhsa_user_sgpr_kernarg_segment_ptr 1", "  .amdhsa_system_sgpr_workgroup_id_x 1", ".end_amdhsa_kernel"]
open(sys.argv[1], "w").write("\n".join(L) + "\n")
```

```python
from chk import parse
from chk2 import need_between
STC = [36]
def icost(I):
    if "cost" in I: return I["cost"]
    if "grp" in I: return 4 * len(I["grp"]) + 12
    if I["kind"] == "mfma": return 8
    if I.get("trans") or I.get("perm"): return 8
    if I["kind"] in ("dma", "vml"): return 8
    if I["kind"] == "vms": return STC[0]
    if I["kind"] == "dsw": return 20
    return 4
SCC = ("s", "scc")
def schedule(lines, pre=(), dslat=130, pin_waits=True, urg=True, dmac=8, barc=4, dsgap=16, mflat=0, pairing=0, seed=None, sentinel=None):
    ins = []
    if sentinel: lines = list(lines) + [sentinel]
    for l in lines:
        if l.startswith("@lg "):
            from chk import regs
            rr = sum([regs(x) for x in l.split()[1:]], [])
            I = dict(op="s_mov_lg", text=l, defs=rr, uses=rr, kind="salu", srcC=[], srcAB=[], lg=True)
        elif "\n" in l:
            parts = [parse(x) for x in l.split("\n")]
            I = dict(parts[0]); I["defs"] = sum([p["defs"] for p in parts], []); I["uses"] = sum([p["uses"] for p in parts], [])
            I["grp"] = parts
        else: I = parse(l)
        I["line"] = l
        op = I["op"]
        if I["kind"] == "salu" and not op.startswith("s_mov") and op not in ("s_barrier",) and not op.startswith("s_bitset"):
            I["defs"] = I["defs"] + [SCC]
            if op.startswith("s_addc") or op.startswith("s_cselect") or op.startswith("s_cbranch"): I["uses"] = I["uses"] + [SCC]
        if "vcc" in l:
            if op.startswith("v_cndmask"): I["uses"] = I["uses"] + [("s", "vcc")]
            if "vcc_lo" in l or "vcc_hi" in l: I["defs"] = I["defs"] + [("s", "vcc")]; I["uses"] = I["uses"] + [("s", "vcc")]
        ins.append(I)
    n = len(ins)
    preds = [set() for _ in range(n)]
    lat = {}
    lastw = {}; readers = {}
    lastmem = None; lastmf = None; lastds = None
    for i, I in enumerate(ins):
        for r in I["uses"]:
            if r in lastw:
                preds[i].add(lastw[r])
                if ins[lastw[r]]["kind"] == "dsr": lat[(lastw[r], i)] = dslat
                if ins[lastw[r]]["kind"] == "mfma" and I["kind"] == "valu" and mflat: lat[(lastw[r], i)] = mflat
        for r in I["defs"]:
            if r in lastw: preds[i].add(lastw[r])
            for x in readers.get(r, ()): preds[i].add(x)
        for r in I["uses"]: readers.setdefault(r, []).append(i)
        for r in I["defs"]: lastw[r] = i; readers[r] = []
        mem = I["kind"] in ("dsr", "dsw", "dma", "vml", "vms", "wait", "smem") or I["op"] == "s_barrier"
        if mem:
            if lastmem is not None: preds[i].add(lastmem)
            lastmem = i
        if I["kind"] in ("dsr", "dma"):
            if lastds is not None:
                preds[i].add(lastds); lat[(lastds, i)] = max(lat.get((lastds, i), 0), dsgap)
            lastds = i
        if I["kind"] == "mfma":
            if lastmf is not None: preds[i].add(lastmf)
            lastmf = i
        if pin_waits and (I["kind"] in ("wait", "smem")) and lastmf is not None: preds[i].add(lastmf)
        preds[i].discard(i)
    if sentinel: preds[n - 1] |= set(range(n - 1))
    import re
    tags = {}
    for i, I in enumerate(ins):
        m = re.search(r"tag=(\w+)", I["line"])
        if m: tags[m.group(1)] = i
        m = re.search(r"after=(\w+)", I["line"])
        if m: preds[i].add(tags[m.group(1)])
        I["line"] = I["line"].split(";")[0].rstrip()
    urgent = [False] * n
    for i in range(n - 1, -1, -1):
        if ins[i]["kind"] == "dma": ins[i]["cost"] = dmac
        if ins[i]["op"] == "s_barrier": ins[i]["cost"] = barc
        if ins[i]["kind"] in (("dma", "vms", "wait") if urg else ("wait",)) or ins[i]["op"] == "s_barrier": urgent[i] = True
        if urgent[i] and ins[i]["kind"] in ("dma", "dsr", "salu") and ins[i]["op"] != "s_barrier":
            for p in preds[i]:
                if ins[p]["kind"] in ("dsr", "salu"): urgent[p] = True
    succs = [[] for _ in range(n)]
    for i in range(n):
        for p in preds[i]: succs[p].append(i)
    prio = [0] * n
    for i in range(n - 1, -1, -1):
        best = 0
        for s in succs[i]:
            w = lat.get((i, s), 0)
            nd, _ = need_between(ins[i], ins[s])
            w = max(w, 4 * nd + icost(ins[i]), 16 if ins[i]["kind"] == "mfma" and ins[s]["kind"] == "mfma" else 0)
            best = max(best, w + prio[s])
        prio[i] = max(best, icost(ins[i]))
    if seed is not None:
        import random
        rnd = random.Random(seed)
        for i in range(n):
            if ins[i]["kind"] != "mfma": prio[i] += rnd.randint(-40, 40)
    nops = [0]
    hist = [p for p in (parse(l) for l in pre) if p][-30:]
    done_at = {}
    left = [len(preds[i]) for i in range(n)]
    ready = [i for i in range(n) if left[i] == 0]
    out = []; t = 0; lastm = -100; cntout = [0]
    def deficit(I):
        d = 0; short = 0
        for A in reversed(hist):
            nd, _ = need_between(A, I)
            short = max(short, nd - d)
            d += A["n"] if A["kind"] == "nop" else 1
            if d >= 12: break
        return short
    def stall(i):
        s = 4 * max(0, deficit(ins[i]))
        for p in preds[i]:
            if (p, i) in lat: s = max(s, done_at[p] + lat[(p, i)] - t)
        if ins[i]["kind"] == "mfma" or "grp" in ins[i]: s = max(s, lastm + 16 - t)
        return max(s, 0)
    while ready:
        st = {i: stall(i) for i in ready}
        mf = [i for i in ready if ins[i]["kind"] == "mfma"]
        fl = [i for i in ready if ins[i]["kind"] != "mfma" and st[i] == 0]
        pick = None
        rec = [h for h in hist if h["kind"] in ("valu", "mfma")][-3:]
        if sum(1 for h in rec if h["op"].startswith("v_cndmask")) >= 2 and not any(h["kind"] == "mfma" for h in rec):
            alt = [i for i in fl if not ins[i]["op"].startswith("v_cndmask") and ins[i]["kind"] == "valu"]
            if alt or mf: fl = [i for i in fl if not ins[i]["op"].startswith("v_cndmask")]
        gp = [i for i in fl if "grp" in ins[i]]
        sts = [i for i in fl if ins[i]["kind"] == "vms"]
        if gp: pick = gp[0]
        elif mf and st[mf[0]] == 0: pick = mf[0]
        elif sts and (t == lastm + 8 or not mf): pick = sts[0]
        elif fl and pairing and mf and st[mf[0]] in (4, 8) and not any(urgent[i] for i in fl):
            room = st[mf[0]]
            key = lambda i: (prio[i], -i)
            R = [i for i in fl if ins[i]["kind"] == "dsr"]
            V4 = sorted([i for i in fl if ins[i]["kind"] != "dsr" and icost(ins[i]) == 4], key=key, reverse=True)
            E = sorted([i for i in fl if icost(ins[i]) == 8], key=key, reverse=True)
            rleft = any(ins[i]["kind"] == "dsr" for i in ready)
            slack = lambda i: prio[mf[0]] - prio[i]
            if room == 8:
                crit = [i for i in V4[:1] + E[:1] if slack(i) < pairing]
                if crit: pick = min(crit, key=slack)
                elif R and V4: pick = R[0]
                elif E and (rleft or not V4 or len(V4) < 2 or key(E[0]) > key(V4[0])): pick = E[0]
                elif V4: pick = V4[0]
                else: pick = R[0]
            else:
                if R: pick = R[0]
                elif V4: pick = V4[0]
                else: pick = mf[0]
        elif fl:
            room = st[mf[0]] if mf else 1000
            nst = [i for i in fl if ins[i]["kind"] != "vms"]
            if nst: fl = nst
            fit = [i for i in fl if icost(ins[i]) <= room]
            top = max(fl, key=lambda i: (urgent[i], prio[i], -i))
            if urgent[top] and (icost(ins[top]) <= room + 8): pick = top
            elif fit:
                pick = max(fit, key=lambda i: (urgent[i], prio[i], -i))
            elif mf and prio[mf[0]] > prio[top] + 40: pick = mf[0]
            else: pick = top
        else:
            if pairing and mf: pick = mf[0]
            else: pick = min(ready, key=lambda i: (st[i] + (6 if ins[i]["op"].startswith("v_cndmask") else 0), -prio[i]))
        t += st[pick]
        I = ins[pick]
        if I["kind"] == "mfma": lastm = t
        done_at[pick] = t
        t += icost(I)
        d = deficit(I)
        if d > 0: hist.append(parse("s_nop %d" % (d - 1))); nops[0] += 1
        hist.extend(I.get("grp", [I if not I.get("lg") else parse("s_nop 0")]))
        if len(hist) > 40: del hist[:10]
        out += I["line"].split("\n"); cntout[0] += 1
        ready.remove(pick)
        for s in succs[pick]:
            left[s] -= 1
            if left[s] == 0: ready.append(s)
    assert cntout[0] == n
    if sentinel:
        out.pop(); t = lastm; lastm -= 16
    from chk import regs
    res = []
    for k, l in enumerate(out):
        if l.startswith("@lg "):
            rr = set(sum([regs(x) for x in l.split()[1:]], []))
            cnt = 0
            for p in reversed(out[:k]):
                if p.startswith("ds_"):
                    if set(parse(p)["defs"]) & rr: break
                    cnt += 1
            l = "s_waitcnt lgkmcnt(%d)" % min(cnt, 15)
        res.append(l)
    out = res
    return out, max(t, lastm + 16) + (1000 * nops[0] if pairing else 0)
```

```python
import sys, struct, math
sys.path.insert(0, "work")
from chk2 import process
from sched import schedule

NAME = "standalone__mha_softmax__near_ridge_kernel"
variant = sys.argv[2] if len(sys.argv) > 2 else ""
opts = dict(kv.split("=") for kv in variant.split(",") if "=" in kv)
flags = set(kv for kv in variant.split(",") if kv and "=" not in kv)
STAMP = "stamp" in flags
def f2u(x): return struct.unpack("<I", struct.pack("<f", x))[0]
SCALE = f2u(128 ** -0.5 * math.log2(math.e))
THRESH = f2u(2.0 ** int(opts.get("thr", 24)))
NVS = int(opts.get("nvs", 2))

VSET = [int(c) for c in opts.get("vs", "012345"[:NVS])]
NVS = len(VSET)
V_LS = 0
V_OFF = 3
V_KA = 4
V_VA = 8
V_NEGM = 16
V_S = 40
V_P = 56
V_O = 64
V_SEL = V_O + 160; V_OFF2 = V_O + 170; V_QA = V_O + 172; V_D = V_O + 176
def bf16r(x):
    u = f2u(x); return (u + 0x7fff + ((u >> 16) & 1)) >> 16
def u2f(u): return struct.unpack("<f", struct.pack("<I", u))[0]
C_HI = bf16r(u2f(SCALE)); C_LO = bf16r(u2f(SCALE) - u2f(C_HI << 16))
A_Q = 0; A_K = 96; A_V = 160; A_L = 224; A_ONE = 248
S_QD, S_KD, S_VD, S_OD = 4, 8, 12, 16
S_W, S_KV, S_CNT, S_XM, S_SC, S_REDO = 20, 21, 22, 23, 24, 25
S_T0, S_T1, S_T2, S_QOFF = 26, 27, 28, 29
S_WS = 30; S_MSK = 32; S_SC2 = 34; S_ST = 36
LDS_V = 0x10000; LDS_X = 0x20000
NT = "".join(" " + x for x in opts.get("ld", "nt").split("+") if x)
STNT = "".join(" " + x for x in opts.get("st", "sc0+sc1+nt").split("+") if x)
STL = "".join(" " + x for x in opts.get("stl", opts.get("st", "sc0+sc1+nt")).split("+") if x)
def vr(b, n=4): return "v[%d:%d]" % (b, b + n - 1)
def ar(b, n=4): return "a[%d:%d]" % (b, b + n - 1)
def sr(b, n=4): return "s[%d:%d]" % (b, b + n - 1)
MF = "v_mfma_f32_16x16x32_bf16"
nstamp = [0]
def stamp(idx):
    if not STAMP: return []
    nstamp[0] = max(nstamp[0], idx + 1)
    return ["s_memtime %s" % sr(S_ST + 4 * idx, 2), "s_memrealtime %s" % sr(S_ST + 4 * idx + 2, 2), "s_waitcnt lgkmcnt(0)"]

def LS(i): return (0, 1, 2, 12, 13, 14)[i]
def qk(buf, t, par, first=False):
    r = []
    for T in range(2):
        d = vr(V_S + 8 * par + 4 * T)
        for ks in range(4):
            c = d if ks else ("0" if first else vr(V_NEGM + 4 * t))
            r.append("%s %s, %s, %s, %s" % (MF, d, ar(A_K + 32 * buf + 16 * T + 4 * ks), ar(A_Q + 16 * t + 4 * ks), c))
    if "qkil" in flags: r = [r[0], r[4], r[1], r[5], r[2], r[6], r[3], r[7]]
    return r
def pv(buf, t, par, first=False, msum=True, sumfirst=False):
    r = []
    P = vr(V_P + 4 * par)
    for dt in range(8):
        o = vr(V_O + 32 * t + 4 * dt)
        PP = P
        if "pvchain" in flags and not first:
            o = vr(V_O + 32 * t + 4 * (4 * buf + dt // 2)); PP = vr(V_P + 4 * ((par + dt) % 2))
        if "pvchainb" in flags and not first:
            o = vr(V_O + 32 * t + 4 * (4 * buf + dt // 2))
        if "pvalt" in flags and not first:
            PP = vr(V_P + 4 * ((par + dt) % 2))
        r.append("%s %s, %s, %s, %s" % (MF, o, ar(A_V + 32 * buf + 4 * dt), PP, "0" if first else o))
    if msum:
        l = ar(A_L + 4 * t)
        m = "%s %s, %s, %s, %s" % (MF, l, ar(A_ONE), P, "0" if first else l)
        r = [m] + r if (sumfirst or "sf" in flags) else r + [m]
    if "swp" in flags:
        def swp0(s):
            h, r = s.split(" ", 1); p = r.split(", "); return h + " " + ", ".join([p[0], p[2], p[1], p[3]])
        r = [swp0(x) for x in r]
    return r
def kreads(buf, sub):
    return ["ds_read_b128 %s, v%d offset:%d" % (ar(A_K + 32 * buf + 16 * T + 4 * ks), V_KA + ks, sub * 8192 + T * 4096) for T in range(2) for ks in range(4)]
VMAP = True
NVA = 4 if VMAP else 8
def vreads(buf, sub):
    if VMAP:
        return ["ds_read_b64_tr_b16 %s, v%d offset:%d" % (ar(A_V + 32 * buf + 4 * dt + 2 * T, 2), V_VA + (dt >> 1), sub * 8192 + T * 4096 + 8 * (dt & 1)) for dt in range(8) for T in range(2)]
    return ["ds_read_b64_tr_b16 %s, v%d offset:%d" % (ar(A_V + 32 * buf + 4 * dt + 2 * T, 2), V_VA + dt, sub * 8192 + T * 4096) for dt in range(8) for T in range(2)]
def dma2(srd, soff):
    return ["buffer_load_dwordx4 v%d, %s, s%d offen%s lds" % (V_OFF, sr(srd), soff, NT),
            "buffer_load_dwordx4 v%d, %s, s%d offen offset:2048%s lds" % (V_OFF, sr(srd), soff, NT)]
def kv_dma():
    return (["s_and_b32 m0, s%d, 0xffff" % S_KV] + dma2(S_KD, S_KV) + ["s_bitset1_b32 m0, 16"] + dma2(S_VD, S_KV)
            + ["s_add_u32 s%d, s%d, 8192" % (S_KV, S_KV)])
SOLO = "solo" in flags
def kv_full():
    r = []
    for h in range(2):
        r.append("s_and_b32 m0, s%d, 0xffff" % S_KV)
        r += ["buffer_load_dwordx4 v%d, %s, s%d offen offset:%d%s lds" % (V_OFF if p & 1 else V_OFF2, sr(S_KD), S_KV, 1024 * p, NT) for p in range(4)]
        r.append("s_bitset1_b32 m0, 16")
        r += ["buffer_load_dwordx4 v%d, %s, s%d offen offset:%d%s lds" % (V_OFF if p & 1 else V_OFF2, sr(S_VD), S_KV, 1024 * p, NT) for p in range(4)]
        r.append("s_add_u32 s%d, s%d, 4096" % (S_KV, S_KV))
    return r
def yw(NQ, back=1):
    if not SOLO: return "s_waitcnt vmcnt(%d)" % (4 * (DEP - back))
    return "s_waitcnt vmcnt(%d)" % (0 if NQ == 6 else 16 * (DEP - back))
def two_dma(srd, ldsbase):
    return (["s_add_u32 m0, s%d, 0x%x" % (S_T0, ldsbase)] + dma2(srd, S_T0) + ["s_add_u32 m0, s%d, 0x%x" % (S_T1, ldsbase)] + dma2(srd, S_T1))
def qlds(t):
    return (0x8000, 0xc000, 0x18000, 0x1c000, 0x20000, 0x24000)[t]
def q_dma(t):
    r = ["s_add_u32 m0, s%d, 0x%x" % (S_T2, qlds(t))]
    for p in range(4):
        r.append("buffer_load_dwordx4 v%d, %s, s%d offen offset:%d%s lds" % (V_OFF2 if p & 1 else V_OFF, sr(S_QD), S_QOFF, 1024 * p, NT))
    r.append("s_add_u32 s%d, s%d, 4096" % (S_QOFF, S_QOFF))
    return r
def q_read(t):
    r = []
    if t == 2: r += ["v_add_u32 v%d, 0x18000, v%d" % (V_QA + ks, V_QA + ks) for ks in range(4)]
    off = qlds(t) - (0x18000 if t >= 2 else 0)
    return r + ["ds_read_b128 %s, v%d offset:%d" % (ar(A_Q + 16 * t + 4 * ks), V_QA + ks, off) for ks in range(4)]
def sm_items(par):
    S = V_S + 8 * par; P = V_P + 4 * par
    ex = ["v_exp_f32 v%d, v%d" % (S + i, S + i) for i in range(8)]
    cv = ["v_cvt_pk_bf16_f32 v%d, v%d, v%d" % (P + i, S + 2 * i, S + 2 * i + 1) for i in range(4)]
    return ex, cv
def sm_seq(par):
    ex, cv = sm_items(par)
    return [ex[0], ex[1], ex[2], cv[0], ex[3], ex[4], cv[1], ex[5], ex[6], cv[2], ex[7], "@gap", cv[3]]
def cost(s):
    if s.startswith("v_exp") or s.startswith("v_rcp") or s.startswith("buffer_"): return 8
    return 4
def merge(a, b):
    ta = sum(map(cost, a)) or 1; tb = sum(map(cost, b)) or 1
    out = []; i = j = 0; ca = cb = 0
    while i < len(a) or j < len(b):
        if j >= len(b) or (i < len(a) and ca * tb <= cb * ta): out.append(a[i]); ca += cost(a[i]); i += 1
        else: out.append(b[j]); cb += cost(b[j]); j += 1
    return out
def weave(mf, fill, start=0, end=None):
    n = len(mf); end = n if end is None else end
    fill = [f for f in fill if f != "@gap"]
    tot = sum(map(cost, fill)); ng = max(end - start, 1)
    out = []; i = 0; used = 0
    for g in range(n):
        out.append(mf[g])
        if g < start or g >= end: continue
        per = max(8.0, tot / ng)
        lim = per * (g - start + 1)
        gap = 0
        while i < len(fill) and used + cost(fill[i]) <= lim + 0.01 and (gap + cost(fill[i]) <= max(8, math.ceil(per / 4) * 4 + 4)):
            out.append(fill[i]); used += cost(fill[i]); gap += cost(fill[i]); i += 1
        if g == end - 1:
            out += fill[i:]; i = len(fill)
    out += fill[i:]
    return out

def setup():
    o = []
    o.append("s_load_dwordx4 s[4:7], s[0:1], 0")
    o.append("s_load_dwordx4 s[12:15], s[0:1], 16")
    if STAMP:
        o.append("s_memtime %s" % sr(S_ST, 2)); o.append("s_memrealtime %s" % sr(S_ST + 2, 2)); nstamp[0] = 1
    o += ["s_cmpk_ge_u32 s2, 256", "s_cbranch_scc1 L_end"]
    if "nopf" not in flags: o += codepf(V_S, "v0")
    o.append("v_lshrrev_b32 v1, 6, v0")
    o.append("s_lshl_b32 s3, s2, 18")
    o.append("v_readfirstlane_b32 s%d, v1" % S_W)
    o.append("v_and_b32 v0, 63, v0")
    o.append("s_mul_i32 s33, s2, 94208")
    o.append("s_mov_b32 s10, 0x40000"); o.append("s_mov_b32 s11, 0x20000")
    o.append("s_mov_b32 s18, 94208"); o.append("s_mov_b32 s19, s11")
    o += offs()[2:]
    o.append("s_waitcnt lgkmcnt(0)")
    o.append("s_add_u32 s8, s6, s3"); o.append("s_addc_u32 s9, s7, 0")
    o.append("s_add_u32 s4, s4, s33"); o.append("s_addc_u32 s5, s5, 0")
    o.append("s_mov_b32 s6, s18"); o.append("s_mov_b32 s7, s19")
    o += first_dma()
    o.append("s_add_u32 s16, s14, s33"); o.append("s_addc_u32 s17, s15, 0")
    o.append("s_add_u32 s12, s12, s3"); o.append("s_addc_u32 s13, s13, 0")
    o.append("s_mov_b32 s14, s10"); o.append("s_mov_b32 s15, s11")
    o.append("s_mov_b32 s%d, 0" % S_REDO)
    o.append("v_mov_b32 v%d, 0x7f800000" % V_NEGM)
    for t in range(1, 6): o.append("v_mov_b32 v%d, v%d" % (V_NEGM + 4 * t, V_NEGM))
    if STAMP: o += ["s_load_dwordx2 %s, s[0:1], 40" % sr(S_WS, 2), "s_waitcnt lgkmcnt(0)"]
    return o
ORD = int(opts.get("ord", 1))
def first_dma():
    if ORD == 1: return q_dma(0) + two_dma(S_KD, 0) + q_dma(1)
    return q_dma(0) + two_dma(S_KD, 0)
def codepf(T, tid):
    o = ["s_getpc_b64 s[34:35]", "L_pc:"]
    o.append("v_mov_b32 v%d, 0" % (T + 1))
    o.append("v_lshlrev_b32 v%d, 7, %s" % (T + 6, tid))
    for k in range(int(opts.get("npf", 1))):
        if k: o.append("v_add_u32 v%d, 0x8000, v%d" % (T + 6, T + 6))
        o.append("v_min_u32 v%d, L_fin-L_pc, v%d" % (T, T + 6))
        o.append("v_lshl_add_u64 %s, %s, 0, s[34:35]" % (vr(T + 2 + 2 * k, 2), vr(T, 2)))
        o.append("global_load_dword v%d, %s, off" % (V_P + 2 + k, vr(T + 2 + 2 * k, 2)))
    return o
def offs():
    o = []
    o.append("v_mbcnt_lo_u32_b32 v0, -1, 0"); o.append("v_mbcnt_hi_u32_b32 v0, -1, v0")
    o.append("s_and_b32 s%d, s%d, 1" % (S_T0, S_W))
    o.append("s_lshl_b32 s%d, s%d, 5" % (S_XM, S_T0))
    o.append("v_lshrrev_b32 v1, 4, v0")
    o.append("v_lshlrev_b32 v%d, 2, v1" % V_OFF)
    o.append("v_xor_b32 v%d, v%d, v0" % (V_OFF, V_OFF))
    o.append("v_and_b32 v%d, 15, v%d" % (V_OFF, V_OFF))
    o.append("v_lshlrev_b32 v%d, 4, v%d" % (V_OFF, V_OFF))
    o.append("v_lshl_add_u32 v%d, v1, 8, v%d" % (V_OFF, V_OFF))
    o.append("v_xor_b32 v%d, s%d, v%d" % (V_OFF, S_XM, V_OFF))
    o.append("v_xor_b32 v%d, 32, v%d" % (V_OFF2, V_OFF))
    o.append("s_and_b32 s%d, s%d, 2" % (S_T1, S_W))
    o.append("s_lshl1_add_u32 s%d, s%d, s%d" % (S_T0, S_T1, S_T0))
    o.append("s_lshl_b32 s%d, s%d, 10" % (S_T0, S_T0))
    o.append("s_add_u32 s%d, s%d, 8192" % (S_T1, S_T0))
    o.append("s_add_u32 s%d, s%d, 16384" % (S_KV, S_T0))
    o.append("s_mul_i32 s%d, s%d, 24576" % (S_QOFF, S_W))
    o.append("s_lshl_b32 s%d, s%d, 12" % (S_T2, S_W))
    return o
def common():
    o = ["L_restart:"]
    if ORD != 1: o += two_dma(S_VD, LDS_V)
    t = V_S
    for i in (0, 1, 4, 5, 8, 9): o.append("v_mov_b32 v%d, 0" % (V_SEL + i))
    o.append("v_bfe_u32 v%d, v0, 1, 3" % t)
    o.append("v_lshlrev_b32 v%d, 1, v1" % (t + 1))
    o.append("v_and_b32 v%d, 1, v0" % (t + 2)); o.append("v_lshlrev_b32 v%d, 4, v%d" % (t + 2, t + 2))
    o.append("v_mov_b32 v%d, 0x%x" % (t + 3, C_HI)); o.append("v_mov_b32 v%d, 0x%x" % (t + 4, C_LO))
    o.append("v_cmp_eq_u32 vcc, v%d, v%d" % (t, t + 1))
    o.append("v_lshlrev_b32 v%d, v%d, v%d" % (t + 3, t + 2, t + 3)); o.append("v_lshlrev_b32 v%d, v%d, v%d" % (t + 4, t + 2, t + 4))
    o.append("v_or_b32 v%d, 1, v%d" % (t + 1, t + 1))
    o.append("v_cndmask_b32 v%d, 0, v%d, vcc" % (V_SEL + 2, t + 3)); o.append("v_cndmask_b32 v%d, 0, v%d, vcc" % (V_SEL + 6, t + 4))
    o.append("v_cmp_eq_u32 vcc, v%d, v%d" % (t, t + 1))
    o.append("v_cndmask_b32 v%d, 0, v%d, vcc" % (V_SEL + 3, t + 3)); o.append("v_cndmask_b32 v%d, 0, v%d, vcc" % (V_SEL + 7, t + 4))
    o.append("v_and_b32 v%d, 3, v0" % t); o.append("v_lshlrev_b32 v%d, 2, v%d" % (t, t))
    o.append("v_lshrrev_b32 v%d, 1, v0" % (t + 1)); o.append("v_and_b32 v%d, 2, v%d" % (t + 1, t + 1))
    o.append("v_or_b32 v%d, v%d, v%d" % (t, t, t + 1))
    o.append("v_xor_b32 v%d, v%d, v1" % (t, t))
    o.append("v_lshlrev_b32 v%d, 4, v%d" % (t, t))
    o.append("v_and_b32 v%d, 15, v0" % (t + 1))
    o.append("v_lshl_add_u32 v%d, v%d, 8, v%d" % (V_KA, t + 1, t))
    for ks in range(1, 4): o.append("v_xor_b32 v%d, %d, v%d" % (V_KA + ks, 64 * ks, V_KA))
    o.append("v_and_b32 v%d, 12, v0" % t)
    o.append("v_and_b32 v%d, 1, v1" % (t + 1)); o.append("v_lshlrev_b32 v%d, 1, v%d" % (t + 1, t + 1))
    o.append("v_or_b32 v%d, v%d, v%d" % (t, t, t + 1))
    o.append("v_lshlrev_b32 v%d, 4, v%d" % (t, t))
    o.append("v_and_b32 v%d, 3, v0" % (t + 1)); o.append("v_lshlrev_b32 v%d, %d, v%d" % (t + 1, 4 if VMAP else 3, t + 1))
    o.append("v_xor_b32 v%d, v%d, v%d" % (t, t, t + 1))
    o.append("v_lshrrev_b32 v%d, 2, v0" % (t + 1))
    o.append("v_lshl_add_u32 v%d, v%d, 8, v%d" % (t, t + 1, t))
    o.append("v_add_u32 v%d, 0x%x, v%d" % (V_VA, LDS_V, t))
    for dt in range(1, NVA): o.append("v_xor_b32 v%d, %d, v%d" % (V_VA + dt, (64 if VMAP else 32) * dt, V_VA))
    o.append("v_and_b32 v%d, 3, v0" % t); o.append("v_cmp_eq_u32 vcc, 0, v%d" % t)
    o.append("v_mov_b32 v%d, 0x3f803f80" % (t + 1))
    o.append("s_or_b32 s%d, s%d, s%d" % (S_XM, S_XM, S_T2))
    o.append("v_cndmask_b32 v%d, 0, v%d, vcc" % (t, t + 1))
    for i in range(4): o.append("v_accvgpr_write_b32 a%d, v%d" % (A_ONE + i, t))
    for ks in range(4): o.append("v_xor_b32 v%d, s%d, v%d" % (V_QA + ks, S_XM, V_KA + ks))
    o.append("v_and_b32 v%d, 14, v0" % t); o.append("v_lshlrev_b32 v%d, 8, v%d" % (t, t))
    o.append("v_and_b32 v%d, 1, v0" % (t + 1)); o.append("v_lshl_add_u32 v%d, v%d, 6, v%d" % (t, t + 1, t))
    o.append("v_lshl_add_u32 v%d, v1, 4, v%d" % (t, t))
    o.append("v_accvgpr_write_b32 a%d, v%d" % (A_SA, t))
    if "fine" in flags: o += stamp(13)
    o.append("s_waitcnt vmcnt(8)")
    if "fine" in flags: o += stamp(14)
    o += q_read(0)
    o += two_dma(S_VD, LDS_V) if ORD == 1 else q_dma(1)
    o += schedule(sum([pm(0, k) + pc(0, k) for k in range(4)], []))[0]
    o.append("s_waitcnt vmcnt(8)")
    o += q_dma(2)
    if ORD == 3: o += ["s_waitcnt vmcnt(8)"] + q_dma(3)
    o.append("s_barrier")
    o += kreads(0, 0) + kreads(1, 1)
    o += stamp(1)
    o.append("s_cmp_eq_u32 s%d, 3" % S_W)
    o.append("s_cbranch_scc1 L_pro5")
    return o

def pm(t, ks):
    q = ar(A_Q + 16 * t + 4 * ks); D = V_D + 8 * (ks % 2)
    r = []
    for h in range(2):
        d = vr(D + 4 * h)
        r.append("%s %s, %s, %s, 0" % (MF, d, vr(V_SEL + 2 - 2 * h), q))
        r.append("%s %s, %s, %s, %s" % (MF, d, vr(V_SEL + 6 - 2 * h), q, d))
    return r
def pc(t, ks):
    D = V_D + 8 * (ks % 2)
    r = ["v_cvt_pk_bf16_f32 v%d, v%d, v%d" % (D + 2 * i, D + 2 * i, D + 2 * i + 1) for i in range(4)]
    return r + ["v_accvgpr_write_b32 a%d, v%d" % (A_Q + 16 * t + 4 * ks + i, D + 2 * i) for i in range(4)]
def rowmax(t, par=0):
    S = V_S + 8 * par; m, m2 = V_LS, V_LS + 1; N = V_NEGM + 4 * t
    o = ["v_max3_f32 v%d, v%d, v%d, v%d" % (m, S, S + 1, S + 2),
         "v_max3_f32 v%d, v%d, v%d, v%d" % (m2, S + 3, S + 4, S + 5),
         "v_max3_f32 v%d, v%d, v%d, v%d" % (m, m, S + 6, S + 7),
         "v_max_f32 v%d, v%d, v%d" % (m, m, m2),
         "v_mov_b32 v%d, v%d" % (m2, m),
         "v_permlane32_swap_b32 v%d, v%d" % (m, m2),
         "v_max_f32 v%d, v%d, v%d" % (m, m, m2),
         "v_mov_b32 v%d, v%d" % (m2, m),
         "v_permlane16_swap_b32 v%d, v%d" % (m, m2),
         "v_max_f32 v%d, v%d, v%d" % (m, m, m2),
         "v_min_f32 v%d, -v%d, v%d" % (N, m, N)]
    o += ["v_mov_b32 v%d, v%d" % (N + i, N) for i in range(1, 4)]
    return o

def inter(a, b, k):
    out = []; b = list(b)
    for x in a:
        out.append(x); out += b[:k]; del b[:k]
    return out + b
def nogap(x): return [y for y in x if y != "@gap"]
DEP = int(opts.get("dep", 3))
YW = "s_waitcnt vmcnt(%d)" % (4 * (DEP - 1))
CPRO = int(opts.get("C", 2))
TAILN = int(opts.get("T", 2))

class VM:
    def __init__(self, names): self.q = list(names)
    def issue(self, names): self.q += names
    def wait(self, name):
        last = max(i for i, x in enumerate(self.q) if x == name)
        n = len(self.q) - 1 - last
        self.q = self.q[last + 1:]
        return "s_waitcnt vmcnt(%d)" % n

def pipeline(units, p0, hooks, first_qk_done, prev_pv, last_qk, sumfirst=False):
    o = []
    n = len(units)
    H = lambda *k: hooks.get(k, [])
    def QK(k):
        buf, t, first = units[k]
        return H("bQK", k) + qk(buf, t, (p0 + k) % 2, first=first) + H("aQK", k)
    def SM(k):
        buf, t, first = units[k]
        par = (p0 + k) % 2
        r = []
        if first:
            r += rowmax(t, par) + ["v_add_f32 v%d, v%d, v%d" % (V_S + 8 * par + i, V_S + 8 * par + i, V_NEGM + 4 * t) for i in range(8)]
        return r + nogap(sm_seq(par))
    def PV(k):
        buf, t, first = units[k]
        blk = pv(buf, t, (p0 + k) % 2, first=first, sumfirst=sumfirst)
        return H("bPV", k) + blk[:2] + H("mPV", k) + blk[2:] + H("aPV", k)
    if not first_qk_done: o += QK(0)
    o += prev_pv + SM(0)
    for k in range(n):
        if k + 1 < n: o += QK(k + 1)
        elif last_qk is not None:
            o += last_qk; break
        o += PV(k)
        if k + 1 < n: o += SM(k + 1)
    return o

def auto_loads(seq, init, hooks, off, sync, late=lambda s_, k: False):
    for kind, key, fn in (("K", "aQK", kreads), ("V", "aPV", vreads)):
        cur = dict(init); lastuse = {}
        for k, (s_, t, buf) in enumerate(seq):
            if cur.get(buf) != s_:
                at = lastuse.get(buf, -1)
                if late(s_, k):
                    assert at <= k - 2
                    hooks.setdefault(("bPV" if kind == "K" else "aPV", k - 2), []).extend(sync(kind, s_) + fn(buf, off(s_)))
                else: hooks.setdefault((key, at), []).extend(fn(buf, off(s_)))
                cur[buf] = s_
            lastuse[buf] = k

def prologue(NQ):
    C = CPRO
    NA = NQ if C == 2 else 3
    seq = [(s_, t, s_) for t in range(NA) for s_ in (0, 1)]
    if C == 4:
        seq += [(s_, t, s_ % 2) for s_ in (2, 3) for t in range(NA)]
        for t in range(NA, NQ):
            seq += [(s_, t, s_ % 2) for s_ in ((2, 3, 0, 1) if (t - NA) % 2 == 0 else (0, 1, 2, 3))]
    seen = set(); units = []; firstk = {}
    for k, (s_, t, buf) in enumerate(seq):
        units.append((buf, t, t not in seen))
        if t not in seen: firstk[t] = k
        seen.add(t)
    n = len(seq)
    if C == 2: pend = ["q%d" % t for t in range(3, NQ)] + ["kv2", "kv3", None]
    else: pend = ["kv2", "kv3"] + ["q%d" % t for t in range(3, NQ)] + ["kv4", "kv5", None]
    hooks = {}
    def add(key, lines): hooks.setdefault(key, []).extend(lines)
    LW = int(opts.get("lw", 1))
    for u in range(1, NQ):
        k = firstk[u]
        span = 2 if (C == 2 or u < NA) else int(opts.get("span", 3))
        k0 = k - span
        P = [pm(u, i) + pc(u, i) for i in range(4)]
        W = ["@wait q%d" % u] + (stamp(7 + u) if "fine" in flags else []) + q_read(u) + ["@next"]
        if u == 1 and ORD != 1:
            W1 = W; P1 = P
        elif LW == 0:
            add(("bQK", k0), W); add(("aQK", k0), P[0] + P[1]); add(("aQK", k0 + 1), P[2] + P[3])
        else:
            add(("aQK", k0), W); add(("bQK", k0 + 1), P[0])
            if span == 2: add(("aQK", k0 + 1), P[1] + P[2] + P[3])
            else: add(("aQK", k0 + 1), P[1]); add(("bQK", k0 + 2), P[2]); add(("aQK", k0 + 2), P[3])
    VS_ = ["@wait v01"] + (stamp(15) if "fine" in flags else []) + ["@next", "s_barrier"]
    if ORD == 1: add(("bPV", 0), VS_ + vreads(0, 0) + vreads(1, 1))
    elif ORD == 2:
        add((opts.get("vpos", "aQK"), int(opts.get("vk", 0))), VS_ + vreads(0, 0) + vreads(1, 1))
        add(("bPV", 0), W1); add(("aPV", 0), P1[0] + P1[1] + P1[2] + P1[3])
    else:
        add(("bQK", 0), vreads(0, 0) + vreads(1, 1))
        add(("bPV", 0), W1); add(("aPV", 0), P1[0] + P1[1] + P1[2] + P1[3])
        pend.pop(0)
    synced = set()
    def sync(kind, s_):
        if s_ < 2 or (kind, s_) in synced: return []
        synced.add(("K", s_)); synced.add(("V", s_))
        return ["@wait v%d" % s_, "@next", "s_barrier"]
    firsts = {}
    for k, x in enumerate(seq): firsts.setdefault(x[0], k)
    auto_loads(seq, {0: 0, 1: 1}, hooks, lambda s_: s_, sync, lambda s_, k: firsts[s_] == k)
    ux = max(k for k in range(n) if seq[k][2] == 0)
    add(("aQK", ux), stamp(2))
    add(("mPV", ux - 1), ["@wait k%d" % C, "s_barrier"] + kreads(0, C) + (["@touch"] if "touch" in flags else []) + ["@kv"] * (DEP - 2))
    add(("mPV", ux), ["@wait v%d" % C, "s_barrier", "s_waitcnt lgkmcnt(0)"])
    st = (C // 2) % 4
    fin = ["s_mov_b32 s%d, 0x%x" % (S_XM, st * 0x4000)]
    fin += ["v_xor_b32 v%d, s%d, v%d" % (V_KA + i, S_XM, V_KA + i) for i in range(4 + NVA)]
    fin += ["s_mov_b32 s%d, 0x%x" % (S_XM, 0xc000 if st % 2 else 0x4000)]
    nper = 32 - TAILN - C
    fin += ["s_mov_b32 s%d, %d" % (S_CNT, (nper + 1) // 2)]
    fin += ["v_mov_b32 v%d, 0" % LS(i) for i in range(NVS)]
    add(("aPV", ux), vreads(0, C) + ["@kv"] + fin)
    o = pipeline(units, 0, hooks, False, [], qk(0, 0, 0))
    vm = VM({1: ["q1"] * 4 + ["v01"] * 4 + ["q2"] * 4, 2: ["v01"] * 4 + ["q1"] * 4 + ["q2"] * 4, 3: ["q1"] * 4 + ["q2"] * 4 + ["q3"] * 4}[ORD])
    nkv = [2]
    def do_kv():
        i = nkv[0]; nkv[0] += 1
        vm.issue(["k%d" % i] * 2 + ["v%d" % i] * 2); return kv_dma()
    r = []
    for x in o:
        if x.startswith("@wait"): r.append(vm.wait(x.split()[1]))
        elif x == "@kv" and SOLO:
            if NQ == 5:
                if nkv[0] == C + 2: r.append("s_and_b32 s%d, s%d, 0xffffe000" % (S_KV, S_KV))
                vm.issue(["kv%d" % nkv[0]] * 16); r += kv_full()
            nkv[0] += 1
        elif x == "@kv": r += do_kv()
        elif x == "@touch":
            vm.issue(["touch"]); r += ["s_sub_u32 s%d, s%d, 1024" % (S_QOFF, S_QOFF), "buffer_load_dword a253, v%d, %s, s%d offen nt" % (V_OFF, sr(S_OD), S_QOFF)]
        elif x == "@next":
            nx = pend.pop(0)
            if nx is None: continue
            if nx[0] == "q": vm.issue([nx] * 4); r += q_dma(int(nx[1:]))
            else:
                assert int(nx[2:]) == nkv[0]; r += do_kv()
        else: r.append(x)
    assert not pend and nkv[0] == C + DEP + 1 and len([x for x in vm.q if x != "touch"]) == (4 * DEP if not SOLO else 4 if NQ == 6 else 4 + 16 * (DEP - 1)), (pend, nkv, vm.q)
    o, tc = schedule(r, dsgap=int(opts.get("dsp", 4)))
    print("prologue", NQ, "sched est", tc, "waits", " ".join(x[-3:] for x in o if "vmcnt" in x))
    o.append("s_nop 1")
    o += stamp(3)
    return o

def slot(mf, par, reads, misc, vsum=None):
    ex, cv = sm_items(par)
    n = len(mf)
    fill = [[] for _ in range(n)]
    S = V_S + 8 * par
    if vsum is None:
        epos = [1, 2, 4, 5, 8, 9, 12, 13] if n == 17 else [1, 2, 4, 5, 7, 8, 11, 12]
        cpos = [3, 6, 10, 14] if n == 17 else [3, 6, 9, 13]
        free = [g for g in range(n) if g not in epos and g not in cpos]
        rpos = sorted(cpos + [free[2], free[2]]) if len(reads) > 4 else cpos
        for e, g in zip(ex, epos): fill[g].append(e)
        for r, g in zip(reads, rpos): fill[g].append(r)
        for c, g in zip(cv, cpos): fill[g].append(c)
        if len(reads) > 4: free.remove(free[2])
    else:
        assert not reads
        ad = ["v_add_f32 v%d, v%d, v%d" % (vsum, vsum, S + i) for i in range(8)]
        o0 = 1
        seq = [[ex[0]], [ex[1]], [ex[2]], [cv[0], ad[0]], [ex[3]], [ad[1], ad[2]], [ex[4]], [cv[1], ad[3]], [ex[5]], [ex[6]], [cv[2], ad[4]], [ex[7]], [ad[5], ad[6]], [cv[3], ad[7]]]
        for i, s in enumerate(seq): fill[o0 + i] += s
        free = [0] + list(range(o0 + len(seq), n))
    assert len(misc) <= len(free), (len(misc), free)
    for grp, g in zip(misc, free):
        if grp: fill[g] = list(grp) + fill[g]
    out = []
    for i in range(n):
        out.append(mf[i]); out += fill[i]
    return out

def loop_body(NQ):
    ev, od = loop_halves(NQ)
    return ev + od if TAILN % 2 == 0 else od + ev
_LH = {}
def loop_halves(NQ):
    if (NQ == 6 and "auto" not in flags) or (NQ == 5 and not SOLO): return loop_halves_man(NQ)
    if NQ in _LH: return _LH[NQ]
    nvs = NVS if NQ == 6 else 0
    VS = VSET if NQ == 6 else []
    lasth = 1 if TAILN % 2 == 0 else 0
    ypos = float(opts.get("y", 2.0)) if NQ == 6 else float(opts.get("y5", 1.0))
    lst = []
    for half, s_ in enumerate((2, 3)):
        buf = s_ % 2
        par = lambda t: (s_ * NQ + t) % 2
        mfb = []
        o = []
        if half:
            o += ["v_xor_b32 v%d, s%d, v%d" % (V_KA + i, S_XM, V_KA + i) for i in range(4 + NVA)]
            o += ["s_xor_b32 s%d, s%d, 0x8000" % (S_XM, S_XM)]
        d = kv_dma(); kr = kreads(1 - buf, 1 - half); vrd = vreads(1 - buf, 1 - half)
        Y = [yw(NQ), "s_barrier"] + kr + d[0:2] + vrd[0:4] + d[2:4] + vrd[4:8] + d[4:5] + vrd[8:12] + d[5:7] + vrd[12:16]
        if SOLO and NQ == 6: Y = [yw(NQ), "s_barrier"] + kr + vrd
        if SOLO and NQ == 5: Y = [yw(NQ), "s_barrier"] + merge(kr + vrd, kv_full())
        if half == lasth: Y += ["s_sub_u32 s%d, s%d, 1" % (S_CNT, S_CNT), "s_cmp_lg_u32 s%d, 0" % S_CNT]
        for t in range(NQ):
            pvb = pv(buf, t - 1, par(t - 1), msum=(t - 1 not in VS)) if t > 0 else pv(1 - buf, NQ - 1, par(-1), msum=(NQ - 1 not in VS))
            qkb = qk(buf, t + 1, par(t + 1)) if t < NQ - 1 else qk(1 - buf, 0, par(NQ))
            sm = nogap(sm_seq(par(t)))
            if t in VS: sm += ["v_add_f32 v%d, v%d, v%d" % (LS(VS.index(t)), LS(VS.index(t)), V_S + 8 * par(t) + i) for i in range(8)]
            if t == 1: o.append("@lg " + ar(A_V + 32 * buf, 32))
            if t == NQ - 1: qkb = ["@lg " + ar(A_K + 32 * (1 - buf), 32)] + qkb
            blk = pvb + sm + qkb
            if int(ypos) == t:
                nth = int(round((ypos - t) * 16))
                idx = [i for i, x in enumerate(blk) if x.startswith("v_mfma")][nth]
                blk = blk[:idx + 1] + Y + blk[idx + 1:]
            o += blk
        lst.append(o)
    kw = dict(urg=False, dmac=8, dsgap=int(opts.get("dsg", 16)), mflat=int(opts.get("mfl", 0)))
    res = [[], []]
    if NQ == 5:
        for half in range(2):
            pm_ = [x for x in lst[1 - half] if x.startswith("v_mfma")]
            best = None
            for th in (24, 40, 60, 80, 100, 130, 160):
                for seed in [None] + list(range(4)):
                    r, tc = schedule(lst[half], pre=pm_[-8:], sentinel=pm_[0], urg=False, dmac=8, dsgap=int(opts.get("dsg5", 12)), pairing=th, seed=seed)
                    if best is None or tc < best[1]: best = (r, tc)
            r, tc = best
            o_, e_ = process([("p", pm_[-8:], False), ("b", r + [pm_[0]], True)])
            res[half] = o_["b"][:-1]
            print("loop half", NQ, half, "est", tc)
        _LH[NQ] = res
        return res
    for half in range(2):
        pm_ = [x for x in lst[1 - half] if x.startswith("v_mfma")]
        pre = []
        for x in pm_[-5:]: pre += [x, "s_nop 0"] if "optpre" in flags else [x]
        body = lst[half] + (["s_cbranch_scc1 L_loop%d" % NQ] if half == lasth else [])
        best = None
        for th in (24, 40, 60, 80, 100, 130, 160):
            for seed in [None] + list(range(int(opts.get("seeds", 6)))):
                r, tc = schedule(lst[half], pre=pre, pairing=th, seed=seed, sentinel=pm_[0], **kw)
                mi = [i for i, x in enumerate(r) if x.startswith("v_mfma")][-5:] + [len(r) + (1 if half == lasth else 0)]
                if "optpre" in flags and any(mi[j + 1] - mi[j] < 2 for j in range(5)): tc += 500
                if half == lasth and (len(r) - mi[4] > 2 or r[-1].startswith("v_exp") or r[-1].startswith("buffer")): tc += 4
                if best is None or tc < best[1]: best = (r, tc, th, seed)
        res[half] = best[0]
        print("loop half", NQ, half, "est", best[1:])
    _LH[NQ] = res
    return res
def loop_halves_man(NQ):
    res = []
    lasth = 1 if TAILN % 2 == 0 else 0
    par = lambda s, t: (s * NQ + t) % 2
    nvs = NVS if NQ == 6 else 0
    ysl = NQ - 4
    for half, s in enumerate((2, 3)):
        buf = s % 2
        o = []
        rd = kreads(1 - buf, 1 - half) + vreads(1 - buf, 1 - half)
        d = kv_dma() if not SOLO else []
        x = ["v_xor_b32 v%d, s%d, v%d" % (V_KA + i, S_XM, V_KA + i) for i in range(4 + NVA)]
        for t in range(NQ):
            pvb = pv(buf, t - 1, par(s, t - 1), msum=(t - 1 >= nvs)) if t > 0 else pv(1 - buf, NQ - 1, par(s - 1, NQ - 1))
            qkb = qk(buf, t + 1, par(s, t + 1)) if t < NQ - 1 else qk(1 - buf, 0, par(s + 1, 0))
            reads = []
            if t >= ysl: reads = rd[:6]; rd = rd[6:]
            misc = []
            wv = ["s_waitcnt lgkmcnt(0)"]
            if NQ == 6:
                if t == 0:
                    misc = [x[0:2], x[2:4], x[4:5] + wv] if half else [None, None, wv]
                    if nvs == 0: misc = [None, None] + misc
                if t == 1:
                    misc = [x[5:7], x[7:9]] if half else []
                if t == 2:
                    misc = [[yw(NQ), "s_barrier"], d[0:1] + (x[9:10] if half else []), x[10:12] if half else None]
                if t == 3: misc = [d[1:2], d[2:3], d[3:4] + (["s_xor_b32 s%d, s%d, 0x8000" % (S_XM, S_XM)] if half else [])]
                if t == 4: misc = [d[4:5], d[5:6], d[6:7]]
                if t == 5: misc = [None, ["s_waitcnt lgkmcnt(2)"]] + ([["s_sub_u32 s%d, s%d, 1" % (S_CNT, S_CNT)], ["s_cmp_lg_u32 s%d, 0" % S_CNT]] if half == lasth else [])
            else:
                if t == 0: misc = [x[0:2], x[2:4], x[4:6], x[6:8], x[8:9] + wv] if half else [None, None, None, None, wv]
                if t == 1: misc = [[yw(NQ), "s_barrier"], d[0:1] + (x[9:10] if half else []), x[10:12] if half else None]
                if t == 2: misc = [d[1:2], d[2:3], d[3:4] + (["s_xor_b32 s%d, s%d, 0x8000" % (S_XM, S_XM)] if half else [])]
                if t == 3: misc = [d[4:5], d[5:6], d[6:7]]
                if t == 4: misc = [None, ["s_waitcnt lgkmcnt(2)"]] + ([["s_sub_u32 s%d, s%d, 1" % (S_CNT, S_CNT)], ["s_cmp_lg_u32 s%d, 0" % S_CNT]] if half == lasth else [])
            o += slot(pvb + qkb, par(s, t), reads, misc, vsum=(LS(t) if t < nvs else None))
        assert not rd
        res.append(o)
    return res

SA, ACC = V_OFF, 15
A_SA = 252
def epi_setup():
    o = ["v_accvgpr_read_b32 v%d, a%d" % (SA, A_SA)]
    o.append("v_mov_b32 v%d, 0" % ACC)
    o.append("s_mul_i32 s%d, s%d, 24576" % (S_QOFF, S_W))
    o.append("s_mov_b32 vcc_lo, 0x55555555"); o.append("s_mov_b32 vcc_hi, 0x55555555")
    return o
def vsum_reduce(t):
    x = LS(VSET.index(t)); T = V_NEGM + 4 * t + 2
    return ["v_mov_b32 v%d, v%d" % (T, x), "v_permlane32_swap_b32 v%d, v%d" % (x, T), "v_add_f32 v%d, v%d, v%d" % (x, x, T),
            "v_mov_b32 v%d, v%d" % (T, x), "v_permlane16_swap_b32 v%d, v%d" % (x, T), "v_add_f32 v%d, v%d, v%d" % (x, x, T)]
DPPX = "quad_perm:[1,0,3,2] row_mask:0xf bank_mask:0xf"
def epi(t, vs, pk=False):
    E_L = V_NEGM + 4 * t
    h = ["v_accvgpr_read_b32 v%d, a%d" % (E_L, A_L + 4 * t)]
    if vs: h.append("v_add_f32 v%d, v%d, v%d" % (E_L, E_L, LS(VSET.index(t))))
    h.append("v_add_f32 v%d, v%d, v%d" % (ACC, ACC, E_L))
    h.append("v_rcp_f32 v%d, v%d" % (E_L, E_L))
    m = []; sw = []; x = []
    pol = STL if t == LASTT[0] else STNT
    for s in range(4):
        b = V_O + 32 * t + 8 * s
        g = []
        if pk:
            for i in range(0, 8, 2): g.append("v_pk_mul_f32 %s, %s, %s op_sel_hi:[1,0]" % (vr(b + i, 2), vr(b + i, 2), vr(E_L, 2)))
        else:
            for i in range(8): g.append("v_mul_f32 v%d, v%d, v%d" % (b + i, b + i, E_L))
        for i in range(4): g.append("v_cvt_pk_bf16_f32 v%d, v%d, v%d" % (b + i, b + 2 * i, b + 2 * i + 1))
        m.append(g)
        sw.append([] if VMAP else ["v_permlane16_swap_b32 v%d, v%d" % (b, b + 2), "v_permlane16_swap_b32 v%d, v%d" % (b + 1, b + 3)])
    for p in range(2):
        X = V_O + 32 * t + 16 * p; Y = X + 8
        A = ["v_cndmask_b32_dpp v%d, v%d, v%d, vcc %s" % (X + 4 + i, Y + i, X + i, DPPX) for i in (0, 2, 1, 3)] + ["s_not_b64 vcc, vcc"]
        B = ["v_cndmask_b32_dpp v%d, v%d, v%d, vcc %s" % (Y + i, X + i, Y + i, DPPX) for i in range(4)] + ["s_not_b64 vcc, vcc"]
        if "nost" not in flags:
            A.append("buffer_store_dwordx4 %s, v%d, %s, s%d offen offset:%d%s" % (vr(X + 4), SA, sr(S_OD), S_QOFF, 128 * p, pol))
            B.append("buffer_store_dwordx4 %s, v%d, %s, s%d offen offset:%d%s" % (vr(Y), SA, sr(S_OD), S_QOFF, 128 * p + 256, pol))
        if p == 1: B.append("s_add_u32 s%d, s%d, 4096" % (S_QOFF, S_QOFF))
        x.append((A, B))
    return h, m, sw, x
LASTT = [None]
def epi_body(m, sw, x):
    k = 2
    return (m[1][:k] + sw[0] + m[1][k:] + m[2][:k] + sw[1] + m[2][k:k + 2] + x[0][0] + m[2][k + 2:] + m[3][:k] + sw[2] + x[0][1][:3] + m[3][k:]
            + x[0][1][3:] + sw[3]), x[1][0] + x[1][1]
def epi_flat(t, vs):
    h, m, sw, x = epi(t, vs)
    body, fin = epi_body(m, sw, x)
    return h + m[0] + body, fin

def tail(NQ):
    LASTT[0] = NQ - 1
    nvs = NVS if NQ == 6 else 0
    if TAILN == 2:
        seq = [(30, 0, 0), (30, 1, 0), (31, 0, 1), (31, 1, 1)] + [(30 + b, t, b) for t in range(2, NQ) for b in (0, 1)]
        init = {0: 30}; off = lambda s_: s_ - 30; s0 = 30; w = 4 * (DEP - 1)
    else:
        e = max(2, NQ - int(opts.get("post", 3)))
        seq = [(29, t, 1) for t in range(e)] + [(30, 0, 0), (30, 1, 0), (31, 0, 1), (31, 1, 1)]
        seq += [(30 + b, t, b) for t in range(2, e) for b in (0, 1)]
        seq += [(30, t, 0) for t in range(e, NQ)]
        seq += [x for t in range(e, NQ) for x in ((31, t, 1), (29, t, 0))]
        init = {1: 29}; off = lambda s_: s_ - 28; s0 = 29; w = 4 * (DEP - 2)
    n = len(seq)
    p0 = (s0 * NQ) % 2
    hooks = {}
    def add(key, lines): hooks.setdefault(key, []).extend(lines)
    auto_loads(seq, init, hooks, off, lambda kind, s_: [])
    ppv = pv(1 - s0 % 2, NQ - 1, 1 - p0)
    pre = ppv[:1] + [yw(NQ, TAILN - 1), "s_barrier"] + hooks.pop(("aQK", -1)) + ppv[1:] + hooks.pop(("aPV", -1))
    pre += epi_setup()
    DL = int(opts.get("dl", 2))
    lastk = {t: k for k, (s_, t, b) in enumerate(seq)}
    dead = {}; prevd = -1
    for t in sorted(lastk, key=lambda t: lastk[t]):
        k = lastk[t]
        isv = NQ == 6 and t in VSET
        if isv: add(("aQK", k), vsum_reduce(t))
        h, m, sw, x = epi(t, isv, pk=True)
        if k == n - 1: m[0] = epi(t, isv)[1][0]
        else:
            h = h + ["\n".join(sum([g[:4] for g in m], []))]
            m = [g[4:] for g in m]
        e_ = h + m[0] + sw[0] + m[1] + sw[1] + x[0][0] + x[0][1] + m[2] + sw[2] + m[3] + sw[3] + x[1][0] + x[1][1]
        e_[-1] += " ; tag=e%d" % t
        add(("aPV", k), e_)
        d = max(k + DL, prevd + 1); prevd = d
        if d < n - 1: add(("bPV", d), ["@after e%d" % t])
    o = pipeline([(b, t, False) for (s_, t, b) in seq], p0, hooks, True, pre, None, sumfirst=True)
    r = []; pendtag = None
    for x in o:
        if x.startswith("@after"): pendtag = x.split()[1]
        else:
            r.append(x + (" ; after=" + pendtag if pendtag else "")); pendtag = None
    o, tc = schedule(r, pre=loop_body(NQ), dsgap=int(opts.get("dst", 16)))
    print("tail", NQ, "sched est", tc)
    o = stamp(4) + o + stamp(5)
    o += stamp(6)
    o.append("s_lshl_b32 s%d, s%d, 13" % (S_T0, S_W)); o.append("s_add_u32 s%d, s%d, 0x%x" % (S_T0, S_T0, LDS_X))
    o.append("s_mov_b32 s%d, 0x%x" % (S_T1, THRESH))
    o.append("v_cmp_ngt_f32 vcc, s%d, v%d" % (S_T1, ACC))
    o.append("s_cmp_lg_u64 vcc, 0")
    o.append("s_cselect_b32 s%d, 1, 0" % S_T1)
    o.append("v_mbcnt_lo_u32_b32 v4, -1, 0"); o.append("v_mbcnt_hi_u32_b32 v4, -1, v4")
    o.append("v_mov_b32 v5, s%d" % S_T1)
    o.append("v_mov_b32 v6, s%d" % S_T0)
    o.append("ds_write_b32 v6, v5 offset:6144")
    o.append("v_and_b32 v6, 3, v4")
    o.append("v_lshlrev_b32 v6, 13, v6")
    o.append("v_add_u32 v6, 0x%x, v6" % LDS_X)
    o.append("s_waitcnt lgkmcnt(0)")
    o.append("s_barrier")
    o.append("ds_read_b32 v5, v6 offset:6144")
    o.append("s_waitcnt lgkmcnt(0)")
    o.append("v_cmp_ne_u32 vcc, 0, v5")
    o.append("s_cmp_lg_u32 s%d, 0" % S_REDO)
    o.append("s_cbranch_scc1 L_fin")
    o.append("s_branch L_fin" if "noredo" in flags else "s_cbranch_vccz L_fin")
    return o

def redo(NQ):
    o = ["s_waitcnt vmcnt(0)", "s_barrier", "s_mov_b32 s%d, 1" % S_REDO]
    M = V_O + 64; AD = V_KA + 2
    o.append("v_and_b32 v%d, 15, v4" % AD); o.append("v_lshlrev_b32 v%d, 8, v%d" % (AD, AD))
    o.append("v_lshrrev_b32 v5, 4, v4"); o.append("v_lshl_add_u32 v%d, v5, 4, v%d" % (AD, AD))
    for t in range(NQ): o.append("v_mov_b32 v%d, 0xff800000" % (M + t))
    o.append("s_mov_b32 s%d, 0" % S_T0)
    body = []
    for ks in range(4):
        body.append("buffer_load_dwordx4 %s, v%d, %s, s%d offen offset:%d" % (ar(A_K + 4 * ks), AD, sr(S_KD), S_T0, 64 * ks))
    body.append("s_waitcnt vmcnt(0)")
    for t in range(NQ):
        d = vr(V_O + 4 * t)
        for ks in range(4):
            body.append("%s %s, %s, %s, %s" % (MF, d, ar(A_K + 4 * ks), ar(A_Q + 16 * t + 4 * ks), d if ks else "0"))
    body.append("s_nop 7")
    for t in range(NQ):
        b = V_O + 4 * t
        body.append("v_max3_f32 v%d, v%d, v%d, v%d" % (M + t, M + t, b, b + 1))
        body.append("v_max3_f32 v%d, v%d, v%d, v%d" % (M + t, M + t, b + 2, b + 3))
    body.append("s_add_u32 s%d, s%d, 4096" % (S_T0, S_T0))
    body.append("s_cmp_lt_u32 s%d, 0x40000" % S_T0)
    body.append("s_cbranch_scc1 L_max%d" % NQ)
    post = []
    for t in range(NQ):
        m, m2 = M + t, 5
        post += ["v_mov_b32 v%d, v%d" % (m2, m), "v_permlane32_swap_b32 v%d, v%d" % (m, m2), "v_max_f32 v%d, v%d, v%d" % (m, m, m2),
                 "v_mov_b32 v%d, v%d" % (m2, m), "v_permlane16_swap_b32 v%d, v%d" % (m, m2), "v_max_f32 v%d, v%d, v%d" % (m, m, m2),
                 "v_sub_f32 v%d, 0, v%d" % (V_NEGM + 4 * t, m)]
    post += offs() + first_dma()
    post.append("s_branch L_restart")
    return o, body, post

def fin():
    o = ["L_fin:"]
    if STAMP:
        o.append("s_waitcnt vmcnt(0)")
        o += stamp(7)
        if "pad" in opts:
            o.append("s_mov_b32 s80, %d" % (int(opts["pad"]) * 100))
            if "pb" in opts:
                cyc = 0 if "pcyc" in flags else 2
                o.append("s_sub_u32 s81, s%d, s%d" % (S_ST + 4 * int(opts["pb"]) + cyc, S_ST + 4 * int(opts.get("pa", 0)) + cyc))
                if "pcyc" in flags: o.append("s_lshr_b32 s81, s81, 4")
                o.append("s_add_u32 s80, s80, s81")
            o.append("L_spin:")
            o.append("s_memrealtime s[82:83]"); o.append("s_waitcnt lgkmcnt(0)")
            o.append("s_sub_u32 s81, s82, s%d" % (S_ST + 2))
            o.append("s_cmp_lt_u32 s81, s80"); o.append("s_cbranch_scc1 L_spin")
            o.append("s_branch L_end")
        w = int(opts.get("sw", 0))
        o.append("s_cmp_lg_u32 s%d, %d" % (S_W, w)); o.append("s_cbranch_scc1 L_end")
        o.append("s_lshl_b32 s3, s2, 9")
        o.append("s_add_u32 s%d, s%d, s3" % (S_WS, S_WS)); o.append("s_addc_u32 s%d, s%d, 0" % (S_WS + 1, S_WS + 1))
        n = nstamp[0]
        for i in range(4 * n): o.append("v_mov_b32 v%d, s%d" % (64 + i, S_ST + i))
        o.append("v_mov_b32 v1, 0"); o.append("s_mov_b64 exec, 1")
        for i in range(n): o.append("global_store_dwordx4 v1, %s, %s offset:%d" % (vr(64 + 4 * i), sr(S_WS, 2), 16 * i))
    o.append("L_end:"); o.append("s_endpgm")
    return o

su = setup(); cm = common()
code = None; errs = []
for NQ in (6, 5):
    ev, od = loop_halves(NQ)
    br = ["s_cbranch_scc1 L_loop%d" % NQ]
    r1, rb, r2 = redo(NQ)
    pro = prologue(NQ)
    if TAILN % 2 == 0:
        lp = [("ev", ev, False), ("od", od + br, False)] * 2
    else:
        pro = pro + ["s_branch L_even%d" % NQ]
        lp = [("ev", ev + br, False), ("od", od, False)] * 2 + [("ev", ev + br, False)]
    segs = [("su", su, True), ("cm", cm, True), ("pro", pro, True)] + lp + [
            ("tail", tail(NQ), True), ("r1", r1, True), ("rb", rb, False), ("rb", rb, False), ("r2", r2, True), ("cm", cm, True)]
    out, e = process(segs)
    errs += ["NQ%d: %s" % (NQ, x) for x in e]
    if code is None: code = out["su"] + out["cm"]
    else: code.append("L_pro5:")
    code += out["pro"] + [".p2align 6", "L_loop%d:" % NQ]
    code += (out["ev"] + out["od"]) if TAILN % 2 == 0 else (out["od"] + ["L_even%d:" % NQ] + out["ev"])
    code += out["tail"] + out["r1"] + ["L_max%d:" % NQ] + out["rb"] + out["r2"]
code += fin()
if "force" not in flags:
    for e in errs[:10]: print("ERR", e)
    if errs: sys.exit(1)
hdr = open("standalone__mha_softmax__near_ridge.s.ref").read().split("; Override launch")[0]
L = hdr.rstrip("\n").split("\n")
L.append("; @launch grid=(256,1,1) block=(256,1,1) lds=163840")
if STAMP: L.append("; nstamps %d" % nstamp[0]); L.append("; variant: " + variant)
L += ['.amdgcn_target "amdgcn-amd-amdhsa--gfx950"', ".text", ".globl " + NAME, ".p2align 8", ".type %s,@function" % NAME, NAME + ":"]
for c in code: L.append(c if c.endswith(":") or c.startswith(".") else "    " + c)
L += ['.section .rodata,"a"', ".p2align 6", ".amdhsa_kernel " + NAME,
      "  .amdhsa_next_free_vgpr 512", "  .amdhsa_next_free_sgpr 102", "  .amdhsa_accum_offset 256",
      "  .amdhsa_group_segment_fixed_size 0", "  .amdhsa_kernarg_size 48", "  .amdhsa_user_sgpr_count 2",
      "  .amdhsa_user_sgpr_kernarg_segment_ptr 1", "  .amdhsa_system_sgpr_workgroup_id_x 1", ".end_amdhsa_kernel"]
open(sys.argv[1], "w").write("\n".join(L) + "\n")
```

```python
import sys, struct, math
sys.path.insert(0, "work")
from chk2 import process
from sched import schedule

NAME = "standalone__mha_softmax__near_ridge_kernel"
variant = sys.argv[2] if len(sys.argv) > 2 else ""
opts = dict(kv.split("=") for kv in variant.split(",") if "=" in kv)
flags = set(kv for kv in variant.split(",") if kv and "=" not in kv)
STAMP = "stamp" in flags
def f2u(x): return struct.unpack("<I", struct.pack("<f", x))[0]
SCALE = f2u(128 ** -0.5 * math.log2(math.e))
THRESH = f2u(2.0 ** int(opts.get("thr", 24)))
NVS = int(opts.get("nvs", 2))

VSET = [int(c) for c in opts.get("vs", "012345"[:NVS])]
NVS = len(VSET)
V_LS = 0
V_OFF = 3
V_KA = 4
V_VA = 8
V_NEGM = 16
V_S = 40
V_P = 56
V_O = 64
V_SEL = V_O + 160; V_OFF2 = V_O + 170; V_QA = V_O + 172; V_D = V_O + 176
def bf16r(x):
    u = f2u(x); return (u + 0x7fff + ((u >> 16) & 1)) >> 16
def u2f(u): return struct.unpack("<f", struct.pack("<I", u))[0]
C_HI = bf16r(u2f(SCALE)); C_LO = bf16r(u2f(SCALE) - u2f(C_HI << 16))
A_Q = 0; A_K = 96; A_V = 160; A_L = 224; A_ONE = 248
S_QD, S_KD, S_VD, S_OD = 4, 8, 12, 16
S_W, S_KV, S_CNT, S_XM, S_SC, S_REDO = 20, 21, 22, 23, 24, 25
S_T0, S_T1, S_T2, S_QOFF = 26, 27, 28, 29
S_ROT = 24; S_SRC = 32; S_SRC2 = 33; S_WS = 30; S_MSK = 32; S_SC2 = 34; S_ST = 36
LDS_V = 0x10000; LDS_X = 0x20000
NT = "".join(" " + x for x in opts.get("ld", "nt").split("+") if x)
STNT = "".join(" " + x for x in opts.get("st", "sc0+sc1+nt").split("+") if x)
STL = "".join(" " + x for x in opts.get("stl", opts.get("st", "sc0+sc1+nt")).split("+") if x)
def vr(b, n=4): return "v[%d:%d]" % (b, b + n - 1)
def ar(b, n=4): return "a[%d:%d]" % (b, b + n - 1)
def sr(b, n=4): return "s[%d:%d]" % (b, b + n - 1)
MF = "v_mfma_f32_16x16x32_bf16"
nstamp = [0]
def stamp(idx):
    if not STAMP: return []
    nstamp[0] = max(nstamp[0], idx + 1)
    return ["s_memtime %s" % sr(S_ST + 4 * idx, 2), "s_memrealtime %s" % sr(S_ST + 4 * idx + 2, 2), "s_waitcnt lgkmcnt(0)"]

def LS(i): return (0, 1, 2, 12, 13, 14)[i]
def qk(buf, t, par, first=False):
    r = []
    for T in range(2):
        d = vr(V_S + 8 * par + 4 * T)
        for ks in range(4):
            c = d if ks else ("0" if first else vr(V_NEGM + 4 * t))
            r.append("%s %s, %s, %s, %s" % (MF, d, ar(A_K + 32 * buf + 16 * T + 4 * ks), ar(A_Q + 16 * t + 4 * ks), c))
    if "qkil" in flags: r = [r[0], r[4], r[1], r[5], r[2], r[6], r[3], r[7]]
    return r
def pv(buf, t, par, first=False, msum=True, sumfirst=False):
    r = []
    P = vr(V_P + 4 * par)
    for dt in range(8):
        o = vr(V_O + 32 * t + 4 * dt)
        PP = P
        if "pvchain" in flags and not first:
            o = vr(V_O + 32 * t + 4 * (4 * buf + dt // 2)); PP = vr(V_P + 4 * ((par + dt) % 2))
        if "pvchainb" in flags and not first:
            o = vr(V_O + 32 * t + 4 * (4 * buf + dt // 2))
        if "pvalt" in flags and not first:
            PP = vr(V_P + 4 * ((par + dt) % 2))
        r.append("%s %s, %s, %s, %s" % (MF, o, ar(A_V + 32 * buf + 4 * dt), PP, "0" if first else o))
    if msum:
        l = ar(A_L + 4 * t)
        m = "%s %s, %s, %s, %s" % (MF, l, ar(A_ONE), P, "0" if first else l)
        r = [m] + r if (sumfirst or "sf" in flags) else r + [m]
    if "swp" in flags:
        def swp0(s):
            h, r = s.split(" ", 1); p = r.split(", "); return h + " " + ", ".join([p[0], p[2], p[1], p[3]])
        r = [swp0(x) for x in r]
    return r
def kreads(buf, sub):
    return ["ds_read_b128 %s, v%d offset:%d" % (ar(A_K + 32 * buf + 16 * T + 4 * ks), V_KA + ks, sub * 8192 + T * 4096) for T in range(2) for ks in range(4)]
VMAP = True
NVA = 4 if VMAP else 8
def vreads(buf, sub):
    if VMAP:
        return ["ds_read_b64_tr_b16 %s, v%d offset:%d" % (ar(A_V + 32 * buf + 4 * dt + 2 * T, 2), V_VA + (dt >> 1), sub * 8192 + T * 4096 + 8 * (dt & 1)) for dt in range(8) for T in range(2)]
    return ["ds_read_b64_tr_b16 %s, v%d offset:%d" % (ar(A_V + 32 * buf + 4 * dt + 2 * T, 2), V_VA + dt, sub * 8192 + T * 4096) for dt in range(8) for T in range(2)]
def dma2(srd, soff):
    return ["buffer_load_dwordx4 v%d, %s, s%d offen%s lds" % (V_OFF, sr(srd), soff, NT),
            "buffer_load_dwordx4 v%d, %s, s%d offen offset:2048%s lds" % (V_OFF, sr(srd), soff, NT)]
ROT = "rot" in opts
def src_of(end=True):
    if not ROT: return [], S_KV
    r = ["s_add_u32 s%d, s%d, s%d" % (S_SRC, S_KV, S_ROT), "s_and_b32 s%d, s%d, 0x3ffff" % (S_SRC, S_SRC)]
    if end: r += ["s_and_b32 s%d, s%d, 0x40000" % (S_SRC2, S_KV), "s_or_b32 s%d, s%d, s%d" % (S_SRC, S_SRC, S_SRC2)]
    return r, S_SRC
def kv_dma():
    pre, so = src_of(not SOLO)
    return (pre + ["s_and_b32 m0, s%d, 0xffff" % S_KV] + dma2(S_KD, so) + ["s_bitset1_b32 m0, 16"] + dma2(S_VD, so)
            + ["s_add_u32 s%d, s%d, 8192" % (S_KV, S_KV)])
SOLO = "solo" in flags
def kv_full():
    r, so = src_of()
    for h in range(2):
        r.append("s_and_b32 m0, s%d, 0xffff" % S_KV)
        r += ["buffer_load_dwordx4 v%d, %s, s%d offen offset:%d%s lds" % (V_OFF if p & 1 else V_OFF2, sr(S_KD), so, 1024 * p, NT) for p in range(4)]
        r.append("s_bitset1_b32 m0, 16")
        r += ["buffer_load_dwordx4 v%d, %s, s%d offen offset:%d%s lds" % (V_OFF if p & 1 else V_OFF2, sr(S_VD), so, 1024 * p, NT) for p in range(4)]
        r.append("s_add_u32 s%d, s%d, 4096" % (S_KV, S_KV))
        if ROT and h == 0: r.append("s_add_u32 s%d, s%d, 4096" % (so, so))
    return r
def yw(NQ, back=1):
    if not SOLO: return "s_waitcnt vmcnt(%d)" % (4 * (DEP - back))
    return "s_waitcnt vmcnt(%d)" % (0 if NQ == 6 else 16 * (DEP - back))
def two_dma(srd, ldsbase):
    if ROT:
        return (["s_add_u32 m0, s%d, 0x%x" % (S_T0, ldsbase), "s_add_u32 s%d, s%d, s%d" % (S_SRC, S_T0, S_ROT)] + dma2(srd, S_SRC)
                + ["s_add_u32 m0, s%d, 0x%x" % (S_T1, ldsbase), "s_add_u32 s%d, s%d, s%d" % (S_SRC, S_T1, S_ROT)] + dma2(srd, S_SRC))
    return (["s_add_u32 m0, s%d, 0x%x" % (S_T0, ldsbase)] + dma2(srd, S_T0) + ["s_add_u32 m0, s%d, 0x%x" % (S_T1, ldsbase)] + dma2(srd, S_T1))
EARLY = int(opts.get("early", 0))
def qlds(t):
    if EARLY: return (0x8000, 0x18000, 0x1c000, 0x20000, 0x24000, 0xc000)[t]
    return (0x8000, 0xc000, 0x18000, 0x1c000, 0x20000, 0x24000)[t]
def q_dma(t):
    r = ["s_add_u32 m0, s%d, 0x%x" % (S_T2, qlds(t))]
    for p in range(4):
        r.append("buffer_load_dwordx4 v%d, %s, s%d offen offset:%d%s lds" % (V_OFF2 if p & 1 else V_OFF, sr(S_QD), S_QOFF, 1024 * p, NT))
    r.append("s_add_u32 s%d, s%d, 4096" % (S_QOFF, S_QOFF))
    return r
def q_read(t):
    r = []
    if t == (1 if EARLY else 2): r += ["v_add_u32 v%d, 0x18000, v%d" % (V_QA + ks, V_QA + ks) for ks in range(4)]
    if EARLY and t == 5: r += ["v_subrev_u32 v%d, 0x18000, v%d" % (V_QA + ks, V_QA + ks) for ks in range(4)]
    off = qlds(t) - (0x18000 if qlds(t) >= 0x18000 else 0)
    return r + ["ds_read_b128 %s, v%d offset:%d" % (ar(A_Q + 16 * t + 4 * ks), V_QA + ks, off) for ks in range(4)]
def sm_items(par):
    S = V_S + 8 * par; P = V_P + 4 * par
    ex = ["v_exp_f32 v%d, v%d" % (S + i, S + i) for i in range(8)]
    cv = ["v_cvt_pk_bf16_f32 v%d, v%d, v%d" % (P + i, S + 2 * i, S + 2 * i + 1) for i in range(4)]
    return ex, cv
def sm_seq(par):
    ex, cv = sm_items(par)
    return [ex[0], ex[1], ex[2], cv[0], ex[3], ex[4], cv[1], ex[5], ex[6], cv[2], ex[7], "@gap", cv[3]]
def cost(s):
    if s.startswith("v_exp") or s.startswith("v_rcp") or s.startswith("buffer_"): return 8
    return 4
def merge(a, b):
    ta = sum(map(cost, a)) or 1; tb = sum(map(cost, b)) or 1
    out = []; i = j = 0; ca = cb = 0
    while i < len(a) or j < len(b):
        if j >= len(b) or (i < len(a) and ca * tb <= cb * ta): out.append(a[i]); ca += cost(a[i]); i += 1
        else: out.append(b[j]); cb += cost(b[j]); j += 1
    return out
def weave(mf, fill, start=0, end=None):
    n = len(mf); end = n if end is None else end
    fill = [f for f in fill if f != "@gap"]
    tot = sum(map(cost, fill)); ng = max(end - start, 1)
    out = []; i = 0; used = 0
    for g in range(n):
        out.append(mf[g])
        if g < start or g >= end: continue
        per = max(8.0, tot / ng)
        lim = per * (g - start + 1)
        gap = 0
        while i < len(fill) and used + cost(fill[i]) <= lim + 0.01 and (gap + cost(fill[i]) <= max(8, math.ceil(per / 4) * 4 + 4)):
            out.append(fill[i]); used += cost(fill[i]); gap += cost(fill[i]); i += 1
        if g == end - 1:
            out += fill[i:]; i = len(fill)
    out += fill[i:]
    return out

def setup():
    o = []
    o.append("s_load_dwordx4 s[4:7], s[0:1], 0")
    o.append("s_load_dwordx4 s[12:15], s[0:1], 16")
    if STAMP:
        o.append("s_memtime %s" % sr(S_ST, 2)); o.append("s_memrealtime %s" % sr(S_ST + 2, 2)); nstamp[0] = 1
    o += ["s_cmpk_ge_u32 s2, 256", "s_cbranch_scc1 L_end"]
    if "nopf" not in flags: o += codepf(V_S, "v0")
    HD = "s2"
    if "remap" in flags:
        o += ["s_and_b32 s3, s2, 7", "s_lshr_b32 s33, s2, 3", "s_lshl_b32 s3, s3, 5", "s_or_b32 s33, s33, s3"]; HD = "s33"
    o.append("v_lshrrev_b32 v1, 6, v0")
    o.append("s_lshl_b32 s3, %s, 18" % HD)
    o.append("v_readfirstlane_b32 s%d, v1" % S_W)
    o.append("v_and_b32 v0, 63, v0")
    o.append("s_mul_i32 s35, %s, 94208" % HD)
    o.append("s_mov_b32 s10, 0x40000"); o.append("s_mov_b32 s11, 0x20000")
    o.append("s_mov_b32 s18, 94208"); o.append("s_mov_b32 s19, s11")
    if ROT:
        m = opts["rot"]
        if m == "a": o += ["s_and_b32 s%d, s2, 15" % S_ROT]
        elif m == "b": o += ["s_bfe_u32 s%d, s2, 0x40003" % S_ROT]
        elif m == "c": o += ["s_lshr_b32 s%d, s2, 4" % S_ROT, "s_add_u32 s%d, s%d, s2" % (S_ROT, S_ROT), "s_and_b32 s%d, s%d, 15" % (S_ROT, S_ROT)]
        elif m == "d": o += ["s_lshr_b32 s%d, s2, 4" % S_ROT]
        o += ["s_lshl_b32 s%d, s%d, 14" % (S_ROT, S_ROT)]
    o += offs()[2:]
    o.append("s_waitcnt lgkmcnt(0)")
    o.append("s_add_u32 s8, s6, s3"); o.append("s_addc_u32 s9, s7, 0")
    o.append("s_add_u32 s4, s4, s35"); o.append("s_addc_u32 s5, s5, 0")
    o.append("s_mov_b32 s6, s18"); o.append("s_mov_b32 s7, s19")
    o += first_dma()
    o.append("s_add_u32 s16, s14, s35"); o.append("s_addc_u32 s17, s15, 0")
    o.append("s_add_u32 s12, s12, s3"); o.append("s_addc_u32 s13, s13, 0")
    o.append("s_mov_b32 s14, s10"); o.append("s_mov_b32 s15, s11")
    o.append("s_mov_b32 s%d, 0" % S_REDO)
    o.append("v_mov_b32 v%d, 0x7f800000" % V_NEGM)
    for t in range(1, 6): o.append("v_mov_b32 v%d, v%d" % (V_NEGM + 4 * t, V_NEGM))
    if STAMP: o += ["s_load_dwordx2 %s, s[0:1], 40" % sr(S_WS, 2), "s_waitcnt lgkmcnt(0)"]
    return o
ORD = int(opts.get("ord", 1))
def first_dma():
    if ORD == 1: return q_dma(0) + two_dma(S_KD, 0) + q_dma(1)
    return q_dma(0) + two_dma(S_KD, 0)
def codepf(T, tid):
    o = ["s_getpc_b64 s[34:35]", "L_pc:"]
    o.append("v_mov_b32 v%d, 0" % (T + 1))
    o.append("v_lshlrev_b32 v%d, 7, %s" % (T + 6, tid))
    for k in range(int(opts.get("npf", 1))):
        if k: o.append("v_add_u32 v%d, 0x8000, v%d" % (T + 6, T + 6))
        o.append("v_min_u32 v%d, L_fin-L_pc, v%d" % (T, T + 6))
        o.append("v_lshl_add_u64 %s, %s, 0, s[34:35]" % (vr(T + 2 + 2 * k, 2), vr(T, 2)))
        o.append("global_load_dword v%d, %s, off" % (V_P + 2 + k, vr(T + 2 + 2 * k, 2)))
    return o
def offs():
    o = []
    o.append("v_mbcnt_lo_u32_b32 v0, -1, 0"); o.append("v_mbcnt_hi_u32_b32 v0, -1, v0")
    o.append("s_and_b32 s%d, s%d, 1" % (S_T0, S_W))
    o.append("s_lshl_b32 s%d, s%d, 5" % (S_XM, S_T0))
    o.append("v_lshrrev_b32 v1, 4, v0")
    o.append("v_lshlrev_b32 v%d, 2, v1" % V_OFF)
    o.append("v_xor_b32 v%d, v%d, v0" % (V_OFF, V_OFF))
    o.append("v_and_b32 v%d, 15, v%d" % (V_OFF, V_OFF))
    o.append("v_lshlrev_b32 v%d, 4, v%d" % (V_OFF, V_OFF))
    o.append("v_lshl_add_u32 v%d, v1, 8, v%d" % (V_OFF, V_OFF))
    o.append("v_xor_b32 v%d, s%d, v%d" % (V_OFF, S_XM, V_OFF))
    o.append("v_xor_b32 v%d, 32, v%d" % (V_OFF2, V_OFF))
    o.append("s_and_b32 s%d, s%d, 2" % (S_T1, S_W))
    o.append("s_lshl1_add_u32 s%d, s%d, s%d" % (S_T0, S_T1, S_T0))
    o.append("s_lshl_b32 s%d, s%d, 10" % (S_T0, S_T0))
    o.append("s_add_u32 s%d, s%d, 8192" % (S_T1, S_T0))
    o.append("s_add_u32 s%d, s%d, 16384" % (S_KV, S_T0))
    o.append("s_mul_i32 s%d, s%d, 24576" % (S_QOFF, S_W))
    o.append("s_lshl_b32 s%d, s%d, 12" % (S_T2, S_W))
    return o
def common():
    o = ["L_restart:"]
    if ORD != 1: o += two_dma(S_VD, LDS_V)
    t = V_S
    for i in (0, 1, 4, 5, 8, 9): o.append("v_mov_b32 v%d, 0" % (V_SEL + i))
    o.append("v_bfe_u32 v%d, v0, 1, 3" % t)
    o.append("v_lshlrev_b32 v%d, 1, v1" % (t + 1))
    o.append("v_and_b32 v%d, 1, v0" % (t + 2)); o.append("v_lshlrev_b32 v%d, 4, v%d" % (t + 2, t + 2))
    o.append("v_mov_b32 v%d, 0x%x" % (t + 3, C_HI)); o.append("v_mov_b32 v%d, 0x%x" % (t + 4, C_LO))
    o.append("v_cmp_eq_u32 vcc, v%d, v%d" % (t, t + 1))
    o.append("v_lshlrev_b32 v%d, v%d, v%d" % (t + 3, t + 2, t + 3)); o.append("v_lshlrev_b32 v%d, v%d, v%d" % (t + 4, t + 2, t + 4))
    o.append("v_or_b32 v%d, 1, v%d" % (t + 1, t + 1))
    o.append("v_cndmask_b32 v%d, 0, v%d, vcc" % (V_SEL + 2, t + 3)); o.append("v_cndmask_b32 v%d, 0, v%d, vcc" % (V_SEL + 6, t + 4))
    o.append("v_cmp_eq_u32 vcc, v%d, v%d" % (t, t + 1))
    o.append("v_cndmask_b32 v%d, 0, v%d, vcc" % (V_SEL + 3, t + 3)); o.append("v_cndmask_b32 v%d, 0, v%d, vcc" % (V_SEL + 7, t + 4))
    o.append("v_and_b32 v%d, 3, v0" % t); o.append("v_lshlrev_b32 v%d, 2, v%d" % (t, t))
    o.append("v_lshrrev_b32 v%d, 1, v0" % (t + 1)); o.append("v_and_b32 v%d, 2, v%d" % (t + 1, t + 1))
    o.append("v_or_b32 v%d, v%d, v%d" % (t, t, t + 1))
    o.append("v_xor_b32 v%d, v%d, v1" % (t, t))
    o.append("v_lshlrev_b32 v%d, 4, v%d" % (t, t))
    o.append("v_and_b32 v%d, 15, v0" % (t + 1))
    o.append("v_lshl_add_u32 v%d, v%d, 8, v%d" % (V_KA, t + 1, t))
    for ks in range(1, 4): o.append("v_xor_b32 v%d, %d, v%d" % (V_KA + ks, 64 * ks, V_KA))
    o.append("v_and_b32 v%d, 12, v0" % t)
    o.append("v_and_b32 v%d, 1, v1" % (t + 1)); o.append("v_lshlrev_b32 v%d, 1, v%d" % (t + 1, t + 1))
    o.append("v_or_b32 v%d, v%d, v%d" % (t, t, t + 1))
    o.append("v_lshlrev_b32 v%d, 4, v%d" % (t, t))
    o.append("v_and_b32 v%d, 3, v0" % (t + 1)); o.append("v_lshlrev_b32 v%d, %d, v%d" % (t + 1, 4 if VMAP else 3, t + 1))
    o.append("v_xor_b32 v%d, v%d, v%d" % (t, t, t + 1))
    o.append("v_lshrrev_b32 v%d, 2, v0" % (t + 1))
    o.append("v_lshl_add_u32 v%d, v%d, 8, v%d" % (t, t + 1, t))
    o.append("v_add_u32 v%d, 0x%x, v%d" % (V_VA, LDS_V, t))
    for dt in range(1, NVA): o.append("v_xor_b32 v%d, %d, v%d" % (V_VA + dt, (64 if VMAP else 32) * dt, V_VA))
    o.append("v_and_b32 v%d, 3, v0" % t); o.append("v_cmp_eq_u32 vcc, 0, v%d" % t)
    o.append("v_mov_b32 v%d, 0x3f803f80" % (t + 1))
    o.append("s_or_b32 s%d, s%d, s%d" % (S_XM, S_XM, S_T2))
    o.append("v_cndmask_b32 v%d, 0, v%d, vcc" % (t, t + 1))
    for i in range(4): o.append("v_accvgpr_write_b32 a%d, v%d" % (A_ONE + i, t))
    for ks in range(4): o.append("v_xor_b32 v%d, s%d, v%d" % (V_QA + ks, S_XM, V_KA + ks))
    o.append("v_and_b32 v%d, 14, v0" % t); o.append("v_lshlrev_b32 v%d, 8, v%d" % (t, t))
    o.append("v_and_b32 v%d, 1, v0" % (t + 1)); o.append("v_lshl_add_u32 v%d, v%d, 6, v%d" % (t, t + 1, t))
    o.append("v_lshl_add_u32 v%d, v1, 4, v%d" % (t, t))
    o.append("v_accvgpr_write_b32 a%d, v%d" % (A_SA, t))
    if "fine" in flags: o += stamp(13)
    o.append("s_waitcnt vmcnt(8)")
    if "fine" in flags: o += stamp(14)
    o += q_read(0)
    o += two_dma(S_VD, LDS_V) if ORD == 1 else q_dma(1)
    o += schedule(sum([pm(0, k) + pc(0, k) for k in range(4)], []))[0]
    o.append("s_waitcnt vmcnt(8)")
    o += q_dma(2)
    if ORD == 3: o += ["s_waitcnt vmcnt(8)"] + q_dma(3)
    o.append("s_barrier")
    o += kreads(0, 0) + kreads(1, 1)
    o += stamp(1)
    o.append("s_cmp_eq_u32 s%d, 3" % S_W)
    o.append("s_cbranch_scc1 L_pro5")
    return o

def pm(t, ks):
    q = ar(A_Q + 16 * t + 4 * ks); D = V_D + 8 * (ks % 2)
    r = []
    for h in range(2):
        d = vr(D + 4 * h)
        r.append("%s %s, %s, %s, 0" % (MF, d, vr(V_SEL + 2 - 2 * h), q))
        r.append("%s %s, %s, %s, %s" % (MF, d, vr(V_SEL + 6 - 2 * h), q, d))
    return r
def pc(t, ks):
    D = V_D + 8 * (ks % 2)
    r = ["v_cvt_pk_bf16_f32 v%d, v%d, v%d" % (D + 2 * i, D + 2 * i, D + 2 * i + 1) for i in range(4)]
    return r + ["v_accvgpr_write_b32 a%d, v%d" % (A_Q + 16 * t + 4 * ks + i, D + 2 * i) for i in range(4)]
def rowmax(t, par=0):
    S = V_S + 8 * par; m, m2 = V_LS, V_LS + 1; N = V_NEGM + 4 * t
    o = ["v_max3_f32 v%d, v%d, v%d, v%d" % (m, S, S + 1, S + 2),
         "v_max3_f32 v%d, v%d, v%d, v%d" % (m2, S + 3, S + 4, S + 5),
         "v_max3_f32 v%d, v%d, v%d, v%d" % (m, m, S + 6, S + 7),
         "v_max_f32 v%d, v%d, v%d" % (m, m, m2),
         "v_mov_b32 v%d, v%d" % (m2, m),
         "v_permlane32_swap_b32 v%d, v%d" % (m, m2),
         "v_max_f32 v%d, v%d, v%d" % (m, m, m2),
         "v_mov_b32 v%d, v%d" % (m2, m),
         "v_permlane16_swap_b32 v%d, v%d" % (m, m2),
         "v_max_f32 v%d, v%d, v%d" % (m, m, m2),
         "v_min_f32 v%d, -v%d, v%d" % (N, m, N)]
    o += ["v_mov_b32 v%d, v%d" % (N + i, N) for i in range(1, 4)]
    return o

def inter(a, b, k):
    out = []; b = list(b)
    for x in a:
        out.append(x); out += b[:k]; del b[:k]
    return out + b
def nogap(x): return [y for y in x if y != "@gap"]
DEP = int(opts.get("dep", 3))
YW = "s_waitcnt vmcnt(%d)" % (4 * (DEP - 1))
CPRO = int(opts.get("C", 2))
TAILN = int(opts.get("T", 2))

class VM:
    def __init__(self, names): self.q = list(names)
    def issue(self, names): self.q += names
    def wait(self, name):
        last = max(i for i, x in enumerate(self.q) if x == name)
        n = len(self.q) - 1 - last
        self.q = self.q[last + 1:]
        return "s_waitcnt vmcnt(%d)" % n

def pipeline(units, p0, hooks, first_qk_done, prev_pv, last_qk, sumfirst=False):
    o = []
    n = len(units)
    H = lambda *k: hooks.get(k, [])
    def QK(k):
        buf, t, first = units[k]
        return H("bQK", k) + qk(buf, t, (p0 + k) % 2, first=first) + H("aQK", k)
    def SM(k):
        buf, t, first = units[k]
        par = (p0 + k) % 2
        r = []
        if first:
            r += rowmax(t, par) + ["v_add_f32 v%d, v%d, v%d" % (V_S + 8 * par + i, V_S + 8 * par + i, V_NEGM + 4 * t) for i in range(8)]
        return r + nogap(sm_seq(par))
    def PV(k):
        buf, t, first = units[k]
        blk = pv(buf, t, (p0 + k) % 2, first=first, sumfirst=sumfirst)
        return H("bPV", k) + blk[:2] + H("mPV", k) + blk[2:] + H("aPV", k)
    if not first_qk_done: o += QK(0)
    o += prev_pv + SM(0)
    for k in range(n):
        if k + 1 < n: o += QK(k + 1)
        elif last_qk is not None:
            o += last_qk; break
        o += PV(k)
        if k + 1 < n: o += SM(k + 1)
    return o

def auto_loads(seq, init, hooks, off, sync, late=lambda s_, k: False):
    for kind, key, fn in (("K", "aQK", kreads), ("V", "aPV", vreads)):
        cur = dict(init); lastuse = {}
        for k, (s_, t, buf) in enumerate(seq):
            if cur.get(buf) != s_:
                at = lastuse.get(buf, -1)
                if late(s_, k):
                    assert at <= k - 2
                    hooks.setdefault(("bPV" if kind == "K" else "aPV", k - 2), []).extend(sync(kind, s_) + fn(buf, off(s_)))
                else: hooks.setdefault((key, at), []).extend(fn(buf, off(s_)))
                cur[buf] = s_
            lastuse[buf] = k

def prologue(NQ):
    C = CPRO
    PEEL = C == 3
    NA = NQ if C <= 3 else 3
    seq = [(s_, t, s_) for t in range(NA) for s_ in (0, 1)]
    if C == 4:
        seq += [(s_, t, s_ % 2) for s_ in (2, 3) for t in range(NA)]
        for t in range(NA, NQ):
            seq += [(s_, t, s_ % 2) for s_ in ((2, 3, 0, 1) if (t - NA) % 2 == 0 else (0, 1, 2, 3))]
    if PEEL: seq += [(2, t, 0) for t in range(NQ)]
    seen = set(); units = []; firstk = {}
    for k, (s_, t, buf) in enumerate(seq):
        units.append((buf, t, t not in seen))
        if t not in seen: firstk[t] = k
        seen.add(t)
    n = len(seq)
    if C <= 3: pend = ["q%d" % t for t in range(3, NQ)] + ["kv2", "kv3", None]
    else: pend = ["kv2", "kv3"] + ["q%d" % t for t in range(3, NQ)] + ["kv4", "kv5", None]
    hooks = {}
    def add(key, lines): hooks.setdefault(key, []).extend(lines)
    LW = int(opts.get("lw", 1))
    for u in range(1, NQ):
        k = firstk[u]
        span = 2 if (C <= 3 or u < NA) else int(opts.get("span", 3))
        k0 = k - span
        P = [pm(u, i) + pc(u, i) for i in range(4)]
        W = ["@wait q%d" % u] + (stamp(7 + u) if "fine" in flags else []) + q_read(u) + ["@next"]
        if u == 1 and ORD != 1:
            W1 = W; P1 = P
        elif LW == 0:
            add(("bQK", k0), W); add(("aQK", k0), P[0] + P[1]); add(("aQK", k0 + 1), P[2] + P[3])
        else:
            add(("aQK", k0), W); add(("bQK", k0 + 1), P[0])
            if span == 2: add(("aQK", k0 + 1), P[1] + P[2] + P[3])
            else: add(("aQK", k0 + 1), P[1]); add(("bQK", k0 + 2), P[2]); add(("aQK", k0 + 2), P[3])
    VS_ = ["@wait v01"] + (stamp(15) if "fine" in flags else []) + ["@next", "s_barrier"]
    if ORD == 1: add(("bPV", 0), VS_ + vreads(0, 0) + vreads(1, 1))
    elif ORD == 2:
        add((opts.get("vpos", "aQK"), int(opts.get("vk", 0))), VS_ + vreads(0, 0) + vreads(1, 1))
        add(("bPV", 0), W1); add(("aPV", 0), P1[0] + P1[1] + P1[2] + P1[3])
    else:
        add(("bQK", 0), vreads(0, 0) + vreads(1, 1))
        add(("bPV", 0), W1); add(("aPV", 0), P1[0] + P1[1] + P1[2] + P1[3])
        pend.pop(0)
    synced = set()
    def sync(kind, s_):
        if s_ < 2 or (kind, s_) in synced: return []
        synced.add(("K", s_)); synced.add(("V", s_))
        return ["@wait v%d" % s_, "@next", "s_barrier"]
    firsts = {}
    for k, x in enumerate(seq): firsts.setdefault(x[0], k)
    if PEEL:
        assert SOLO and DEP == 3
        k2 = 2 * NQ
        add(("aQK", k2 - 2), stamp(2))
        add((opts.get("k2p", "bPV"), k2 - 2), ["@wait k2", "s_barrier"] + kreads(0, 2) + ["@kv"])
        add((opts.get("v2p", "bPV"), k2 - 1), ["@wait v2", "s_barrier"] + vreads(0, 2) + ["@kv"])
        ux = n - int(opts.get("h3", 3))
        add(("mPV", ux), ["@wait v3", "s_barrier"] + kreads(1, 3))
    else:
        auto_loads(seq, {0: 0, 1: 1}, hooks, lambda s_: s_, sync, lambda s_, k: firsts[s_] == k)
        ux = max(k for k in range(n) if seq[k][2] == 0)
        add(("aQK", ux), stamp(2))
        assert not EARLY or (SOLO and ORD == 1 and DEP == 3 and C == 2)
        add(("mPV", ux - 1), ["@kv"] * EARLY + ["@wait k%d" % C, "s_barrier"] + kreads(0, C) + (["@touch"] if "touch" in flags else []) + ["@kv"] * (DEP - 2 if not EARLY else 0))
        add(("mPV", ux), ["@wait v%d" % C, "s_barrier", "s_waitcnt lgkmcnt(0)"])
    st = (C // 2) % 4
    fin = ["s_mov_b32 s%d, 0x%x" % (S_XM, st * 0x4000)]
    fin += ["v_xor_b32 v%d, s%d, v%d" % (V_KA + i, S_XM, V_KA + i) for i in range(4 + NVA)]
    fin += ["s_mov_b32 s%d, 0x%x" % (S_XM, 0xc000 if st % 2 else 0x4000)]
    nper = 32 - TAILN - C
    fin += ["s_mov_b32 s%d, %d" % (S_CNT, (nper + 1) // 2)]
    fin += ["v_mov_b32 v%d, 0" % LS(i) for i in range(NVS)]
    add(("mPV" if PEEL else "aPV", ux), vreads(C % 2, C) + (["@kv"] if EARLY < 2 else []) + fin)
    o = pipeline(units, 0, hooks, False, [], qk(C % 2, 0, n % 2))
    vm = VM({1: ["q1"] * 4 + ["v01"] * 4 + ["q2"] * 4, 2: ["v01"] * 4 + ["q1"] * 4 + ["q2"] * 4, 3: ["q1"] * 4 + ["q2"] * 4 + ["q3"] * 4}[ORD])
    nkv = [2]
    def do_kv():
        i = nkv[0]; nkv[0] += 1
        vm.issue(["k%d" % i] * 2 + ["v%d" % i] * 2); return kv_dma()
    r = []
    for x in o:
        if x.startswith("@wait"): r.append(vm.wait(x.split()[1]))
        elif x == "@kv" and SOLO:
            if NQ == 5:
                if nkv[0] == (4 if C <= 3 else C + 2): r.append("s_and_b32 s%d, s%d, 0xffffe000" % (S_KV, S_KV))
                vm.issue(["kv%d" % nkv[0]] * 16); r += kv_full()
            nkv[0] += 1
        elif x == "@kv": r += do_kv()
        elif x == "@touch":
            vm.issue(["touch"]); r += ["s_sub_u32 s%d, s%d, 1024" % (S_QOFF, S_QOFF), "buffer_load_dword a253, v%d, %s, s%d offen nt" % (V_OFF, sr(S_OD), S_QOFF)]
        elif x == "@next":
            nx = pend.pop(0)
            if nx is None: continue
            if nx[0] == "q": vm.issue([nx] * 4); r += q_dma(int(nx[1:]))
            else:
                assert int(nx[2:]) == nkv[0]; r += do_kv()
        else: r.append(x)
    assert not pend and nkv[0] == C + DEP + 1 and len([x for x in vm.q if x != "touch"]) == ((0 if NQ == 6 else 48) if PEEL else 4 * DEP if not SOLO else 4 if NQ == 6 else 4 + 16 * (DEP - 1)), (pend, nkv, vm.q)
    o, tc = schedule(r, dsgap=int(opts.get("dsp", 4)))
    print("prologue", NQ, "sched est", tc, "waits", " ".join(x[-3:] for x in o if "vmcnt" in x))
    o.append("s_nop 1")
    o += stamp(3)
    return o

def slot(mf, par, reads, misc, vsum=None):
    ex, cv = sm_items(par)
    n = len(mf)
    fill = [[] for _ in range(n)]
    S = V_S + 8 * par
    if vsum is None:
        epos = [1, 2, 4, 5, 8, 9, 12, 13] if n == 17 else [1, 2, 4, 5, 7, 8, 11, 12]
        cpos = [3, 6, 10, 14] if n == 17 else [3, 6, 9, 13]
        free = [g for g in range(n) if g not in epos and g not in cpos]
        rpos = sorted(cpos + [free[2], free[2]]) if len(reads) > 4 else cpos
        for e, g in zip(ex, epos): fill[g].append(e)
        for r, g in zip(reads, rpos): fill[g].append(r)
        for c, g in zip(cv, cpos): fill[g].append(c)
        if len(reads) > 4: free.remove(free[2])
    else:
        assert not reads
        ad = ["v_add_f32 v%d, v%d, v%d" % (vsum, vsum, S + i) for i in range(8)]
        o0 = 1
        seq = [[ex[0]], [ex[1]], [ex[2]], [cv[0], ad[0]], [ex[3]], [ad[1], ad[2]], [ex[4]], [cv[1], ad[3]], [ex[5]], [ex[6]], [cv[2], ad[4]], [ex[7]], [ad[5], ad[6]], [cv[3], ad[7]]]
        for i, s in enumerate(seq): fill[o0 + i] += s
        free = [0] + list(range(o0 + len(seq), n))
    assert len(misc) <= len(free), (len(misc), free)
    for grp, g in zip(misc, free):
        if grp: fill[g] = list(grp) + fill[g]
    out = []
    for i in range(n):
        out.append(mf[i]); out += fill[i]
    return out

def loop_body(NQ):
    ev, od = loop_halves(NQ)
    return ev + od if TAILN % 2 == 0 else od + ev
_LH = {}
def loop_halves(NQ):
    if (NQ == 6 and "auto" not in flags) or (NQ == 5 and not SOLO): return loop_halves_man(NQ)
    if NQ in _LH: return _LH[NQ]
    nvs = NVS if NQ == 6 else 0
    VS = VSET if NQ == 6 else []
    lasth = 1 if TAILN % 2 == 0 else 0
    ypos = float(opts.get("y", 2.0)) if NQ == 6 else float(opts.get("y5", 1.0))
    lst = []
    for half, s_ in enumerate((2, 3)):
        buf = s_ % 2
        par = lambda t: (s_ * NQ + t) % 2
        mfb = []
        o = []
        if half:
            o += ["v_xor_b32 v%d, s%d, v%d" % (V_KA + i, S_XM, V_KA + i) for i in range(4 + NVA)]
            o += ["s_xor_b32 s%d, s%d, 0x8000" % (S_XM, S_XM)]
        d = kv_dma(); kr = kreads(1 - buf, 1 - half); vrd = vreads(1 - buf, 1 - half)
        Y = [yw(NQ), "s_barrier"] + kr + d[0:2] + vrd[0:4] + d[2:4] + vrd[4:8] + d[4:5] + vrd[8:12] + d[5:7] + vrd[12:16]
        if SOLO and NQ == 6: Y = [yw(NQ), "s_barrier"] + kr + vrd
        if SOLO and NQ == 5: Y = [yw(NQ), "s_barrier"] + merge(kr + vrd, kv_full())
        if half == lasth: Y += ["s_sub_u32 s%d, s%d, 1" % (S_CNT, S_CNT), "s_cmp_lg_u32 s%d, 0" % S_CNT]
        for t in range(NQ):
            pvb = pv(buf, t - 1, par(t - 1), msum=(t - 1 not in VS)) if t > 0 else pv(1 - buf, NQ - 1, par(-1), msum=(NQ - 1 not in VS))
            qkb = qk(buf, t + 1, par(t + 1)) if t < NQ - 1 else qk(1 - buf, 0, par(NQ))
            sm = nogap(sm_seq(par(t)))
            if t in VS: sm += ["v_add_f32 v%d, v%d, v%d" % (LS(VS.index(t)), LS(VS.index(t)), V_S + 8 * par(t) + i) for i in range(8)]
            if t == 1: o.append("@lg " + ar(A_V + 32 * buf, 32))
            if t == NQ - 1: qkb = ["@lg " + ar(A_K + 32 * (1 - buf), 32)] + qkb
            blk = pvb + sm + qkb
            if int(ypos) == t:
                nth = int(round((ypos - t) * 16))
                idx = [i for i, x in enumerate(blk) if x.startswith("v_mfma")][nth]
                blk = blk[:idx + 1] + Y + blk[idx + 1:]
            o += blk
        lst.append(o)
    kw = dict(urg=False, dmac=8, dsgap=int(opts.get("dsg", 16)), mflat=int(opts.get("mfl", 0)))
    res = [[], []]
    if NQ == 5:
        for half in range(2):
            pm_ = [x for x in lst[1 - half] if x.startswith("v_mfma")]
            best = None
            for th in (24, 40, 60, 80, 100, 130, 160):
                for seed in [None] + list(range(4)):
                    r, tc = schedule(lst[half], pre=pm_[-8:], sentinel=pm_[0], urg=False, dmac=8, dsgap=int(opts.get("dsg5", 12)), pairing=th, seed=seed)
                    if best is None or tc < best[1]: best = (r, tc)
            r, tc = best
            o_, e_ = process([("p", pm_[-8:], False), ("b", r + [pm_[0]], True)])
            res[half] = o_["b"][:-1]
            print("loop half", NQ, half, "est", tc)
        _LH[NQ] = res
        return res
    for half in range(2):
        pm_ = [x for x in lst[1 - half] if x.startswith("v_mfma")]
        pre = []
        for x in pm_[-5:]: pre += [x, "s_nop 0"] if "optpre" in flags else [x]
        body = lst[half] + (["s_cbranch_scc1 L_loop%d" % NQ] if half == lasth else [])
        best = None
        for th in (24, 40, 60, 80, 100, 130, 160):
            for seed in [None] + list(range(int(opts.get("seeds", 6)))):
                r, tc = schedule(lst[half], pre=pre, pairing=th, seed=seed, sentinel=pm_[0], **kw)
                mi = [i for i, x in enumerate(r) if x.startswith("v_mfma")][-5:] + [len(r) + (1 if half == lasth else 0)]
                if "optpre" in flags and any(mi[j + 1] - mi[j] < 2 for j in range(5)): tc += 500
                if half == lasth and (len(r) - mi[4] > 2 or r[-1].startswith("v_exp") or r[-1].startswith("buffer")): tc += 4
                if best is None or tc < best[1]: best = (r, tc, th, seed)
        res[half] = best[0]
        print("loop half", NQ, half, "est", best[1:])
    _LH[NQ] = res
    return res
def loop_halves_man(NQ):
    res = []
    lasth = 1 if TAILN % 2 == 0 else 0
    par = lambda s, t: (s * NQ + t) % 2
    nvs = NVS if NQ == 6 else 0
    ysl = NQ - 4
    for half, s in enumerate((2, 3)):
        buf = s % 2
        o = []
        rd = kreads(1 - buf, 1 - half) + vreads(1 - buf, 1 - half)
        d = kv_dma() if not SOLO else []
        x = ["v_xor_b32 v%d, s%d, v%d" % (V_KA + i, S_XM, V_KA + i) for i in range(4 + NVA)]
        for t in range(NQ):
            pvb = pv(buf, t - 1, par(s, t - 1), msum=(t - 1 >= nvs)) if t > 0 else pv(1 - buf, NQ - 1, par(s - 1, NQ - 1))
            qkb = qk(buf, t + 1, par(s, t + 1)) if t < NQ - 1 else qk(1 - buf, 0, par(s + 1, 0))
            reads = []
            if t >= ysl: reads = rd[:6]; rd = rd[6:]
            misc = []
            wv = ["s_waitcnt lgkmcnt(0)"]
            if NQ == 6:
                if t == 0:
                    misc = [x[0:2], x[2:4], x[4:5] + wv] if half else [None, None, wv]
                    if nvs == 0: misc = [None, None] + misc
                if t == 1:
                    misc = [x[5:7], x[7:9]] if half else []
                if t == 2:
                    misc = [[yw(NQ), "s_barrier"], d[0:1] + (x[9:10] if half else []), x[10:12] if half else None]
                if t == 3: misc = [d[1:2], d[2:3], d[3:4] + (["s_xor_b32 s%d, s%d, 0x8000" % (S_XM, S_XM)] if half else [])]
                if t == 4: misc = [d[4:5], d[5:6], d[6:7]]
                if t == 5: misc = [None, ["s_waitcnt lgkmcnt(2)"]] + ([["s_sub_u32 s%d, s%d, 1" % (S_CNT, S_CNT)], ["s_cmp_lg_u32 s%d, 0" % S_CNT]] if half == lasth else [])
            else:
                if t == 0: misc = [x[0:2], x[2:4], x[4:6], x[6:8], x[8:9] + wv] if half else [None, None, None, None, wv]
                if t == 1: misc = [[yw(NQ), "s_barrier"], d[0:1] + (x[9:10] if half else []), x[10:12] if half else None]
                if t == 2: misc = [d[1:2], d[2:3], d[3:4] + (["s_xor_b32 s%d, s%d, 0x8000" % (S_XM, S_XM)] if half else [])]
                if t == 3: misc = [d[4:5], d[5:6], d[6:7]]
                if t == 4: misc = [None, ["s_waitcnt lgkmcnt(2)"]] + ([["s_sub_u32 s%d, s%d, 1" % (S_CNT, S_CNT)], ["s_cmp_lg_u32 s%d, 0" % S_CNT]] if half == lasth else [])
            o += slot(pvb + qkb, par(s, t), reads, misc, vsum=(LS(t) if t < nvs else None))
        assert not rd
        res.append(o)
    return res

SA, ACC = V_OFF, 15
A_SA = 252
def epi_setup():
    o = ["v_accvgpr_read_b32 v%d, a%d" % (SA, A_SA)]
    o.append("v_mov_b32 v%d, 0" % ACC)
    o.append("s_mul_i32 s%d, s%d, 24576" % (S_QOFF, S_W))
    o.append("s_mov_b32 vcc_lo, 0x55555555"); o.append("s_mov_b32 vcc_hi, 0x55555555")
    return o
def vsum_reduce(t):
    x = LS(VSET.index(t)); T = V_NEGM + 4 * t + 2
    return ["v_mov_b32 v%d, v%d" % (T, x), "v_permlane32_swap_b32 v%d, v%d" % (x, T), "v_add_f32 v%d, v%d, v%d" % (x, x, T),
            "v_mov_b32 v%d, v%d" % (T, x), "v_permlane16_swap_b32 v%d, v%d" % (x, T), "v_add_f32 v%d, v%d, v%d" % (x, x, T)]
DPPX = "quad_perm:[1,0,3,2] row_mask:0xf bank_mask:0xf"
def epi(t, vs, pk=False):
    E_L = V_NEGM + 4 * t
    h = ["v_accvgpr_read_b32 v%d, a%d" % (E_L, A_L + 4 * t)]
    if vs: h.append("v_add_f32 v%d, v%d, v%d" % (E_L, E_L, LS(VSET.index(t))))
    h.append("v_add_f32 v%d, v%d, v%d" % (ACC, ACC, E_L))
    h.append("v_rcp_f32 v%d, v%d" % (E_L, E_L))
    m = []; sw = []; x = []
    pol = STL if t == LASTT[0] else STNT
    for s in range(4):
        b = V_O + 32 * t + 8 * s
        g = []
        if pk:
            for i in range(0, 8, 2): g.append("v_pk_mul_f32 %s, %s, %s op_sel_hi:[1,0]" % (vr(b + i, 2), vr(b + i, 2), vr(E_L, 2)))
        else:
            for i in range(8): g.append("v_mul_f32 v%d, v%d, v%d" % (b + i, b + i, E_L))
        for i in range(4): g.append("v_cvt_pk_bf16_f32 v%d, v%d, v%d" % (b + i, b + 2 * i, b + 2 * i + 1))
        m.append(g)
        sw.append([] if VMAP else ["v_permlane16_swap_b32 v%d, v%d" % (b, b + 2), "v_permlane16_swap_b32 v%d, v%d" % (b + 1, b + 3)])
    for p in range(2):
        X = V_O + 32 * t + 16 * p; Y = X + 8
        A = ["v_cndmask_b32_dpp v%d, v%d, v%d, vcc %s" % (X + 4 + i, Y + i, X + i, DPPX) for i in (0, 2, 1, 3)] + ["s_not_b64 vcc, vcc"]
        B = ["v_cndmask_b32_dpp v%d, v%d, v%d, vcc %s" % (Y + i, X + i, Y + i, DPPX) for i in range(4)] + ["s_not_b64 vcc, vcc"]
        if "nost" not in flags:
            A.append("buffer_store_dwordx4 %s, v%d, %s, s%d offen offset:%d%s" % (vr(X + 4), SA, sr(S_OD), S_QOFF, 128 * p, pol))
            B.append("buffer_store_dwordx4 %s, v%d, %s, s%d offen offset:%d%s" % (vr(Y), SA, sr(S_OD), S_QOFF, 128 * p + 256, pol))
        if p == 1: B.append("s_add_u32 s%d, s%d, 4096" % (S_QOFF, S_QOFF))
        x.append((A, B))
    return h, m, sw, x
LASTT = [None]
def epi_body(m, sw, x):
    k = 2
    return (m[1][:k] + sw[0] + m[1][k:] + m[2][:k] + sw[1] + m[2][k:k + 2] + x[0][0] + m[2][k + 2:] + m[3][:k] + sw[2] + x[0][1][:3] + m[3][k:]
            + x[0][1][3:] + sw[3]), x[1][0] + x[1][1]
def epi_flat(t, vs):
    h, m, sw, x = epi(t, vs)
    body, fin = epi_body(m, sw, x)
    return h + m[0] + body, fin

def tail(NQ):
    LASTT[0] = NQ - 1
    nvs = NVS if NQ == 6 else 0
    if TAILN == 2:
        seq = [(30, 0, 0), (30, 1, 0), (31, 0, 1), (31, 1, 1)] + [(30 + b, t, b) for t in range(2, NQ) for b in (0, 1)]
        init = {0: 30}; off = lambda s_: s_ - 30; s0 = 30; w = 4 * (DEP - 1)
    else:
        e = max(2, NQ - int(opts.get("post", 3)))
        seq = [(29, t, 1) for t in range(e)] + [(30, 0, 0), (30, 1, 0), (31, 0, 1), (31, 1, 1)]
        seq += [(30 + b, t, b) for t in range(2, e) for b in (0, 1)]
        seq += [(30, t, 0) for t in range(e, NQ)]
        seq += [x for t in range(e, NQ) for x in ((31, t, 1), (29, t, 0))]
        init = {1: 29}; off = lambda s_: s_ - 28; s0 = 29; w = 4 * (DEP - 2)
    n = len(seq)
    p0 = (s0 * NQ) % 2
    hooks = {}
    def add(key, lines): hooks.setdefault(key, []).extend(lines)
    auto_loads(seq, init, hooks, off, lambda kind, s_: [])
    ppv = pv(1 - s0 % 2, NQ - 1, 1 - p0)
    pre = ppv[:1] + [yw(NQ, TAILN - 1), "s_barrier"] + hooks.pop(("aQK", -1)) + ppv[1:] + hooks.pop(("aPV", -1))
    pre += epi_setup()
    DL = int(opts.get("dl", 2))
    lastk = {t: k for k, (s_, t, b) in enumerate(seq)}
    dead = {}; prevd = -1
    for t in sorted(lastk, key=lambda t: lastk[t]):
        k = lastk[t]
        isv = NQ == 6 and t in VSET
        if isv: add(("aQK", k), vsum_reduce(t))
        h, m, sw, x = epi(t, isv, pk=True)
        if k == n - 1: m[0] = epi(t, isv)[1][0]
        else:
            h = h + ["\n".join(sum([g[:4] for g in m], []))]
            m = [g[4:] for g in m]
        e_ = h + m[0] + sw[0] + m[1] + sw[1] + x[0][0] + x[0][1] + m[2] + sw[2] + m[3] + sw[3] + x[1][0] + x[1][1]
        e_[-1] += " ; tag=e%d" % t
        add(("aPV", k), e_)
        d = max(k + DL, prevd + 1); prevd = d
        if d < n - 1: add(("bPV", d), ["@after e%d" % t])
    o = pipeline([(b, t, False) for (s_, t, b) in seq], p0, hooks, True, pre, None, sumfirst=True)
    r = []; pendtag = None
    for x in o:
        if x.startswith("@after"): pendtag = x.split()[1]
        else:
            r.append(x + (" ; after=" + pendtag if pendtag else "")); pendtag = None
    o, tc = schedule(r, pre=loop_body(NQ), dsgap=int(opts.get("dst", 16)))
    print("tail", NQ, "sched est", tc)
    o = stamp(4) + o + stamp(5)
    o += stamp(6)
    o.append("s_lshl_b32 s%d, s%d, 13" % (S_T0, S_W)); o.append("s_add_u32 s%d, s%d, 0x%x" % (S_T0, S_T0, LDS_X))
    o.append("s_mov_b32 s%d, 0x%x" % (S_T1, THRESH))
    o.append("v_cmp_ngt_f32 vcc, s%d, v%d" % (S_T1, ACC))
    o.append("s_cmp_lg_u64 vcc, 0")
    o.append("s_cselect_b32 s%d, 1, 0" % S_T1)
    o.append("v_mbcnt_lo_u32_b32 v4, -1, 0"); o.append("v_mbcnt_hi_u32_b32 v4, -1, v4")
    o.append("v_mov_b32 v5, s%d" % S_T1)
    o.append("v_mov_b32 v6, s%d" % S_T0)
    o.append("ds_write_b32 v6, v5 offset:6144")
    o.append("v_and_b32 v6, 3, v4")
    o.append("v_lshlrev_b32 v6, 13, v6")
    o.append("v_add_u32 v6, 0x%x, v6" % LDS_X)
    o.append("s_waitcnt lgkmcnt(0)")
    o.append("s_barrier")
    o.append("ds_read_b32 v5, v6 offset:6144")
    o.append("s_waitcnt lgkmcnt(0)")
    o.append("v_cmp_ne_u32 vcc, 0, v5")
    o.append("s_cmp_lg_u32 s%d, 0" % S_REDO)
    o.append("s_cbranch_scc1 L_fin")
    o.append("s_branch L_fin" if "noredo" in flags else "s_cbranch_vccz L_fin")
    return o

def redo(NQ):
    o = ["s_waitcnt vmcnt(0)", "s_barrier", "s_mov_b32 s%d, 1" % S_REDO]
    M = V_O + 64; AD = V_KA + 2
    o.append("v_and_b32 v%d, 15, v4" % AD); o.append("v_lshlrev_b32 v%d, 8, v%d" % (AD, AD))
    o.append("v_lshrrev_b32 v5, 4, v4"); o.append("v_lshl_add_u32 v%d, v5, 4, v%d" % (AD, AD))
    for t in range(NQ): o.append("v_mov_b32 v%d, 0xff800000" % (M + t))
    o.append("s_mov_b32 s%d, 0" % S_T0)
    body = []
    for ks in range(4):
        body.append("buffer_load_dwordx4 %s, v%d, %s, s%d offen offset:%d" % (ar(A_K + 4 * ks), AD, sr(S_KD), S_T0, 64 * ks))
    body.append("s_waitcnt vmcnt(0)")
    for t in range(NQ):
        d = vr(V_O + 4 * t)
        for ks in range(4):
            body.append("%s %s, %s, %s, %s" % (MF, d, ar(A_K + 4 * ks), ar(A_Q + 16 * t + 4 * ks), d if ks else "0"))
    body.append("s_nop 7")
    for t in range(NQ):
        b = V_O + 4 * t
        body.append("v_max3_f32 v%d, v%d, v%d, v%d" % (M + t, M + t, b, b + 1))
        body.append("v_max3_f32 v%d, v%d, v%d, v%d" % (M + t, M + t, b + 2, b + 3))
    body.append("s_add_u32 s%d, s%d, 4096" % (S_T0, S_T0))
    body.append("s_cmp_lt_u32 s%d, 0x40000" % S_T0)
    body.append("s_cbranch_scc1 L_max%d" % NQ)
    post = []
    for t in range(NQ):
        m, m2 = M + t, 5
        post += ["v_mov_b32 v%d, v%d" % (m2, m), "v_permlane32_swap_b32 v%d, v%d" % (m, m2), "v_max_f32 v%d, v%d, v%d" % (m, m, m2),
                 "v_mov_b32 v%d, v%d" % (m2, m), "v_permlane16_swap_b32 v%d, v%d" % (m, m2), "v_max_f32 v%d, v%d, v%d" % (m, m, m2),
                 "v_sub_f32 v%d, 0, v%d" % (V_NEGM + 4 * t, m)]
    post += offs() + first_dma()
    post.append("s_branch L_restart")
    return o, body, post

def fin():
    o = ["L_fin:"]
    if STAMP:
        o.append("s_waitcnt vmcnt(0)")
        o += stamp(7)
        if "pad" in opts:
            o.append("s_mov_b32 s80, %d" % (int(opts["pad"]) * 100))
            if "pb" in opts:
                cyc = 0 if "pcyc" in flags else 2
                o.append("s_sub_u32 s81, s%d, s%d" % (S_ST + 4 * int(opts["pb"]) + cyc, S_ST + 4 * int(opts.get("pa", 0)) + cyc))
                if "pcyc" in flags: o.append("s_lshr_b32 s81, s81, 4")
                o.append("s_add_u32 s80, s80, s81")
            o.append("L_spin:")
            o.append("s_memrealtime s[82:83]"); o.append("s_waitcnt lgkmcnt(0)")
            o.append("s_sub_u32 s81, s82, s%d" % (S_ST + 2))
            o.append("s_cmp_lt_u32 s81, s80"); o.append("s_cbranch_scc1 L_spin")
            o.append("s_branch L_end")
        w = int(opts.get("sw", 0))
        o.append("s_cmp_lg_u32 s%d, %d" % (S_W, w)); o.append("s_cbranch_scc1 L_end")
        o.append("s_lshl_b32 s3, s2, 9")
        o.append("s_add_u32 s%d, s%d, s3" % (S_WS, S_WS)); o.append("s_addc_u32 s%d, s%d, 0" % (S_WS + 1, S_WS + 1))
        n = nstamp[0]
        for i in range(4 * n): o.append("v_mov_b32 v%d, s%d" % (64 + i, S_ST + i))
        o.append("v_mov_b32 v1, 0"); o.append("s_mov_b64 exec, 1")
        for i in range(n): o.append("global_store_dwordx4 v1, %s, %s offset:%d" % (vr(64 + 4 * i), sr(S_WS, 2), 16 * i))
    o.append("L_end:"); o.append("s_endpgm")
    return o

su = setup(); cm = common()
code = None; errs = []
for NQ in (6, 5):
    ev, od = loop_halves(NQ)
    br = ["s_cbranch_scc1 L_loop%d" % NQ]
    r1, rb, r2 = redo(NQ)
    pro = prologue(NQ)
    if TAILN % 2 == 0 and CPRO % 2 == 1:
        pro = pro + ["s_branch L_odd%d" % NQ]
        lp = [("od", od + br, False), ("ev", ev, False)] * 2 + [("od", od + br, False)]
    elif TAILN % 2 == 0:
        lp = [("ev", ev, False), ("od", od + br, False)] * 2
    else:
        pro = pro + ["s_branch L_even%d" % NQ]
        lp = [("ev", ev + br, False), ("od", od, False)] * 2 + [("ev", ev + br, False)]
    segs = [("su", su, True), ("cm", cm, True), ("pro", pro, True)] + lp + [
            ("tail", tail(NQ), True), ("r1", r1, True), ("rb", rb, False), ("rb", rb, False), ("r2", r2, True), ("cm", cm, True)]
    out, e = process(segs)
    errs += ["NQ%d: %s" % (NQ, x) for x in e]
    if code is None: code = out["su"] + out["cm"]
    else: code.append("L_pro5:")
    code += out["pro"] + [".p2align 6", "L_loop%d:" % NQ]
    code += (out["ev"] + ["L_odd%d:" % NQ] + out["od"]) if TAILN % 2 == 0 else (out["od"] + ["L_even%d:" % NQ] + out["ev"])
    code += out["tail"] + out["r1"] + ["L_max%d:" % NQ] + out["rb"] + out["r2"]
code += fin()
if "force" not in flags:
    for e in errs[:10]: print("ERR", e)
    if errs: sys.exit(1)
hdr = open("standalone__mha_softmax__near_ridge.s.ref").read().split("; Override launch")[0]
L = hdr.rstrip("\n").split("\n")
L.append("; @launch grid=(256,1,1) block=(256,1,1) lds=163840")
L += """;
; Attention forward, one workgroup (4 waves, one per SIMD) per (batch, head); written by a generator script.
;  * 368 query rows = 23 tiles of 16: waves 0-2 own 6 tiles, wave 3 owns 5 tiles and streams K/V for everybody.
;  * K/V arrive by LDS-DMA in 32-key sub-tiles (8-slot ring, XOR-swizzled source), one barrier per sub-tile.
;  * 16x16x32 bf16 MFMA: S^T = K Q^T (Q pre-scaled by log2(e)/sqrt(D)), P = exp2(S^T - m), O^T += V^T P,
;    row sums by a ones-row MFMA or VALU adds; m enters as the C operand of the first MFMA of each chain.
;  * Softmax max guard: m is the row max over the first 32 keys (never above the true max, so no extra
;    underflow). The final row sums bound every P; if any is not below 2^24 (or is NaN) the workgroup takes
;    the fallback: it computes the true row max over all keys (L_max*) and runs the whole pass again with it.
;  * The first instructions pull the kernel's own code into L2 so that the straight-line parts do not
;    stall on instruction fetch.""".split("\n")
if STAMP: L.append("; nstamps %d" % nstamp[0]); L.append("; variant: " + variant)
L += ['.amdgcn_target "amdgcn-amd-amdhsa--gfx950"', ".text", ".globl " + NAME, ".p2align 8", ".type %s,@function" % NAME, NAME + ":"]
for c in code: L.append(c if c.endswith(":") or c.startswith(".") else "    " + c)
L += ['.section .rodata,"a"', ".p2align 6", ".amdhsa_kernel " + NAME,
      "  .amdhsa_next_free_vgpr 512", "  .amdhsa_next_free_sgpr 102", "  .amdhsa_accum_offset 256",
      "  .amdhsa_group_segment_fixed_size 0", "  .amdhsa_kernarg_size 48", "  .amdhsa_user_sgpr_count 2",
      "  .amdhsa_user_sgpr_kernarg_segment_ptr 1", "  .amdhsa_system_sgpr_workgroup_id_x 1", ".end_amdhsa_kernel"]
open(sys.argv[1], "w").write("\n".join(L) + "\n")
```

```python
import sys, struct, math
sys.path.insert(0, "work")
from chk2 import process
from sched import schedule

NAME = "standalone__mha_softmax__near_ridge_kernel"
variant = sys.argv[2] if len(sys.argv) > 2 else ""
opts = dict(kv.split("=") for kv in variant.split(",") if "=" in kv)
flags = set(kv for kv in variant.split(",") if kv and "=" not in kv)
STAMP = "stamp" in flags
def f2u(x): return struct.unpack("<I", struct.pack("<f", x))[0]
SCALE = f2u(128 ** -0.5 * math.log2(math.e))
THRESH = f2u(2.0 ** int(opts.get("thr", 24)))
NVS = int(opts.get("nvs", 2))

VSET = [int(c) for c in opts.get("vs", "012345"[:NVS])]
NVS = len(VSET)
V_LS = 0
V_OFF = 3
V_KA = 4
V_VA = 8
V_NEGM = 16
V_S = 40
V_P = 56
V_O = 64
V_SEL = V_O + 160; V_OFF2 = V_O + 170; V_QA = V_O + 172; V_D = V_O + 176
def bf16r(x):
    u = f2u(x); return (u + 0x7fff + ((u >> 16) & 1)) >> 16
def u2f(u): return struct.unpack("<f", struct.pack("<I", u))[0]
C_HI = bf16r(u2f(SCALE)); C_LO = bf16r(u2f(SCALE) - u2f(C_HI << 16))
A_Q = 0; A_K = 96; A_V = 160; A_L = 224; A_ONE = 248
S_QD, S_KD, S_VD, S_OD = 4, 8, 12, 16
S_W, S_KV, S_CNT, S_XM, S_SC, S_REDO = 20, 21, 22, 23, 24, 25
S_T0, S_T1, S_T2, S_QOFF = 26, 27, 28, 29
S_ROT = 24; S_SRC = 32; S_SRC2 = 33; S_WS = 30; S_MSK = 32; S_SC2 = 34; S_ST = 36
LDS_V = 0x10000; LDS_X = 0x20000
NT = "".join(" " + x for x in opts.get("ld", "nt").split("+") if x)
STNT = "".join(" " + x for x in opts.get("st", "sc0+sc1+nt").split("+") if x)
STL = "".join(" " + x for x in opts.get("stl", opts.get("st", "sc0+sc1+nt")).split("+") if x)
def vr(b, n=4): return "v[%d:%d]" % (b, b + n - 1)
def ar(b, n=4): return "a[%d:%d]" % (b, b + n - 1)
def sr(b, n=4): return "s[%d:%d]" % (b, b + n - 1)
MF = "v_mfma_f32_16x16x32_bf16"
nstamp = [0]
def stamp(idx):
    if not STAMP: return []
    nstamp[0] = max(nstamp[0], idx + 1)
    return ["s_memtime %s" % sr(S_ST + 4 * idx, 2), "s_memrealtime %s" % sr(S_ST + 4 * idx + 2, 2), "s_waitcnt lgkmcnt(0)"]

def LS(i): return (0, 1, 2, 12, 13, 14)[i]
def qk(buf, t, par, first=False):
    r = []
    for T in range(2):
        d = vr(V_S + 8 * par + 4 * T)
        for ks in range(4):
            c = d if ks else ("0" if first else vr(V_NEGM + 4 * t))
            r.append("%s %s, %s, %s, %s" % (MF, d, ar(A_K + 32 * buf + 16 * T + 4 * ks), ar(A_Q + 16 * t + 4 * ks), c))
    if "qkil" in flags: r = [r[0], r[4], r[1], r[5], r[2], r[6], r[3], r[7]]
    return r
def pv(buf, t, par, first=False, msum=True, sumfirst=False):
    r = []
    P = vr(V_P + 4 * par)
    for dt in range(8):
        o = vr(V_O + 32 * t + 4 * dt)
        PP = P
        if "pvchain" in flags and not first:
            o = vr(V_O + 32 * t + 4 * (4 * buf + dt // 2)); PP = vr(V_P + 4 * ((par + dt) % 2))
        if "pvchainb" in flags and not first:
            o = vr(V_O + 32 * t + 4 * (4 * buf + dt // 2))
        if "pvalt" in flags and not first:
            PP = vr(V_P + 4 * ((par + dt) % 2))
        r.append("%s %s, %s, %s, %s" % (MF, o, ar(A_V + 32 * buf + 4 * dt), PP, "0" if first else o))
    if msum:
        l = ar(A_L + 4 * t)
        m = "%s %s, %s, %s, %s" % (MF, l, ar(A_ONE), P, "0" if first else l)
        r = [m] + r if (sumfirst or "sf" in flags) else r + [m]
    if "swp" in flags:
        def swp0(s):
            h, r = s.split(" ", 1); p = r.split(", "); return h + " " + ", ".join([p[0], p[2], p[1], p[3]])
        r = [swp0(x) for x in r]
    return r
def kreads(buf, sub):
    return ["ds_read_b128 %s, v%d offset:%d" % (ar(A_K + 32 * buf + 16 * T + 4 * ks), V_KA + ks, sub * 8192 + T * 4096) for T in range(2) for ks in range(4)]
VMAP = True
NVA = 4 if VMAP else 8
def vreads(buf, sub):
    if VMAP:
        return ["ds_read_b64_tr_b16 %s, v%d offset:%d" % (ar(A_V + 32 * buf + 4 * dt + 2 * T, 2), V_VA + (dt >> 1), sub * 8192 + T * 4096 + 8 * (dt & 1)) for dt in range(8) for T in range(2)]
    return ["ds_read_b64_tr_b16 %s, v%d offset:%d" % (ar(A_V + 32 * buf + 4 * dt + 2 * T, 2), V_VA + dt, sub * 8192 + T * 4096) for dt in range(8) for T in range(2)]
def dma2(srd, soff):
    return ["buffer_load_dwordx4 v%d, %s, s%d offen%s lds" % (V_OFF, sr(srd), soff, NT),
            "buffer_load_dwordx4 v%d, %s, s%d offen offset:2048%s lds" % (V_OFF, sr(srd), soff, NT)]
ROT = "rot" in opts
def src_of(end=True):
    if not ROT: return [], S_KV
    r = ["s_add_u32 s%d, s%d, s%d" % (S_SRC, S_KV, S_ROT), "s_and_b32 s%d, s%d, 0x3ffff" % (S_SRC, S_SRC)]
    if end: r += ["s_and_b32 s%d, s%d, 0x40000" % (S_SRC2, S_KV), "s_or_b32 s%d, s%d, s%d" % (S_SRC, S_SRC, S_SRC2)]
    return r, S_SRC
def kv_dma():
    pre, so = src_of(not SOLO)
    return (pre + ["s_and_b32 m0, s%d, 0xffff" % S_KV] + dma2(S_KD, so) + ["s_bitset1_b32 m0, 16"] + dma2(S_VD, so)
            + ["s_add_u32 s%d, s%d, 8192" % (S_KV, S_KV)])
SOLO = "solo" in flags
def kv_full():
    r, so = src_of()
    for h in range(2):
        r.append("s_and_b32 m0, s%d, 0xffff" % S_KV)
        r += ["buffer_load_dwordx4 v%d, %s, s%d offen offset:%d%s lds" % (V_OFF if p & 1 else V_OFF2, sr(S_KD), so, 1024 * p, NT) for p in range(4)]
        r.append("s_bitset1_b32 m0, 16")
        r += ["buffer_load_dwordx4 v%d, %s, s%d offen offset:%d%s lds" % (V_OFF if p & 1 else V_OFF2, sr(S_VD), so, 1024 * p, NT) for p in range(4)]
        r.append("s_add_u32 s%d, s%d, 4096" % (S_KV, S_KV))
        if ROT and h == 0: r.append("s_add_u32 s%d, s%d, 4096" % (so, so))
    return r
def yw(NQ, back=1):
    if not SOLO: return "s_waitcnt vmcnt(%d)" % (4 * (DEP - back))
    return "s_waitcnt vmcnt(%d)" % (0 if NQ == 6 else 16 * (DEP - back))
def two_dma(srd, ldsbase):
    if ROT:
        return (["s_add_u32 m0, s%d, 0x%x" % (S_T0, ldsbase), "s_add_u32 s%d, s%d, s%d" % (S_SRC, S_T0, S_ROT)] + dma2(srd, S_SRC)
                + ["s_add_u32 m0, s%d, 0x%x" % (S_T1, ldsbase), "s_add_u32 s%d, s%d, s%d" % (S_SRC, S_T1, S_ROT)] + dma2(srd, S_SRC))
    return (["s_add_u32 m0, s%d, 0x%x" % (S_T0, ldsbase)] + dma2(srd, S_T0) + ["s_add_u32 m0, s%d, 0x%x" % (S_T1, ldsbase)] + dma2(srd, S_T1))
EARLY = int(opts.get("early", 0))
def qlds(t):
    if EARLY: return (0x8000, 0x18000, 0x1c000, 0x20000, 0x24000, 0xc000)[t]
    return (0x8000, 0xc000, 0x18000, 0x1c000, 0x20000, 0x24000)[t]
def q_dma(t):
    r = ["s_add_u32 m0, s%d, 0x%x" % (S_T2, qlds(t))]
    for p in range(4):
        r.append("buffer_load_dwordx4 v%d, %s, s%d offen offset:%d%s lds" % (V_OFF2 if p & 1 else V_OFF, sr(S_QD), S_QOFF, 1024 * p, NT))
    r.append("s_add_u32 s%d, s%d, 4096" % (S_QOFF, S_QOFF))
    return r
def q_read(t):
    r = []
    if t == (1 if EARLY else 2): r += ["v_add_u32 v%d, 0x18000, v%d" % (V_QA + ks, V_QA + ks) for ks in range(4)]
    if EARLY and t == 5: r += ["v_subrev_u32 v%d, 0x18000, v%d" % (V_QA + ks, V_QA + ks) for ks in range(4)]
    off = qlds(t) - (0x18000 if qlds(t) >= 0x18000 else 0)
    return r + ["ds_read_b128 %s, v%d offset:%d" % (ar(A_Q + 16 * t + 4 * ks), V_QA + ks, off) for ks in range(4)]
def sm_items(par):
    S = V_S + 8 * par; P = V_P + 4 * par
    ex = ["v_exp_f32 v%d, v%d" % (S + i, S + i) for i in range(8)]
    cv = ["v_cvt_pk_bf16_f32 v%d, v%d, v%d" % (P + i, S + 2 * i, S + 2 * i + 1) for i in range(4)]
    return ex, cv
def sm_seq(par):
    ex, cv = sm_items(par)
    return [ex[0], ex[1], ex[2], cv[0], ex[3], ex[4], cv[1], ex[5], ex[6], cv[2], ex[7], "@gap", cv[3]]
def cost(s):
    if s.startswith("v_exp") or s.startswith("v_rcp") or s.startswith("buffer_"): return 8
    return 4
def merge(a, b):
    ta = sum(map(cost, a)) or 1; tb = sum(map(cost, b)) or 1
    out = []; i = j = 0; ca = cb = 0
    while i < len(a) or j < len(b):
        if j >= len(b) or (i < len(a) and ca * tb <= cb * ta): out.append(a[i]); ca += cost(a[i]); i += 1
        else: out.append(b[j]); cb += cost(b[j]); j += 1
    return out
def weave(mf, fill, start=0, end=None):
    n = len(mf); end = n if end is None else end
    fill = [f for f in fill if f != "@gap"]
    tot = sum(map(cost, fill)); ng = max(end - start, 1)
    out = []; i = 0; used = 0
    for g in range(n):
        out.append(mf[g])
        if g < start or g >= end: continue
        per = max(8.0, tot / ng)
        lim = per * (g - start + 1)
        gap = 0
        while i < len(fill) and used + cost(fill[i]) <= lim + 0.01 and (gap + cost(fill[i]) <= max(8, math.ceil(per / 4) * 4 + 4)):
            out.append(fill[i]); used += cost(fill[i]); gap += cost(fill[i]); i += 1
        if g == end - 1:
            out += fill[i:]; i = len(fill)
    out += fill[i:]
    return out

def setup():
    o = []
    o.append("s_load_dwordx4 s[4:7], s[0:1], 0")
    o.append("s_load_dwordx4 s[12:15], s[0:1], 16")
    if STAMP:
        o.append("s_memtime %s" % sr(S_ST, 2)); o.append("s_memrealtime %s" % sr(S_ST + 2, 2)); nstamp[0] = 1
    o += ["s_cmpk_ge_u32 s2, 256", "s_cbranch_scc1 L_end"]
    if "nopf" not in flags: o += codepf(V_S, "v0")
    HD = "s2"
    if "remap" in flags:
        o += ["s_and_b32 s3, s2, 7", "s_lshr_b32 s33, s2, 3", "s_lshl_b32 s3, s3, 5", "s_or_b32 s33, s33, s3"]; HD = "s33"
    o.append("v_lshrrev_b32 v1, 6, v0")
    o.append("s_lshl_b32 s3, %s, 18" % HD)
    o.append("v_readfirstlane_b32 s%d, v1" % S_W)
    o.append("v_and_b32 v0, 63, v0")
    o.append("s_mul_i32 s35, %s, 94208" % HD)
    o.append("s_mov_b32 s10, 0x40000"); o.append("s_mov_b32 s11, 0x20000")
    o.append("s_mov_b32 s18, 94208"); o.append("s_mov_b32 s19, s11")
    if ROT:
        m = opts["rot"]
        if m == "a": o += ["s_and_b32 s%d, s2, 15" % S_ROT]
        elif m == "b": o += ["s_bfe_u32 s%d, s2, 0x40003" % S_ROT]
        elif m == "c": o += ["s_lshr_b32 s%d, s2, 4" % S_ROT, "s_add_u32 s%d, s%d, s2" % (S_ROT, S_ROT), "s_and_b32 s%d, s%d, 15" % (S_ROT, S_ROT)]
        elif m == "d": o += ["s_lshr_b32 s%d, s2, 4" % S_ROT]
        o += ["s_lshl_b32 s%d, s%d, 14" % (S_ROT, S_ROT)]
    o += offs()[2:]
    o.append("s_waitcnt lgkmcnt(0)")
    o.append("s_add_u32 s8, s6, s3"); o.append("s_addc_u32 s9, s7, 0")
    o.append("s_add_u32 s4, s4, s35"); o.append("s_addc_u32 s5, s5, 0")
    o.append("s_mov_b32 s6, s18"); o.append("s_mov_b32 s7, s19")
    o += first_dma()
    o.append("s_add_u32 s16, s14, s35"); o.append("s_addc_u32 s17, s15, 0")
    o.append("s_add_u32 s12, s12, s3"); o.append("s_addc_u32 s13, s13, 0")
    o.append("s_mov_b32 s14, s10"); o.append("s_mov_b32 s15, s11")
    o.append("s_mov_b32 s%d, 0" % S_REDO)
    o.append("v_mov_b32 v%d, 0x7f800000" % V_NEGM)
    for t in range(1, 6): o.append("v_mov_b32 v%d, v%d" % (V_NEGM + 4 * t, V_NEGM))
    if STAMP: o += ["s_load_dwordx2 %s, s[0:1], 40" % sr(S_WS, 2), "s_waitcnt lgkmcnt(0)"]
    return o
ORD = int(opts.get("ord", 1))
def first_dma():
    if ORD == 1: return q_dma(0) + two_dma(S_KD, 0) + q_dma(1)
    return q_dma(0) + two_dma(S_KD, 0)
def codepf(T, tid):
    o = ["s_getpc_b64 s[34:35]", "L_pc:"]
    o.append("v_mov_b32 v%d, 0" % (T + 1))
    o.append("v_lshlrev_b32 v%d, 7, %s" % (T + 6, tid))
    for k in range(int(opts.get("npf", 1))):
        if k: o.append("v_add_u32 v%d, 0x8000, v%d" % (T + 6, T + 6))
        o.append("v_min_u32 v%d, L_fin-L_pc, v%d" % (T, T + 6))
        o.append("v_lshl_add_u64 %s, %s, 0, s[34:35]" % (vr(T + 2 + 2 * k, 2), vr(T, 2)))
        o.append("global_load_dword v%d, %s, off" % (V_P + 2 + k, vr(T + 2 + 2 * k, 2)))
    return o
def offs():
    o = []
    o.append("v_mbcnt_lo_u32_b32 v0, -1, 0"); o.append("v_mbcnt_hi_u32_b32 v0, -1, v0")
    o.append("s_and_b32 s%d, s%d, 1" % (S_T0, S_W))
    o.append("s_lshl_b32 s%d, s%d, 5" % (S_XM, S_T0))
    o.append("v_lshrrev_b32 v1, 4, v0")
    o.append("v_lshlrev_b32 v%d, 2, v1" % V_OFF)
    o.append("v_xor_b32 v%d, v%d, v0" % (V_OFF, V_OFF))
    o.append("v_and_b32 v%d, 15, v%d" % (V_OFF, V_OFF))
    o.append("v_lshlrev_b32 v%d, 4, v%d" % (V_OFF, V_OFF))
    o.append("v_lshl_add_u32 v%d, v1, 8, v%d" % (V_OFF, V_OFF))
    o.append("v_xor_b32 v%d, s%d, v%d" % (V_OFF, S_XM, V_OFF))
    o.append("v_xor_b32 v%d, 32, v%d" % (V_OFF2, V_OFF))
    o.append("s_and_b32 s%d, s%d, 2" % (S_T1, S_W))
    o.append("s_lshl1_add_u32 s%d, s%d, s%d" % (S_T0, S_T1, S_T0))
    o.append("s_lshl_b32 s%d, s%d, 10" % (S_T0, S_T0))
    o.append("s_add_u32 s%d, s%d, 8192" % (S_T1, S_T0))
    o.append("s_add_u32 s%d, s%d, 16384" % (S_KV, S_T0))
    o.append("s_mul_i32 s%d, s%d, 24576" % (S_QOFF, S_W))
    o.append("s_lshl_b32 s%d, s%d, 12" % (S_T2, S_W))
    return o
def common():
    o = ["L_restart:"]
    if ORD != 1: o += two_dma(S_VD, LDS_V)
    t = V_S
    for i in (0, 1, 4, 5, 8, 9): o.append("v_mov_b32 v%d, 0" % (V_SEL + i))
    o.append("v_bfe_u32 v%d, v0, 1, 3" % t)
    o.append("v_lshlrev_b32 v%d, 1, v1" % (t + 1))
    o.append("v_and_b32 v%d, 1, v0" % (t + 2)); o.append("v_lshlrev_b32 v%d, 4, v%d" % (t + 2, t + 2))
    o.append("v_mov_b32 v%d, 0x%x" % (t + 3, C_HI)); o.append("v_mov_b32 v%d, 0x%x" % (t + 4, C_LO))
    o.append("v_cmp_eq_u32 vcc, v%d, v%d" % (t, t + 1))
    o.append("v_lshlrev_b32 v%d, v%d, v%d" % (t + 3, t + 2, t + 3)); o.append("v_lshlrev_b32 v%d, v%d, v%d" % (t + 4, t + 2, t + 4))
    o.append("v_or_b32 v%d, 1, v%d" % (t + 1, t + 1))
    o.append("v_cndmask_b32 v%d, 0, v%d, vcc" % (V_SEL + 2, t + 3)); o.append("v_cndmask_b32 v%d, 0, v%d, vcc" % (V_SEL + 6, t + 4))
    o.append("v_cmp_eq_u32 vcc, v%d, v%d" % (t, t + 1))
    o.append("v_cndmask_b32 v%d, 0, v%d, vcc" % (V_SEL + 3, t + 3)); o.append("v_cndmask_b32 v%d, 0, v%d, vcc" % (V_SEL + 7, t + 4))
    o.append("v_and_b32 v%d, 3, v0" % t); o.append("v_lshlrev_b32 v%d, 2, v%d" % (t, t))
    o.append("v_lshrrev_b32 v%d, 1, v0" % (t + 1)); o.append("v_and_b32 v%d, 2, v%d" % (t + 1, t + 1))
    o.append("v_or_b32 v%d, v%d, v%d" % (t, t, t + 1))
    o.append("v_xor_b32 v%d, v%d, v1" % (t, t))
    o.append("v_lshlrev_b32 v%d, 4, v%d" % (t, t))
    o.append("v_and_b32 v%d, 15, v0" % (t + 1))
    o.append("v_lshl_add_u32 v%d, v%d, 8, v%d" % (V_KA, t + 1, t))
    for ks in range(1, 4): o.append("v_xor_b32 v%d, %d, v%d" % (V_KA + ks, 64 * ks, V_KA))
    o.append("v_and_b32 v%d, 12, v0" % t)
    o.append("v_and_b32 v%d, 1, v1" % (t + 1)); o.append("v_lshlrev_b32 v%d, 1, v%d" % (t + 1, t + 1))
    o.append("v_or_b32 v%d, v%d, v%d" % (t, t, t + 1))
    o.append("v_lshlrev_b32 v%d, 4, v%d" % (t, t))
    o.append("v_and_b32 v%d, 3, v0" % (t + 1)); o.append("v_lshlrev_b32 v%d, %d, v%d" % (t + 1, 4 if VMAP else 3, t + 1))
    o.append("v_xor_b32 v%d, v%d, v%d" % (t, t, t + 1))
    o.append("v_lshrrev_b32 v%d, 2, v0" % (t + 1))
    o.append("v_lshl_add_u32 v%d, v%d, 8, v%d" % (t, t + 1, t))
    o.append("v_add_u32 v%d, 0x%x, v%d" % (V_VA, LDS_V, t))
    for dt in range(1, NVA): o.append("v_xor_b32 v%d, %d, v%d" % (V_VA + dt, (64 if VMAP else 32) * dt, V_VA))
    o.append("v_and_b32 v%d, 3, v0" % t); o.append("v_cmp_eq_u32 vcc, 0, v%d" % t)
    o.append("v_mov_b32 v%d, 0x3f803f80" % (t + 1))
    o.append("s_or_b32 s%d, s%d, s%d" % (S_XM, S_XM, S_T2))
    o.append("v_cndmask_b32 v%d, 0, v%d, vcc" % (t, t + 1))
    for i in range(4): o.append("v_accvgpr_write_b32 a%d, v%d" % (A_ONE + i, t))
    for ks in range(4): o.append("v_xor_b32 v%d, s%d, v%d" % (V_QA + ks, S_XM, V_KA + ks))
    o.append("v_and_b32 v%d, 14, v0" % t); o.append("v_lshlrev_b32 v%d, 8, v%d" % (t, t))
    o.append("v_and_b32 v%d, 1, v0" % (t + 1)); o.append("v_lshl_add_u32 v%d, v%d, 6, v%d" % (t, t + 1, t))
    o.append("v_lshl_add_u32 v%d, v1, 4, v%d" % (t, t))
    o.append("v_accvgpr_write_b32 a%d, v%d" % (A_SA, t))
    if "fine" in flags: o += stamp(13)
    o.append("s_waitcnt vmcnt(8)")
    if "fine" in flags: o += stamp(14)
    o += q_read(0)
    o += two_dma(S_VD, LDS_V) if ORD == 1 else q_dma(1)
    o += schedule(sum([pm(0, k) + pc(0, k) for k in range(4)], []))[0]
    o.append("s_waitcnt vmcnt(8)")
    o += q_dma(2)
    if ORD == 3: o += ["s_waitcnt vmcnt(8)"] + q_dma(3)
    o.append("s_barrier")
    o += kreads(0, 0) + kreads(1, 1)
    o += stamp(1)
    o.append("s_cmp_eq_u32 s%d, 3" % S_W)
    o.append("s_cbranch_scc1 L_pro5")
    return o

def pm(t, ks):
    q = ar(A_Q + 16 * t + 4 * ks); D = V_D + 8 * (ks % 2)
    r = []
    for h in range(2):
        d = vr(D + 4 * h)
        r.append("%s %s, %s, %s, 0" % (MF, d, vr(V_SEL + 2 - 2 * h), q))
        r.append("%s %s, %s, %s, %s" % (MF, d, vr(V_SEL + 6 - 2 * h), q, d))
    return r
def pc(t, ks):
    D = V_D + 8 * (ks % 2)
    r = ["v_cvt_pk_bf16_f32 v%d, v%d, v%d" % (D + 2 * i, D + 2 * i, D + 2 * i + 1) for i in range(4)]
    return r + ["v_accvgpr_write_b32 a%d, v%d" % (A_Q + 16 * t + 4 * ks + i, D + 2 * i) for i in range(4)]
def rowmax(t, par=0):
    S = V_S + 8 * par; m, m2 = V_LS, V_LS + 1; N = V_NEGM + 4 * t
    o = ["v_max3_f32 v%d, v%d, v%d, v%d" % (m, S, S + 1, S + 2),
         "v_max3_f32 v%d, v%d, v%d, v%d" % (m2, S + 3, S + 4, S + 5),
         "v_max3_f32 v%d, v%d, v%d, v%d" % (m, m, S + 6, S + 7),
         "v_max_f32 v%d, v%d, v%d" % (m, m, m2),
         "v_mov_b32 v%d, v%d" % (m2, m),
         "v_permlane32_swap_b32 v%d, v%d" % (m, m2),
         "v_max_f32 v%d, v%d, v%d" % (m, m, m2),
         "v_mov_b32 v%d, v%d" % (m2, m),
         "v_permlane16_swap_b32 v%d, v%d" % (m, m2),
         "v_max_f32 v%d, v%d, v%d" % (m, m, m2),
         "v_min_f32 v%d, -v%d, v%d" % (N, m, N)]
    o += ["v_mov_b32 v%d, v%d" % (N + i, N) for i in range(1, 4)]
    return o

def inter(a, b, k):
    out = []; b = list(b)
    for x in a:
        out.append(x); out += b[:k]; del b[:k]
    return out + b
def nogap(x): return [y for y in x if y != "@gap"]
DEP = int(opts.get("dep", 3))
YW = "s_waitcnt vmcnt(%d)" % (4 * (DEP - 1))
CPRO = int(opts.get("C", 2))
TAILN = int(opts.get("T", 2))

class VM:
    def __init__(self, names): self.q = list(names)
    def issue(self, names): self.q += names
    def wait(self, name):
        last = max(i for i, x in enumerate(self.q) if x == name)
        n = len(self.q) - 1 - last
        self.q = self.q[last + 1:]
        return "s_waitcnt vmcnt(%d)" % n

def pipeline(units, p0, hooks, first_qk_done, prev_pv, last_qk, sumfirst=False):
    o = []
    n = len(units)
    H = lambda *k: hooks.get(k, [])
    def QK(k):
        buf, t, first = units[k]
        return H("bQK", k) + qk(buf, t, (p0 + k) % 2, first=first) + H("aQK", k)
    def SM(k):
        buf, t, first = units[k]
        par = (p0 + k) % 2
        r = []
        if first:
            r += rowmax(t, par) + ["v_add_f32 v%d, v%d, v%d" % (V_S + 8 * par + i, V_S + 8 * par + i, V_NEGM + 4 * t) for i in range(8)]
        return r + nogap(sm_seq(par))
    def PV(k):
        buf, t, first = units[k]
        blk = pv(buf, t, (p0 + k) % 2, first=first, sumfirst=sumfirst)
        return H("bPV", k) + blk[:2] + H("mPV", k) + blk[2:] + H("aPV", k)
    if not first_qk_done: o += QK(0)
    o += prev_pv + SM(0)
    for k in range(n):
        if k + 1 < n: o += QK(k + 1)
        elif last_qk is not None:
            o += last_qk; break
        o += PV(k)
        if k + 1 < n: o += SM(k + 1)
    return o

def auto_loads(seq, init, hooks, off, sync, late=lambda s_, k: False):
    for kind, key, fn in (("K", "aQK", kreads), ("V", "aPV", vreads)):
        cur = dict(init); lastuse = {}
        for k, (s_, t, buf) in enumerate(seq):
            if cur.get(buf) != s_:
                at = lastuse.get(buf, -1)
                if late(s_, k):
                    assert at <= k - 2
                    hooks.setdefault(("bPV" if kind == "K" else "aPV", k - 2), []).extend(sync(kind, s_) + fn(buf, off(s_)))
                else: hooks.setdefault((key, at), []).extend(fn(buf, off(s_)))
                cur[buf] = s_
            lastuse[buf] = k

def prologue(NQ):
    C = CPRO
    PEEL = C == 3
    NA = NQ if C <= 3 else 3
    seq = [(s_, t, s_) for t in range(NA) for s_ in (0, 1)]
    if C == 4:
        seq += [(s_, t, s_ % 2) for s_ in (2, 3) for t in range(NA)]
        for t in range(NA, NQ):
            seq += [(s_, t, s_ % 2) for s_ in ((2, 3, 0, 1) if (t - NA) % 2 == 0 else (0, 1, 2, 3))]
    if PEEL: seq += [(2, t, 0) for t in range(NQ)]
    seen = set(); units = []; firstk = {}
    for k, (s_, t, buf) in enumerate(seq):
        units.append((buf, t, t not in seen))
        if t not in seen: firstk[t] = k
        seen.add(t)
    n = len(seq)
    if C <= 3: pend = ["q%d" % t for t in range(3, NQ)] + ["kv2", "kv3", None]
    else: pend = ["kv2", "kv3"] + ["q%d" % t for t in range(3, NQ)] + ["kv4", "kv5", None]
    hooks = {}
    def add(key, lines): hooks.setdefault(key, []).extend(lines)
    LW = int(opts.get("lw", 1))
    for u in range(1, NQ):
        k = firstk[u]
        span = 2 if (C <= 3 or u < NA) else int(opts.get("span", 3))
        k0 = k - span
        P = [pm(u, i) + pc(u, i) for i in range(4)]
        W = ["@wait q%d" % u] + (stamp(7 + u) if "fine" in flags else []) + q_read(u) + ["@next"]
        if u == 1 and ORD != 1:
            W1 = W; P1 = P
        elif LW == 0:
            add(("bQK", k0), W); add(("aQK", k0), P[0] + P[1]); add(("aQK", k0 + 1), P[2] + P[3])
        else:
            add(("aQK", k0), W); add(("bQK", k0 + 1), P[0])
            if span == 2: add(("aQK", k0 + 1), P[1] + P[2] + P[3])
            else: add(("aQK", k0 + 1), P[1]); add(("bQK", k0 + 2), P[2]); add(("aQK", k0 + 2), P[3])
    VS_ = ["@wait v01"] + (stamp(15) if "fine" in flags else []) + ["@next", "s_barrier"]
    if ORD == 1: add(("bPV", 0), VS_ + vreads(0, 0) + vreads(1, 1))
    elif ORD == 2:
        add((opts.get("vpos", "aQK"), int(opts.get("vk", 0))), VS_ + vreads(0, 0) + vreads(1, 1))
        add(("bPV", 0), W1); add(("aPV", 0), P1[0] + P1[1] + P1[2] + P1[3])
    else:
        add(("bQK", 0), vreads(0, 0) + vreads(1, 1))
        add(("bPV", 0), W1); add(("aPV", 0), P1[0] + P1[1] + P1[2] + P1[3])
        pend.pop(0)
    synced = set()
    def sync(kind, s_):
        if s_ < 2 or (kind, s_) in synced: return []
        synced.add(("K", s_)); synced.add(("V", s_))
        return ["@wait v%d" % s_, "@next", "s_barrier"]
    firsts = {}
    for k, x in enumerate(seq): firsts.setdefault(x[0], k)
    if PEEL:
        assert SOLO and DEP == 3
        k2 = 2 * NQ
        add(("aQK", k2 - 2), stamp(2))
        add((opts.get("k2p", "bPV"), k2 - 2), ["@wait k2", "s_barrier"] + kreads(0, 2) + ["@kv"])
        add((opts.get("v2p", "bPV"), k2 - 1), ["@wait v2", "s_barrier"] + vreads(0, 2) + ["@kv"])
        ux = n - int(opts.get("h3", 3))
        add(("mPV", ux), ["@wait v3", "s_barrier"] + kreads(1, 3))
    else:
        auto_loads(seq, {0: 0, 1: 1}, hooks, lambda s_: s_, sync, lambda s_, k: firsts[s_] == k)
        ux = max(k for k in range(n) if seq[k][2] == 0)
        add(("aQK", ux), stamp(2))
        assert not EARLY or (SOLO and ORD == 1 and DEP == 3 and C == 2)
        add(("mPV", ux - 1), (["s_waitcnt vmcnt(63)"] if EARLY and NQ == 5 else []) + ["@kv"] * EARLY + ["@wait k%d" % C, "s_barrier"] + kreads(0, C) + (["@touch"] if "touch" in flags else []) + ["@kv"] * (DEP - 2 if not EARLY else 0))
        add(("mPV", ux), ["@wait v%d" % C, "s_barrier", "s_waitcnt lgkmcnt(0)"])
    st = (C // 2) % 4
    fin = ["s_mov_b32 s%d, 0x%x" % (S_XM, st * 0x4000)]
    fin += ["v_xor_b32 v%d, s%d, v%d" % (V_KA + i, S_XM, V_KA + i) for i in range(4 + NVA)]
    fin += ["s_mov_b32 s%d, 0x%x" % (S_XM, 0xc000 if st % 2 else 0x4000)]
    nper = 32 - TAILN - C
    fin += ["s_mov_b32 s%d, %d" % (S_CNT, (nper + 1) // 2)]
    fin += ["v_mov_b32 v%d, 0" % LS(i) for i in range(NVS)]
    add(("mPV" if PEEL else "aPV", ux), vreads(C % 2, C) + (["@kv"] if EARLY < 2 else []) + fin)
    o = pipeline(units, 0, hooks, False, [], qk(C % 2, 0, n % 2))
    vm = VM({1: ["q1"] * 4 + ["v01"] * 4 + ["q2"] * 4, 2: ["v01"] * 4 + ["q1"] * 4 + ["q2"] * 4, 3: ["q1"] * 4 + ["q2"] * 4 + ["q3"] * 4}[ORD])
    nkv = [2]
    def do_kv():
        i = nkv[0]; nkv[0] += 1
        vm.issue(["k%d" % i] * 2 + ["v%d" % i] * 2); return kv_dma()
    r = []
    for x in o:
        if x.startswith("@wait"): r.append(vm.wait(x.split()[1]))
        elif x == "@kv" and SOLO:
            if NQ == 5:
                if nkv[0] == (4 if C <= 3 else C + 2): r.append("s_and_b32 s%d, s%d, 0xffffe000" % (S_KV, S_KV))
                vm.issue(["kv%d" % nkv[0]] * 16); r += kv_full()
            nkv[0] += 1
        elif x == "@kv": r += do_kv()
        elif x == "@touch":
            vm.issue(["touch"]); r += ["s_sub_u32 s%d, s%d, 1024" % (S_QOFF, S_QOFF), "buffer_load_dword a253, v%d, %s, s%d offen nt" % (V_OFF, sr(S_OD), S_QOFF)]
        elif x == "@next":
            nx = pend.pop(0)
            if nx is None: continue
            if nx[0] == "q": vm.issue([nx] * 4); r += q_dma(int(nx[1:]))
            else:
                assert int(nx[2:]) == nkv[0]; r += do_kv()
        else: r.append(x)
    assert not pend and nkv[0] == C + DEP + 1 and len([x for x in vm.q if x != "touch"]) == ((0 if NQ == 6 else 48) if PEEL else 4 * DEP if not SOLO else 4 if NQ == 6 else 4 + 16 * (DEP - 1)), (pend, nkv, vm.q)
    o, tc = schedule(r, dsgap=int(opts.get("dsp", 4)))
    print("prologue", NQ, "sched est", tc, "waits", " ".join(x[-3:] for x in o if "vmcnt" in x))
    o.append("s_nop 1")
    o += stamp(3)
    return o

def slot(mf, par, reads, misc, vsum=None):
    ex, cv = sm_items(par)
    n = len(mf)
    fill = [[] for _ in range(n)]
    S = V_S + 8 * par
    if vsum is None:
        epos = [1, 2, 4, 5, 8, 9, 12, 13] if n == 17 else [1, 2, 4, 5, 7, 8, 11, 12]
        cpos = [3, 6, 10, 14] if n == 17 else [3, 6, 9, 13]
        free = [g for g in range(n) if g not in epos and g not in cpos]
        rpos = sorted(cpos + [free[2], free[2]]) if len(reads) > 4 else cpos
        for e, g in zip(ex, epos): fill[g].append(e)
        for r, g in zip(reads, rpos): fill[g].append(r)
        for c, g in zip(cv, cpos): fill[g].append(c)
        if len(reads) > 4: free.remove(free[2])
    else:
        assert not reads
        ad = ["v_add_f32 v%d, v%d, v%d" % (vsum, vsum, S + i) for i in range(8)]
        o0 = 1
        seq = [[ex[0]], [ex[1]], [ex[2]], [cv[0], ad[0]], [ex[3]], [ad[1], ad[2]], [ex[4]], [cv[1], ad[3]], [ex[5]], [ex[6]], [cv[2], ad[4]], [ex[7]], [ad[5], ad[6]], [cv[3], ad[7]]]
        for i, s in enumerate(seq): fill[o0 + i] += s
        free = [0] + list(range(o0 + len(seq), n))
    assert len(misc) <= len(free), (len(misc), free)
    for grp, g in zip(misc, free):
        if grp: fill[g] = list(grp) + fill[g]
    out = []
    for i in range(n):
        out.append(mf[i]); out += fill[i]
    return out

def loop_body(NQ):
    ev, od = loop_halves(NQ)
    return ev + od if TAILN % 2 == 0 else od + ev
_LH = {}
def loop_halves(NQ):
    if (NQ == 6 and "auto" not in flags) or (NQ == 5 and not SOLO): return loop_halves_man(NQ)
    if NQ in _LH: return _LH[NQ]
    nvs = NVS if NQ == 6 else 0
    VS = VSET if NQ == 6 else []
    lasth = 1 if TAILN % 2 == 0 else 0
    ypos = float(opts.get("y", 2.0)) if NQ == 6 else float(opts.get("y5", 1.0))
    lst = []
    for half, s_ in enumerate((2, 3)):
        buf = s_ % 2
        par = lambda t: (s_ * NQ + t) % 2
        mfb = []
        o = []
        if half:
            o += ["v_xor_b32 v%d, s%d, v%d" % (V_KA + i, S_XM, V_KA + i) for i in range(4 + NVA)]
            o += ["s_xor_b32 s%d, s%d, 0x8000" % (S_XM, S_XM)]
        d = kv_dma(); kr = kreads(1 - buf, 1 - half); vrd = vreads(1 - buf, 1 - half)
        Y = [yw(NQ), "s_barrier"] + kr + d[0:2] + vrd[0:4] + d[2:4] + vrd[4:8] + d[4:5] + vrd[8:12] + d[5:7] + vrd[12:16]
        if SOLO and NQ == 6: Y = [yw(NQ), "s_barrier"] + kr + vrd
        if SOLO and NQ == 5: Y = [yw(NQ), "s_barrier"] + merge(kr + vrd, kv_full())
        if half == lasth: Y += ["s_sub_u32 s%d, s%d, 1" % (S_CNT, S_CNT), "s_cmp_lg_u32 s%d, 0" % S_CNT]
        for t in range(NQ):
            pvb = pv(buf, t - 1, par(t - 1), msum=(t - 1 not in VS)) if t > 0 else pv(1 - buf, NQ - 1, par(-1), msum=(NQ - 1 not in VS))
            qkb = qk(buf, t + 1, par(t + 1)) if t < NQ - 1 else qk(1 - buf, 0, par(NQ))
            sm = nogap(sm_seq(par(t)))
            if t in VS: sm += ["v_add_f32 v%d, v%d, v%d" % (LS(VS.index(t)), LS(VS.index(t)), V_S + 8 * par(t) + i) for i in range(8)]
            if t == 1: o.append("@lg " + ar(A_V + 32 * buf, 32))
            if t == NQ - 1: qkb = ["@lg " + ar(A_K + 32 * (1 - buf), 32)] + qkb
            blk = pvb + sm + qkb
            if int(ypos) == t:
                nth = int(round((ypos - t) * 16))
                idx = [i for i, x in enumerate(blk) if x.startswith("v_mfma")][nth]
                blk = blk[:idx + 1] + Y + blk[idx + 1:]
            o += blk
        lst.append(o)
    kw = dict(urg=False, dmac=8, dsgap=int(opts.get("dsg", 16)), mflat=int(opts.get("mfl", 0)))
    res = [[], []]
    if NQ == 5:
        for half in range(2):
            pm_ = [x for x in lst[1 - half] if x.startswith("v_mfma")]
            best = None
            for th in (24, 40, 60, 80, 100, 130, 160):
                for seed in [None] + list(range(4)):
                    r, tc = schedule(lst[half], pre=pm_[-8:], sentinel=pm_[0], urg=False, dmac=8, dsgap=int(opts.get("dsg5", 12)), pairing=th, seed=seed)
                    if best is None or tc < best[1]: best = (r, tc)
            r, tc = best
            o_, e_ = process([("p", pm_[-8:], False), ("b", r + [pm_[0]], True)])
            res[half] = o_["b"][:-1]
            print("loop half", NQ, half, "est", tc)
        _LH[NQ] = res
        return res
    for half in range(2):
        pm_ = [x for x in lst[1 - half] if x.startswith("v_mfma")]
        pre = []
        for x in pm_[-5:]: pre += [x, "s_nop 0"] if "optpre" in flags else [x]
        body = lst[half] + (["s_cbranch_scc1 L_loop%d" % NQ] if half == lasth else [])
        best = None
        for th in (24, 40, 60, 80, 100, 130, 160):
            for seed in [None] + list(range(int(opts.get("seeds", 6)))):
                r, tc = schedule(lst[half], pre=pre, pairing=th, seed=seed, sentinel=pm_[0], **kw)
                mi = [i for i, x in enumerate(r) if x.startswith("v_mfma")][-5:] + [len(r) + (1 if half == lasth else 0)]
                if "optpre" in flags and any(mi[j + 1] - mi[j] < 2 for j in range(5)): tc += 500
                if half == lasth and (len(r) - mi[4] > 2 or r[-1].startswith("v_exp") or r[-1].startswith("buffer")): tc += 4
                if best is None or tc < best[1]: best = (r, tc, th, seed)
        res[half] = best[0]
        print("loop half", NQ, half, "est", best[1:])
    _LH[NQ] = res
    return res
def loop_halves_man(NQ):
    res = []
    lasth = 1 if TAILN % 2 == 0 else 0
    par = lambda s, t: (s * NQ + t) % 2
    nvs = NVS if NQ == 6 else 0
    ysl = NQ - 4
    for half, s in enumerate((2, 3)):
        buf = s % 2
        o = []
        rd = kreads(1 - buf, 1 - half) + vreads(1 - buf, 1 - half)
        d = kv_dma() if not SOLO else []
        x = ["v_xor_b32 v%d, s%d, v%d" % (V_KA + i, S_XM, V_KA + i) for i in range(4 + NVA)]
        for t in range(NQ):
            pvb = pv(buf, t - 1, par(s, t - 1), msum=(t - 1 >= nvs)) if t > 0 else pv(1 - buf, NQ - 1, par(s - 1, NQ - 1))
            qkb = qk(buf, t + 1, par(s, t + 1)) if t < NQ - 1 else qk(1 - buf, 0, par(s + 1, 0))
            reads = []
            if t >= ysl: reads = rd[:6]; rd = rd[6:]
            misc = []
            wv = ["s_waitcnt lgkmcnt(0)"]
            if NQ == 6:
                if t == 0:
                    misc = [x[0:2], x[2:4], x[4:5] + wv] if half else [None, None, wv]
                    if nvs == 0: misc = [None, None] + misc
                if t == 1:
                    misc = [x[5:7], x[7:9]] if half else []
                if t == 2:
                    misc = [[yw(NQ), "s_barrier"], d[0:1] + (x[9:10] if half else []), x[10:12] if half else None]
                if t == 3: misc = [d[1:2], d[2:3], d[3:4] + (["s_xor_b32 s%d, s%d, 0x8000" % (S_XM, S_XM)] if half else [])]
                if t == 4: misc = [d[4:5], d[5:6], d[6:7]]
                if t == 5: misc = [None, ["s_waitcnt lgkmcnt(2)"]] + ([["s_sub_u32 s%d, s%d, 1" % (S_CNT, S_CNT)], ["s_cmp_lg_u32 s%d, 0" % S_CNT]] if half == lasth else [])
            else:
                if t == 0: misc = [x[0:2], x[2:4], x[4:6], x[6:8], x[8:9] + wv] if half else [None, None, None, None, wv]
                if t == 1: misc = [[yw(NQ), "s_barrier"], d[0:1] + (x[9:10] if half else []), x[10:12] if half else None]
                if t == 2: misc = [d[1:2], d[2:3], d[3:4] + (["s_xor_b32 s%d, s%d, 0x8000" % (S_XM, S_XM)] if half else [])]
                if t == 3: misc = [d[4:5], d[5:6], d[6:7]]
                if t == 4: misc = [None, ["s_waitcnt lgkmcnt(2)"]] + ([["s_sub_u32 s%d, s%d, 1" % (S_CNT, S_CNT)], ["s_cmp_lg_u32 s%d, 0" % S_CNT]] if half == lasth else [])
            o += slot(pvb + qkb, par(s, t), reads, misc, vsum=(LS(t) if t < nvs else None))
        assert not rd
        res.append(o)
    return res

SA, ACC = V_OFF, 15
A_SA = 252
def epi_setup():
    o = ["v_accvgpr_read_b32 v%d, a%d" % (SA, A_SA)]
    o.append("v_mov_b32 v%d, 0" % ACC)
    o.append("s_mul_i32 s%d, s%d, 24576" % (S_QOFF, S_W))
    o.append("s_mov_b32 vcc_lo, 0x55555555"); o.append("s_mov_b32 vcc_hi, 0x55555555")
    return o
def vsum_reduce(t):
    x = LS(VSET.index(t)); T = V_NEGM + 4 * t + 2
    return ["v_mov_b32 v%d, v%d" % (T, x), "v_permlane32_swap_b32 v%d, v%d" % (x, T), "v_add_f32 v%d, v%d, v%d" % (x, x, T),
            "v_mov_b32 v%d, v%d" % (T, x), "v_permlane16_swap_b32 v%d, v%d" % (x, T), "v_add_f32 v%d, v%d, v%d" % (x, x, T)]
DPPX = "quad_perm:[1,0,3,2] row_mask:0xf bank_mask:0xf"
def epi(t, vs, pk=False):
    E_L = V_NEGM + 4 * t
    h = ["v_accvgpr_read_b32 v%d, a%d" % (E_L, A_L + 4 * t)]
    if vs: h.append("v_add_f32 v%d, v%d, v%d" % (E_L, E_L, LS(VSET.index(t))))
    h.append("v_add_f32 v%d, v%d, v%d" % (ACC, ACC, E_L))
    h.append("v_rcp_f32 v%d, v%d" % (E_L, E_L))
    m = []; sw = []; x = []
    pol = STL if t == LASTT[0] else STNT
    for s in range(4):
        b = V_O + 32 * t + 8 * s
        g = []
        if pk:
            for i in range(0, 8, 2): g.append("v_pk_mul_f32 %s, %s, %s op_sel_hi:[1,0]" % (vr(b + i, 2), vr(b + i, 2), vr(E_L, 2)))
        else:
            for i in range(8): g.append("v_mul_f32 v%d, v%d, v%d" % (b + i, b + i, E_L))
        for i in range(4): g.append("v_cvt_pk_bf16_f32 v%d, v%d, v%d" % (b + i, b + 2 * i, b + 2 * i + 1))
        m.append(g)
        sw.append([] if VMAP else ["v_permlane16_swap_b32 v%d, v%d" % (b, b + 2), "v_permlane16_swap_b32 v%d, v%d" % (b + 1, b + 3)])
    for p in range(2):
        X = V_O + 32 * t + 16 * p; Y = X + 8
        A = ["v_cndmask_b32_dpp v%d, v%d, v%d, vcc %s" % (X + 4 + i, Y + i, X + i, DPPX) for i in (0, 2, 1, 3)] + ["s_not_b64 vcc, vcc"]
        B = ["v_cndmask_b32_dpp v%d, v%d, v%d, vcc %s" % (Y + i, X + i, Y + i, DPPX) for i in range(4)] + ["s_not_b64 vcc, vcc"]
        if "nost" not in flags:
            A.append("buffer_store_dwordx4 %s, v%d, %s, s%d offen offset:%d%s" % (vr(X + 4), SA, sr(S_OD), S_QOFF, 128 * p, pol))
            B.append("buffer_store_dwordx4 %s, v%d, %s, s%d offen offset:%d%s" % (vr(Y), SA, sr(S_OD), S_QOFF, 128 * p + 256, pol))
        if p == 1: B.append("s_add_u32 s%d, s%d, 4096" % (S_QOFF, S_QOFF))
        x.append((A, B))
    return h, m, sw, x
LASTT = [None]
def epi_body(m, sw, x):
    k = 2
    return (m[1][:k] + sw[0] + m[1][k:] + m[2][:k] + sw[1] + m[2][k:k + 2] + x[0][0] + m[2][k + 2:] + m[3][:k] + sw[2] + x[0][1][:3] + m[3][k:]
            + x[0][1][3:] + sw[3]), x[1][0] + x[1][1]
def epi_flat(t, vs):
    h, m, sw, x = epi(t, vs)
    body, fin = epi_body(m, sw, x)
    return h + m[0] + body, fin

def tail(NQ):
    LASTT[0] = NQ - 1
    nvs = NVS if NQ == 6 else 0
    if TAILN == 2:
        seq = [(30, 0, 0), (30, 1, 0), (31, 0, 1), (31, 1, 1)] + [(30 + b, t, b) for t in range(2, NQ) for b in (0, 1)]
        if "tq" in flags: seq = [(30 + b, t, b) for t in range(NQ) for b in (0, 1)]
        init = {0: 30}; off = lambda s_: s_ - 30; s0 = 30; w = 4 * (DEP - 1)
    else:
        e = max(2, NQ - int(opts.get("post", 3)))
        seq = [(29, t, 1) for t in range(e)] + [(30, 0, 0), (30, 1, 0), (31, 0, 1), (31, 1, 1)]
        seq += [(30 + b, t, b) for t in range(2, e) for b in (0, 1)]
        seq += [(30, t, 0) for t in range(e, NQ)]
        seq += [x for t in range(e, NQ) for x in ((31, t, 1), (29, t, 0))]
        init = {1: 29}; off = lambda s_: s_ - 28; s0 = 29; w = 4 * (DEP - 2)
    n = len(seq)
    p0 = (s0 * NQ) % 2
    hooks = {}
    def add(key, lines): hooks.setdefault(key, []).extend(lines)
    auto_loads(seq, init, hooks, off, lambda kind, s_: [])
    ppv = pv(1 - s0 % 2, NQ - 1, 1 - p0)
    pre = ppv[:1] + [yw(NQ, TAILN - 1), "s_barrier"] + hooks.pop(("aQK", -1)) + ppv[1:] + hooks.pop(("aPV", -1))
    pre += epi_setup()
    DL = int(opts.get("dl", 2))
    lastk = {t: k for k, (s_, t, b) in enumerate(seq)}
    dead = {}; prevd = -1
    for t in sorted(lastk, key=lambda t: lastk[t]):
        k = lastk[t]
        isv = NQ == 6 and t in VSET
        if isv: add(("aQK", k), vsum_reduce(t))
        h, m, sw, x = epi(t, isv, pk=True)
        if k == n - 1: m[0] = epi(t, isv)[1][0]
        else:
            h = h + ["\n".join(sum([g[:4] for g in m], []))]
            m = [g[4:] for g in m]
        e_ = h + m[0] + sw[0] + m[1] + sw[1] + x[0][0] + x[0][1] + m[2] + sw[2] + m[3] + sw[3] + x[1][0] + x[1][1]
        e_[-1] += " ; tag=e%d" % t
        add(("aPV", k), e_)
        if "dls" in opts:
            c = opts["dls"][t]
            hu = int(c)
            key = ("bPV", k + hu // 2) if hu % 2 == 0 else ("bQK", k + 2 + hu // 2)
            if key[1] < n - (1 if key[0] == "bPV" else 0): add(key, ["@after e%d" % t])
        else:
            d = max(k + DL, prevd + 1); prevd = d
            if d < n - 1: add(("bPV", d), ["@after e%d" % t])
    o = pipeline([(b, t, False) for (s_, t, b) in seq], p0, hooks, True, pre, None, sumfirst=True)
    r = []; pendtag = None
    for x in o:
        if x.startswith("@after"): pendtag = x.split()[1]
        else:
            r.append(x + (" ; after=" + pendtag if pendtag else "")); pendtag = None
    o, tc = schedule(r, pre=loop_body(NQ), dsgap=int(opts.get("dst", 16)))
    print("tail", NQ, "sched est", tc)
    o = stamp(4) + o + stamp(5)
    o += stamp(6)
    o.append("s_lshl_b32 s%d, s%d, 13" % (S_T0, S_W)); o.append("s_add_u32 s%d, s%d, 0x%x" % (S_T0, S_T0, LDS_X))
    o.append("s_mov_b32 s%d, 0x%x" % (S_T1, THRESH))
    o.append("v_cmp_ngt_f32 vcc, s%d, v%d" % (S_T1, ACC))
    o.append("s_cmp_lg_u64 vcc, 0")
    o.append("s_cselect_b32 s%d, 1, 0" % S_T1)
    o.append("v_mbcnt_lo_u32_b32 v4, -1, 0"); o.append("v_mbcnt_hi_u32_b32 v4, -1, v4")
    o.append("v_mov_b32 v5, s%d" % S_T1)
    o.append("v_mov_b32 v6, s%d" % S_T0)
    o.append("ds_write_b32 v6, v5 offset:6144")
    o.append("v_and_b32 v6, 3, v4")
    o.append("v_lshlrev_b32 v6, 13, v6")
    o.append("v_add_u32 v6, 0x%x, v6" % LDS_X)
    o.append("s_waitcnt lgkmcnt(0)")
    o.append("s_barrier")
    o.append("ds_read_b32 v5, v6 offset:6144")
    o.append("s_waitcnt lgkmcnt(0)")
    o.append("v_cmp_ne_u32 vcc, 0, v5")
    o.append("s_cmp_lg_u32 s%d, 0" % S_REDO)
    o.append("s_cbranch_scc1 L_fin")
    o.append("s_branch L_fin" if "noredo" in flags else "s_cbranch_vccz L_fin")
    return o

def redo(NQ):
    o = ["s_waitcnt vmcnt(0)", "s_barrier", "s_mov_b32 s%d, 1" % S_REDO]
    M = V_O + 64; AD = V_KA + 2
    o.append("v_and_b32 v%d, 15, v4" % AD); o.append("v_lshlrev_b32 v%d, 8, v%d" % (AD, AD))
    o.append("v_lshrrev_b32 v5, 4, v4"); o.append("v_lshl_add_u32 v%d, v5, 4, v%d" % (AD, AD))
    for t in range(NQ): o.append("v_mov_b32 v%d, 0xff800000" % (M + t))
    o.append("s_mov_b32 s%d, 0" % S_T0)
    body = []
    for ks in range(4):
        body.append("buffer_load_dwordx4 %s, v%d, %s, s%d offen offset:%d" % (ar(A_K + 4 * ks), AD, sr(S_KD), S_T0, 64 * ks))
    body.append("s_waitcnt vmcnt(0)")
    for t in range(NQ):
        d = vr(V_O + 4 * t)
        for ks in range(4):
            body.append("%s %s, %s, %s, %s" % (MF, d, ar(A_K + 4 * ks), ar(A_Q + 16 * t + 4 * ks), d if ks else "0"))
    body.append("s_nop 7")
    for t in range(NQ):
        b = V_O + 4 * t
        body.append("v_max3_f32 v%d, v%d, v%d, v%d" % (M + t, M + t, b, b + 1))
        body.append("v_max3_f32 v%d, v%d, v%d, v%d" % (M + t, M + t, b + 2, b + 3))
    body.append("s_add_u32 s%d, s%d, 4096" % (S_T0, S_T0))
    body.append("s_cmp_lt_u32 s%d, 0x40000" % S_T0)
    body.append("s_cbranch_scc1 L_max%d" % NQ)
    post = []
    for t in range(NQ):
        m, m2 = M + t, 5
        post += ["v_mov_b32 v%d, v%d" % (m2, m), "v_permlane32_swap_b32 v%d, v%d" % (m, m2), "v_max_f32 v%d, v%d, v%d" % (m, m, m2),
                 "v_mov_b32 v%d, v%d" % (m2, m), "v_permlane16_swap_b32 v%d, v%d" % (m, m2), "v_max_f32 v%d, v%d, v%d" % (m, m, m2),
                 "v_sub_f32 v%d, 0, v%d" % (V_NEGM + 4 * t, m)]
    post += offs() + first_dma()
    post.append("s_branch L_restart")
    return o, body, post

def fin():
    o = ["L_fin:"]
    if STAMP:
        o.append("s_waitcnt vmcnt(0)")
        o += stamp(7)
        if "pad" in opts:
            o.append("s_mov_b32 s80, %d" % (int(opts["pad"]) * 100))
            if "pb" in opts:
                cyc = 0 if "pcyc" in flags else 2
                o.append("s_sub_u32 s81, s%d, s%d" % (S_ST + 4 * int(opts["pb"]) + cyc, S_ST + 4 * int(opts.get("pa", 0)) + cyc))
                if "pcyc" in flags: o.append("s_lshr_b32 s81, s81, 4")
                o.append("s_add_u32 s80, s80, s81")
            o.append("L_spin:")
            o.append("s_memrealtime s[82:83]"); o.append("s_waitcnt lgkmcnt(0)")
            o.append("s_sub_u32 s81, s82, s%d" % (S_ST + 2))
            o.append("s_cmp_lt_u32 s81, s80"); o.append("s_cbranch_scc1 L_spin")
            o.append("s_branch L_end")
        w = int(opts.get("sw", 0))
        o.append("s_cmp_lg_u32 s%d, %d" % (S_W, w)); o.append("s_cbranch_scc1 L_end")
        o.append("s_lshl_b32 s3, s2, 9")
        o.append("s_add_u32 s%d, s%d, s3" % (S_WS, S_WS)); o.append("s_addc_u32 s%d, s%d, 0" % (S_WS + 1, S_WS + 1))
        n = nstamp[0]
        for i in range(4 * n): o.append("v_mov_b32 v%d, s%d" % (64 + i, S_ST + i))
        o.append("v_mov_b32 v1, 0"); o.append("s_mov_b64 exec, 1")
        for i in range(n): o.append("global_store_dwordx4 v1, %s, %s offset:%d" % (vr(64 + 4 * i), sr(S_WS, 2), 16 * i))
    o.append("L_end:"); o.append("s_endpgm")
    return o

su = setup(); cm = common()
code = None; errs = []
for NQ in (6, 5):
    ev, od = loop_halves(NQ)
    br = ["s_cbranch_scc1 L_loop%d" % NQ]
    r1, rb, r2 = redo(NQ)
    pro = prologue(NQ)
    if TAILN % 2 == 0 and CPRO % 2 == 1:
        pro = pro + ["s_branch L_odd%d" % NQ]
        lp = [("od", od + br, False), ("ev", ev, False)] * 2 + [("od", od + br, False)]
    elif TAILN % 2 == 0:
        lp = [("ev", ev, False), ("od", od + br, False)] * 2
    else:
        pro = pro + ["s_branch L_even%d" % NQ]
        lp = [("ev", ev + br, False), ("od", od, False)] * 2 + [("ev", ev + br, False)]
    segs = [("su", su, True), ("cm", cm, True), ("pro", pro, True)] + lp + [
            ("tail", tail(NQ), True), ("r1", r1, True), ("rb", rb, False), ("rb", rb, False), ("r2", r2, True), ("cm", cm, True)]
    out, e = process(segs)
    errs += ["NQ%d: %s" % (NQ, x) for x in e]
    if code is None: code = out["su"] + out["cm"]
    else: code.append("L_pro5:")
    code += out["pro"] + [".p2align 6", "L_loop%d:" % NQ]
    code += (out["ev"] + ["L_odd%d:" % NQ] + out["od"]) if TAILN % 2 == 0 else (out["od"] + ["L_even%d:" % NQ] + out["ev"])
    code += out["tail"] + out["r1"] + ["L_max%d:" % NQ] + out["rb"] + out["r2"]
code += fin()
if "force" not in flags:
    for e in errs[:10]: print("ERR", e)
    if errs: sys.exit(1)
hdr = open("standalone__mha_softmax__near_ridge.s.ref").read().split("; Override launch")[0]
L = hdr.rstrip("\n").split("\n")
L.append("; @launch grid=(256,1,1) block=(256,1,1) lds=163840")
L += """;
; Attention forward, one workgroup (4 waves, one per SIMD) per (batch, head); written by a generator script.
;  * 368 query rows = 23 tiles of 16: waves 0-2 own 6 tiles, wave 3 owns 5 tiles and streams K/V for everybody.
;  * K/V arrive by LDS-DMA in 32-key sub-tiles (8-slot ring, XOR-swizzled source), one barrier per sub-tile.
;  * 16x16x32 bf16 MFMA: S^T = K Q^T (Q pre-scaled by log2(e)/sqrt(D)), P = exp2(S^T - m), O^T += V^T P,
;    row sums by a ones-row MFMA or VALU adds; m enters as the C operand of the first MFMA of each chain.
;  * Softmax max guard: m is the row max over the first 32 keys (never above the true max, so no extra
;    underflow). The final row sums bound every P; if any is not below 2^24 (or is NaN) the workgroup takes
;    the fallback: it computes the true row max over all keys (L_max*) and runs the whole pass again with it.
;  * The first instructions pull the kernel's own code into L2 so that the straight-line parts do not
;    stall on instruction fetch.""".split("\n")
if STAMP: L.append("; nstamps %d" % nstamp[0]); L.append("; variant: " + variant)
L += ['.amdgcn_target "amdgcn-amd-amdhsa--gfx950"', ".text", ".globl " + NAME, ".p2align 8", ".type %s,@function" % NAME, NAME + ":"]
for c in code: L.append(c if c.endswith(":") or c.startswith(".") else "    " + c)
L += ['.section .rodata,"a"', ".p2align 6", ".amdhsa_kernel " + NAME,
      "  .amdhsa_next_free_vgpr 512", "  .amdhsa_next_free_sgpr 102", "  .amdhsa_accum_offset 256",
      "  .amdhsa_group_segment_fixed_size 0", "  .amdhsa_kernarg_size 48", "  .amdhsa_user_sgpr_count 2",
      "  .amdhsa_user_sgpr_kernarg_segment_ptr 1", "  .amdhsa_system_sgpr_workgroup_id_x 1", ".end_amdhsa_kernel"]
open(sys.argv[1], "w").write("\n".join(L) + "\n")
```

```python
from chk import parse
from chk2 import need_between
STC = [36]
WFREE = [1]
def icost(I):
    if "cost" in I: return I["cost"]
    if "grp" in I: return 4 * len(I["grp"]) + 12
    if I["kind"] == "mfma": return 8
    if I.get("trans") or I.get("perm"): return 8
    if I["kind"] in ("dma", "vml"): return 8
    if I["kind"] == "vms": return STC[0]
    if I["kind"] == "dsw": return 20
    return 4
SCC = ("s", "scc")
def schedule(lines, pre=(), dslat=130, pin_waits=True, urg=True, dmac=8, barc=4, dsgap=16, mflat=0, pairing=0, seed=None, sentinel=None):
    ins = []
    if sentinel: lines = list(lines) + [sentinel]
    for l in lines:
        if l.startswith("@lg "):
            from chk import regs
            rr = sum([regs(x) for x in l.split()[1:]], [])
            I = dict(op="s_mov_lg", text=l, defs=rr, uses=rr, kind="salu", srcC=[], srcAB=[], lg=True)
        elif "\n" in l:
            parts = [parse(x) for x in l.split("\n")]
            I = dict(parts[0]); I["defs"] = sum([p["defs"] for p in parts], []); I["uses"] = sum([p["uses"] for p in parts], [])
            I["grp"] = parts
        else: I = parse(l)
        I["line"] = l
        op = I["op"]
        if I["kind"] == "salu" and not op.startswith("s_mov") and op not in ("s_barrier",) and not op.startswith("s_bitset"):
            I["defs"] = I["defs"] + [SCC]
            if op.startswith("s_addc") or op.startswith("s_cselect") or op.startswith("s_cbranch"): I["uses"] = I["uses"] + [SCC]
        if "vcc" in l:
            if op.startswith("v_cndmask"): I["uses"] = I["uses"] + [("s", "vcc")]
            if "vcc_lo" in l or "vcc_hi" in l: I["defs"] = I["defs"] + [("s", "vcc")]; I["uses"] = I["uses"] + [("s", "vcc")]
        ins.append(I)
    n = len(ins)
    preds = [set() for _ in range(n)]
    lat = {}
    lastw = {}; readers = {}
    lastmem = None; lastmf = None; lastds = None
    for i, I in enumerate(ins):
        for r in I["uses"]:
            if r in lastw:
                preds[i].add(lastw[r])
                if ins[lastw[r]]["kind"] == "dsr": lat[(lastw[r], i)] = dslat
                if ins[lastw[r]]["kind"] == "mfma" and I["kind"] == "valu" and mflat: lat[(lastw[r], i)] = mflat
        for r in I["defs"]:
            if r in lastw: preds[i].add(lastw[r])
            for x in readers.get(r, ()): preds[i].add(x)
        for r in I["uses"]: readers.setdefault(r, []).append(i)
        for r in I["defs"]: lastw[r] = i; readers[r] = []
        mem = I["kind"] in ("dsr", "dsw", "dma", "vml", "vms", "wait", "smem") or I["op"] == "s_barrier"
        if mem:
            if lastmem is not None: preds[i].add(lastmem)
            lastmem = i
        if I["kind"] in ("dsr", "dma"):
            if lastds is not None:
                preds[i].add(lastds); lat[(lastds, i)] = max(lat.get((lastds, i), 0), dsgap)
            lastds = i
        if I["kind"] == "mfma":
            if lastmf is not None: preds[i].add(lastmf)
            lastmf = i
        if pin_waits and (I["kind"] in ("wait", "smem") or I["op"] == "s_barrier") and lastmf is not None: preds[i].add(lastmf)
        preds[i].discard(i)
    if sentinel: preds[n - 1] |= set(range(n - 1))
    import re
    tags = {}
    for i, I in enumerate(ins):
        m = re.search(r"tag=(\w+)", I["line"])
        if m: tags[m.group(1)] = i
        m = re.search(r"after=(\w+)", I["line"])
        if m: preds[i].add(tags[m.group(1)])
        I["line"] = I["line"].split(";")[0].rstrip()
    urgent = [False] * n
    for i in range(n - 1, -1, -1):
        if ins[i]["kind"] == "dma": ins[i]["cost"] = dmac
        if ins[i]["op"] == "s_barrier": ins[i]["cost"] = barc
        if ins[i]["kind"] in (("dma", "vms", "wait") if urg else ("wait",)) or ins[i]["op"] == "s_barrier": urgent[i] = True
        if urgent[i] and ins[i]["kind"] in ("dma", "dsr", "salu") and ins[i]["op"] != "s_barrier":
            for p in preds[i]:
                if ins[p]["kind"] in ("dsr", "salu"): urgent[p] = True
    succs = [[] for _ in range(n)]
    for i in range(n):
        for p in preds[i]: succs[p].append(i)
    prio = [0] * n
    for i in range(n - 1, -1, -1):
        best = 0
        for s in succs[i]:
            w = lat.get((i, s), 0)
            nd, _ = need_between(ins[i], ins[s])
            w = max(w, 4 * nd + icost(ins[i]), 16 if ins[i]["kind"] == "mfma" and ins[s]["kind"] == "mfma" else 0)
            best = max(best, w + prio[s])
        prio[i] = max(best, icost(ins[i]))
    if seed is not None:
        import random
        rnd = random.Random(seed)
        for i in range(n):
            if ins[i]["kind"] != "mfma": prio[i] += rnd.randint(-40, 40)
    nops = [0]
    hist = [p for p in (parse(l) for l in pre) if p][-30:]
    done_at = {}
    left = [len(preds[i]) for i in range(n)]
    ready = [i for i in range(n) if left[i] == 0]
    out = []; t = 0; lastm = -100; cntout = [0]
    def deficit(I):
        d = 0; short = 0
        for A in reversed(hist):
            nd, _ = need_between(A, I)
            short = max(short, nd - d)
            d += A["n"] if A["kind"] == "nop" else 1
            if d >= 12: break
        return short
    def stall(i):
        s = 4 * max(0, deficit(ins[i]))
        for p in preds[i]:
            if (p, i) in lat: s = max(s, done_at[p] + lat[(p, i)] - t)
        if ins[i]["kind"] == "mfma" or "grp" in ins[i]: s = max(s, lastm + 16 - t)
        return max(s, 0)
    def ccost(i):
        I = ins[i]; k = I["kind"]
        prev = lastk[0]
        if I["op"] == "s_barrier": return 8
        if k == "wait" and WFREE[0] == 0: return 4
        if k in ("salu", "wait", "nop", "smem"): return 0 if prev == "mfma" and not (I.get("lg") and WFREE[0] == 0) else 4
        if k == "dsr": return 4 if prev == "mfma" else (12 if prev == "valu" else 8)
        if k in ("dma", "vml"): return 8 if prev == "mfma" else 12
        if k == "vms": return STC[0] - 4 if prev == "mfma" else STC[0]
        return icost(I)
    lastk = [None]
    while ready:
        st = {i: stall(i) for i in ready}
        mf = [i for i in ready if ins[i]["kind"] == "mfma"]
        fl = [i for i in ready if ins[i]["kind"] != "mfma" and st[i] == 0]
        pick = None
        rec = [h for h in hist if h["kind"] in ("valu", "mfma")][-3:]
        if sum(1 for h in rec if h["op"].startswith("v_cndmask")) >= 2 and not any(h["kind"] == "mfma" for h in rec):
            alt = [i for i in fl if not ins[i]["op"].startswith("v_cndmask") and ins[i]["kind"] == "valu"]
            if alt or mf: fl = [i for i in fl if not ins[i]["op"].startswith("v_cndmask")]
        gp = [i for i in fl if "grp" in ins[i]]
        sts = [i for i in fl if ins[i]["kind"] == "vms"]
        if gp: pick = gp[0]
        elif mf and st[mf[0]] == 0: pick = mf[0]
        elif sts and (t == lastm + 8 or not mf): pick = sts[0]
        elif fl and pairing and mf and st[mf[0]] in (4, 8) and not any(urgent[i] for i in fl):
            room = st[mf[0]]
            key = lambda i: (prio[i], -i)
            first = lastk[0] == "mfma"
            R = [i for i in fl if ins[i]["kind"] == "dsr"] if first else []
            SA_ = sorted([i for i in fl if ins[i]["kind"] in ("salu", "wait")], key=key, reverse=True)
            V4 = sorted([i for i in fl if ins[i]["kind"] == "valu" and icost(ins[i]) == 4], key=key, reverse=True)
            E = sorted([i for i in fl if icost(ins[i]) == 8 and (ins[i]["kind"] == "valu" or first)], key=key, reverse=True)
            rleft = any(ins[i]["kind"] == "dsr" for i in ready)
            slack = lambda i: prio[mf[0]] - prio[i]
            if room == 8:
                critE = [i for i in E[:1] if slack(i) < pairing]
                critV = [i for i in V4[:2] if slack(i) < pairing]
                if R and V4 and not critE and len(critV) < 2: pick = R[0]
                elif first and SA_: pick = SA_[0]
                elif critE or critV: pick = min(critE + critV, key=slack)
                elif E and (rleft or len(V4) < 2 or key(E[0]) > key(V4[0])): pick = E[0]
                elif R: pick = R[0]
                elif V4: pick = V4[0]
                elif SA_: pick = SA_[0]
                else: pick = mf[0]
            else:
                if V4: pick = V4[0]
                elif SA_: pick = SA_[0]
                else: pick = mf[0]
        elif fl:
            room = st[mf[0]] if mf else 1000
            nst = [i for i in fl if ins[i]["kind"] != "vms"]
            if nst: fl = nst
            fit = [i for i in fl if ccost(i) <= room]
            if lastk[0] == "mfma":
                sh = [i for i in fl if ins[i]["kind"] in ("salu", "wait", "dsr", "dma")]
                if sh: fit = sh
            elif mf:
                nv = [i for i in fl if ins[i]["kind"] == "valu" or ins[i]["op"] == "s_barrier" or prio[i] > prio[mf[0]] - 24]
                if nv: fl = nv; fit = [i for i in fl if ccost(i) <= room]
            top = max(fl, key=lambda i: (urgent[i], prio[i], -i))
            if urgent[top] and (ccost(top) <= room + 8): pick = top
            elif fit:
                pick = max(fit, key=lambda i: (urgent[i], prio[i], -i))
            elif mf and prio[mf[0]] > prio[top] + 40: pick = mf[0]
            else: pick = top
        else:
            if pairing and mf: pick = mf[0]
            else: pick = min(ready, key=lambda i: (st[i] + (6 if ins[i]["op"].startswith("v_cndmask") else 0), -prio[i]))
        t += st[pick]
        I = ins[pick]
        if I["kind"] == "mfma": lastm = t
        done_at[pick] = t
        if st[pick] > 0 and I["kind"] != "mfma": lastk[0] = None
        t += ccost(pick)
        lastk[0] = I["kind"]
        d = deficit(I)
        if d > 0: hist.append(parse("s_nop %d" % (d - 1))); nops[0] += 1
        hist.extend(I.get("grp", [I if not I.get("lg") else parse("s_nop 0")]))
        if len(hist) > 40: del hist[:10]
        out += I["line"].split("\n"); cntout[0] += 1
        ready.remove(pick)
        for s in succs[pick]:
            left[s] -= 1
            if left[s] == 0: ready.append(s)
    assert cntout[0] == n
    if sentinel:
        out.pop(); t = lastm; lastm -= 16
    from chk import regs
    res = []
    for k, l in enumerate(out):
        if l.startswith("@lg "):
            rr = set(sum([regs(x) for x in l.split()[1:]], []))
            cnt = 0
            for p in reversed(out[:k]):
                if p.startswith("ds_"):
                    if set(parse(p)["defs"]) & rr: break
                    cnt += 1
            l = "s_waitcnt lgkmcnt(%d)" % min(cnt, 15)
        res.append(l)
    out = res
    return out, max(t, lastm + 16) + (1000 * nops[0] if pairing else 0)
```

```python
import sys, struct, math
sys.path.insert(0, "work")
from chk2 import process
from sched import schedule
import sched

NAME = "standalone__mha_softmax__near_ridge_kernel"
variant = sys.argv[2] if len(sys.argv) > 2 else ""
opts = dict(kv.split("=") for kv in variant.split(",") if "=" in kv)
flags = set(kv for kv in variant.split(",") if kv and "=" not in kv)
STAMP = "stamp" in flags
def f2u(x): return struct.unpack("<I", struct.pack("<f", x))[0]
SCALE = f2u(128 ** -0.5 * math.log2(math.e))
THRESH = f2u(2.0 ** int(opts.get("thr", 24)))
NVS = int(opts.get("nvs", 2))

VSET = [int(c) for c in opts.get("vs", "012345"[:NVS])]
NVS = len(VSET)
sched.WFREE[0] = int(opts.get("wfree", 1))
V_LS = 0
V_OFF = 3
V_KA = 4
V_VA = 8
V_NEGM = 16
V_S = 40
V_P = 56
V_O = 64
V_SEL = V_O + 160; V_OFF2 = V_O + 170; V_QA = V_O + 172; V_D = V_O + 176
def bf16r(x):
    u = f2u(x); return (u + 0x7fff + ((u >> 16) & 1)) >> 16
def u2f(u): return struct.unpack("<f", struct.pack("<I", u))[0]
C_HI = bf16r(u2f(SCALE)); C_LO = bf16r(u2f(SCALE) - u2f(C_HI << 16))
A_Q = 0; A_K = 96; A_V = 160; A_L = 224; A_ONE = 248
S_QD, S_KD, S_VD, S_OD = 4, 8, 12, 16
S_W, S_KV, S_CNT, S_XM, S_SC, S_REDO = 20, 21, 22, 23, 24, 25
S_T0, S_T1, S_T2, S_QOFF = 26, 27, 28, 29
S_ROT = 24; S_SRC = 32; S_SRC2 = 33; S_WS = 30; S_MSK = 32; S_SC2 = 34; S_ST = 36
LDS_V = 0x10000; LDS_X = 0x20000
NT = "".join(" " + x for x in opts.get("ld", "nt").split("+") if x)
STNT = "".join(" " + x for x in opts.get("st", "sc0+sc1+nt").split("+") if x)
STL = "".join(" " + x for x in opts.get("stl", opts.get("st", "sc0+sc1+nt")).split("+") if x)
def vr(b, n=4): return "v[%d:%d]" % (b, b + n - 1)
def ar(b, n=4): return "a[%d:%d]" % (b, b + n - 1)
def sr(b, n=4): return "s[%d:%d]" % (b, b + n - 1)
MF = "v_mfma_f32_16x16x32_bf16"
nstamp = [0]
def stamp(idx):
    if not STAMP: return []
    nstamp[0] = max(nstamp[0], idx + 1)
    return ["s_memtime %s" % sr(S_ST + 4 * idx, 2), "s_memrealtime %s" % sr(S_ST + 4 * idx + 2, 2), "s_waitcnt lgkmcnt(0)"]

def LS(i): return (0, 1, 2, 12, 13, 14)[i]
def qk(buf, t, par, first=False):
    r = []
    for T in range(2):
        d = vr(V_S + 8 * par + 4 * T)
        for ks in range(4):
            c = d if ks else ("0" if first else vr(V_NEGM + 4 * t))
            r.append("%s %s, %s, %s, %s" % (MF, d, ar(A_K + 32 * buf + 16 * T + 4 * ks), ar(A_Q + 16 * t + 4 * ks), c))
    if "qkil" in flags: r = [r[0], r[4], r[1], r[5], r[2], r[6], r[3], r[7]]
    return r
def pv(buf, t, par, first=False, msum=True, sumfirst=False):
    r = []
    P = vr(V_P + 4 * par)
    for dt in range(8):
        o = vr(V_O + 32 * t + 4 * dt)
        PP = P
        if "pvchain" in flags and not first:
            o = vr(V_O + 32 * t + 4 * (4 * buf + dt // 2)); PP = vr(V_P + 4 * ((par + dt) % 2))
        if "pvchainb" in flags and not first:
            o = vr(V_O + 32 * t + 4 * (4 * buf + dt // 2))
        if "pvalt" in flags and not first:
            PP = vr(V_P + 4 * ((par + dt) % 2))
        r.append("%s %s, %s, %s, %s" % (MF, o, ar(A_V + 32 * buf + 4 * dt), PP, "0" if first else o))
    if msum:
        l = ar(A_L + 4 * t)
        m = "%s %s, %s, %s, %s" % (MF, l, ar(A_ONE), P, "0" if first else l)
        r = [m] + r if (sumfirst or "sf" in flags) else r + [m]
    if "swp" in flags:
        def swp0(s):
            h, r = s.split(" ", 1); p = r.split(", "); return h + " " + ", ".join([p[0], p[2], p[1], p[3]])
        r = [swp0(x) for x in r]
    return r
def kreads(buf, sub):
    return ["ds_read_b128 %s, v%d offset:%d" % (ar(A_K + 32 * buf + 16 * T + 4 * ks), V_KA + ks, sub * 8192 + T * 4096) for T in range(2) for ks in range(4)]
VMAP = True
NVA = 4 if VMAP else 8
def vreads(buf, sub):
    if VMAP:
        return ["ds_read_b64_tr_b16 %s, v%d offset:%d" % (ar(A_V + 32 * buf + 4 * dt + 2 * T, 2), V_VA + (dt >> 1), sub * 8192 + T * 4096 + 8 * (dt & 1)) for dt in range(8) for T in range(2)]
    return ["ds_read_b64_tr_b16 %s, v%d offset:%d" % (ar(A_V + 32 * buf + 4 * dt + 2 * T, 2), V_VA + dt, sub * 8192 + T * 4096) for dt in range(8) for T in range(2)]
def dma2(srd, soff):
    return ["buffer_load_dwordx4 v%d, %s, s%d offen%s lds" % (V_OFF, sr(srd), soff, NT),
            "buffer_load_dwordx4 v%d, %s, s%d offen offset:2048%s lds" % (V_OFF, sr(srd), soff, NT)]
ROT = "rot" in opts
def src_of(end=True):
    if not ROT: return [], S_KV
    r = ["s_add_u32 s%d, s%d, s%d" % (S_SRC, S_KV, S_ROT), "s_and_b32 s%d, s%d, 0x3ffff" % (S_SRC, S_SRC)]
    if end: r += ["s_and_b32 s%d, s%d, 0x40000" % (S_SRC2, S_KV), "s_or_b32 s%d, s%d, s%d" % (S_SRC, S_SRC, S_SRC2)]
    return r, S_SRC
def kv_dma():
    pre, so = src_of(not SOLO)
    return (pre + ["s_and_b32 m0, s%d, 0xffff" % S_KV] + dma2(S_KD, so) + ["s_bitset1_b32 m0, 16"] + dma2(S_VD, so)
            + ["s_add_u32 s%d, s%d, 8192" % (S_KV, S_KV)])
SOLO = "solo" in flags
def kv_full():
    r, so = src_of()
    for h in range(2):
        r.append("s_and_b32 m0, s%d, 0xffff" % S_KV)
        r += ["buffer_load_dwordx4 v%d, %s, s%d offen offset:%d%s lds" % (V_OFF if p & 1 else V_OFF2, sr(S_KD), so, 1024 * p, NT) for p in range(4)]
        r.append("s_bitset1_b32 m0, 16")
        r += ["buffer_load_dwordx4 v%d, %s, s%d offen offset:%d%s lds" % (V_OFF if p & 1 else V_OFF2, sr(S_VD), so, 1024 * p, NT) for p in range(4)]
        r.append("s_add_u32 s%d, s%d, 4096" % (S_KV, S_KV))
        if ROT and h == 0: r.append("s_add_u32 s%d, s%d, 4096" % (so, so))
    return r
def yw(NQ, back=1):
    if not SOLO: return "s_waitcnt vmcnt(%d)" % (4 * (DEP - back))
    return "s_waitcnt vmcnt(%d)" % (0 if NQ == 6 else 16 * (DEP - back))
def two_dma(srd, ldsbase):
    if ROT:
        return (["s_add_u32 m0, s%d, 0x%x" % (S_T0, ldsbase), "s_add_u32 s%d, s%d, s%d" % (S_SRC, S_T0, S_ROT)] + dma2(srd, S_SRC)
                + ["s_add_u32 m0, s%d, 0x%x" % (S_T1, ldsbase), "s_add_u32 s%d, s%d, s%d" % (S_SRC, S_T1, S_ROT)] + dma2(srd, S_SRC))
    return (["s_add_u32 m0, s%d, 0x%x" % (S_T0, ldsbase)] + dma2(srd, S_T0) + ["s_add_u32 m0, s%d, 0x%x" % (S_T1, ldsbase)] + dma2(srd, S_T1))
EARLY = int(opts.get("early", 0))
EMAP = EARLY or "emap" in flags
def qlds(t):
    if EMAP: return (0x8000, 0x18000, 0x1c000, 0x20000, 0x24000, 0xc000)[t]
    return (0x8000, 0xc000, 0x18000, 0x1c000, 0x20000, 0x24000)[t]
def q_dma(t):
    r = ["s_add_u32 m0, s%d, 0x%x" % (S_T2, qlds(t))]
    for p in range(4):
        r.append("buffer_load_dwordx4 v%d, %s, s%d offen offset:%d%s lds" % (V_OFF2 if p & 1 else V_OFF, sr(S_QD), S_QOFF, 1024 * p, NT))
    r.append("s_add_u32 s%d, s%d, %d" % (S_QOFF, S_QOFF, 16384 if "ilv" in flags else 4096))
    return r
def q_read(t):
    r = []
    if t == (1 if EMAP else 2): r += ["v_add_u32 v%d, 0x18000, v%d" % (V_QA + ks, V_QA + ks) for ks in range(4)]
    if EMAP and t == 5: r += ["v_subrev_u32 v%d, 0x18000, v%d" % (V_QA + ks, V_QA + ks) for ks in range(4)]
    off = qlds(t) - (0x18000 if qlds(t) >= 0x18000 else 0)
    return r + ["ds_read_b128 %s, v%d offset:%d" % (ar(A_Q + 16 * t + 4 * ks), V_QA + ks, off) for ks in range(4)]
def sm_items(par):
    S = V_S + 8 * par; P = V_P + 4 * par
    ex = ["v_exp_f32 v%d, v%d" % (S + i, S + i) for i in range(8)]
    cv = ["v_cvt_pk_bf16_f32 v%d, v%d, v%d" % (P + i, S + 2 * i, S + 2 * i + 1) for i in range(4)]
    return ex, cv
def sm_seq(par):
    ex, cv = sm_items(par)
    return [ex[0], ex[1], ex[2], cv[0], ex[3], ex[4], cv[1], ex[5], ex[6], cv[2], ex[7], "@gap", cv[3]]
def cost(s):
    if s.startswith("v_exp") or s.startswith("v_rcp") or s.startswith("buffer_"): return 8
    return 4
def merge(a, b):
    ta = sum(map(cost, a)) or 1; tb = sum(map(cost, b)) or 1
    out = []; i = j = 0; ca = cb = 0
    while i < len(a) or j < len(b):
        if j >= len(b) or (i < len(a) and ca * tb <= cb * ta): out.append(a[i]); ca += cost(a[i]); i += 1
        else: out.append(b[j]); cb += cost(b[j]); j += 1
    return out
def weave(mf, fill, start=0, end=None):
    n = len(mf); end = n if end is None else end
    fill = [f for f in fill if f != "@gap"]
    tot = sum(map(cost, fill)); ng = max(end - start, 1)
    out = []; i = 0; used = 0
    for g in range(n):
        out.append(mf[g])
        if g < start or g >= end: continue
        per = max(8.0, tot / ng)
        lim = per * (g - start + 1)
        gap = 0
        while i < len(fill) and used + cost(fill[i]) <= lim + 0.01 and (gap + cost(fill[i]) <= max(8, math.ceil(per / 4) * 4 + 4)):
            out.append(fill[i]); used += cost(fill[i]); gap += cost(fill[i]); i += 1
        if g == end - 1:
            out += fill[i:]; i = len(fill)
    out += fill[i:]
    return out

def setup():
    o = []
    o.append("s_load_dwordx4 s[4:7], s[0:1], 0")
    o.append("s_load_dwordx4 s[12:15], s[0:1], 16")
    if STAMP:
        o.append("s_memtime %s" % sr(S_ST, 2)); o.append("s_memrealtime %s" % sr(S_ST + 2, 2)); nstamp[0] = 1
    o += ["s_cmpk_ge_u32 s2, 256", "s_cbranch_scc1 L_end"]
    if "nopf" not in flags: o += codepf(V_S, "v0")
    HD = "s2"
    if "remap" in flags:
        o += ["s_and_b32 s3, s2, 7", "s_lshr_b32 s33, s2, 3", "s_lshl_b32 s3, s3, 5", "s_or_b32 s33, s33, s3"]; HD = "s33"
    o.append("v_lshrrev_b32 v1, 6, v0")
    o.append("s_lshl_b32 s3, %s, 18" % HD)
    o.append("v_readfirstlane_b32 s%d, v1" % S_W)
    o.append("v_and_b32 v0, 63, v0")
    o.append("s_mul_i32 s35, %s, 94208" % HD)
    o.append("s_mov_b32 s10, 0x40000"); o.append("s_mov_b32 s11, 0x20000")
    o.append("s_mov_b32 s18, 94208"); o.append("s_mov_b32 s19, s11")
    if ROT:
        m = opts["rot"]
        if m == "a": o += ["s_and_b32 s%d, s2, 15" % S_ROT]
        elif m == "b": o += ["s_bfe_u32 s%d, s2, 0x40003" % S_ROT]
        elif m == "c": o += ["s_lshr_b32 s%d, s2, 4" % S_ROT, "s_add_u32 s%d, s%d, s2" % (S_ROT, S_ROT), "s_and_b32 s%d, s%d, 15" % (S_ROT, S_ROT)]
        elif m == "d": o += ["s_lshr_b32 s%d, s2, 4" % S_ROT]
        o += ["s_lshl_b32 s%d, s%d, 14" % (S_ROT, S_ROT)]
    o += offs()[2:]
    o.append("s_waitcnt lgkmcnt(0)")
    o.append("s_add_u32 s8, s6, s3"); o.append("s_addc_u32 s9, s7, 0")
    o.append("s_add_u32 s4, s4, s35"); o.append("s_addc_u32 s5, s5, 0")
    o.append("s_mov_b32 s6, s18"); o.append("s_mov_b32 s7, s19")
    o += first_dma()
    o.append("s_add_u32 s16, s14, s35"); o.append("s_addc_u32 s17, s15, 0")
    o.append("s_add_u32 s12, s12, s3"); o.append("s_addc_u32 s13, s13, 0")
    o.append("s_mov_b32 s14, s10"); o.append("s_mov_b32 s15, s11")
    o.append("s_mov_b32 s%d, 0" % S_REDO)
    o.append("v_mov_b32 v%d, 0x7f800000" % V_NEGM)
    for t in range(1, 6): o.append("v_mov_b32 v%d, v%d" % (V_NEGM + 4 * t, V_NEGM))
    if STAMP: o += ["s_load_dwordx2 %s, s[0:1], 40" % sr(S_WS, 2), "s_waitcnt lgkmcnt(0)"]
    return o
ORD = int(opts.get("ord", 1))
def first_dma():
    if ORD == 1: return q_dma(0) + two_dma(S_KD, 0) + q_dma(1)
    return q_dma(0) + two_dma(S_KD, 0)
def codepf(T, tid):
    o = ["s_getpc_b64 s[34:35]", "L_pc:"]
    o.append("v_mov_b32 v%d, 0" % (T + 1))
    o.append("v_lshlrev_b32 v%d, 7, %s" % (T + 6, tid))
    for k in range(int(opts.get("npf", 1))):
        if k: o.append("v_add_u32 v%d, 0x8000, v%d" % (T + 6, T + 6))
        o.append("v_min_u32 v%d, L_fin-L_pc, v%d" % (T, T + 6))
        o.append("v_lshl_add_u64 %s, %s, 0, s[34:35]" % (vr(T + 2 + 2 * k, 2), vr(T, 2)))
        o.append("global_load_dword v%d, %s, off" % (V_P + 2 + k, vr(T + 2 + 2 * k, 2)))
    return o
def offs():
    o = []
    o.append("v_mbcnt_lo_u32_b32 v0, -1, 0"); o.append("v_mbcnt_hi_u32_b32 v0, -1, v0")
    o.append("s_and_b32 s%d, s%d, 1" % (S_T0, S_W))
    o.append("s_lshl_b32 s%d, s%d, 5" % (S_XM, S_T0))
    o.append("v_lshrrev_b32 v1, 4, v0")
    o.append("v_lshlrev_b32 v%d, 2, v1" % V_OFF)
    o.append("v_xor_b32 v%d, v%d, v0" % (V_OFF, V_OFF))
    o.append("v_and_b32 v%d, 15, v%d" % (V_OFF, V_OFF))
    o.append("v_lshlrev_b32 v%d, 4, v%d" % (V_OFF, V_OFF))
    o.append("v_lshl_add_u32 v%d, v1, 8, v%d" % (V_OFF, V_OFF))
    o.append("v_xor_b32 v%d, s%d, v%d" % (V_OFF, S_XM, V_OFF))
    o.append("v_xor_b32 v%d, 32, v%d" % (V_OFF2, V_OFF))
    o.append("s_and_b32 s%d, s%d, 2" % (S_T1, S_W))
    o.append("s_lshl1_add_u32 s%d, s%d, s%d" % (S_T0, S_T1, S_T0))
    o.append("s_lshl_b32 s%d, s%d, 10" % (S_T0, S_T0))
    o.append("s_add_u32 s%d, s%d, 8192" % (S_T1, S_T0))
    o.append("s_add_u32 s%d, s%d, 16384" % (S_KV, S_T0))
    o.append(("s_lshl_b32 s%d, s%d, 12" if "ilv" in flags else "s_mul_i32 s%d, s%d, 24576") % (S_QOFF, S_W))
    o.append("s_lshl_b32 s%d, s%d, 12" % (S_T2, S_W))
    return o
def common():
    o = ["L_restart:"]
    if ORD != 1: o += two_dma(S_VD, LDS_V)
    t = V_S
    for i in (0, 1, 4, 5, 8, 9): o.append("v_mov_b32 v%d, 0" % (V_SEL + i))
    o.append("v_bfe_u32 v%d, v0, 1, 3" % t)
    o.append("v_lshlrev_b32 v%d, 1, v1" % (t + 1))
    o.append("v_and_b32 v%d, 1, v0" % (t + 2)); o.append("v_lshlrev_b32 v%d, 4, v%d" % (t + 2, t + 2))
    o.append("v_mov_b32 v%d, 0x%x" % (t + 3, C_HI)); o.append("v_mov_b32 v%d, 0x%x" % (t + 4, C_LO))
    o.append("v_cmp_eq_u32 vcc, v%d, v%d" % (t, t + 1))
    o.append("v_lshlrev_b32 v%d, v%d, v%d" % (t + 3, t + 2, t + 3)); o.append("v_lshlrev_b32 v%d, v%d, v%d" % (t + 4, t + 2, t + 4))
    o.append("v_or_b32 v%d, 1, v%d" % (t + 1, t + 1))
    o.append("v_cndmask_b32 v%d, 0, v%d, vcc" % (V_SEL + 2, t + 3)); o.append("v_cndmask_b32 v%d, 0, v%d, vcc" % (V_SEL + 6, t + 4))
    o.append("v_cmp_eq_u32 vcc, v%d, v%d" % (t, t + 1))
    o.append("v_cndmask_b32 v%d, 0, v%d, vcc" % (V_SEL + 3, t + 3)); o.append("v_cndmask_b32 v%d, 0, v%d, vcc" % (V_SEL + 7, t + 4))
    o.append("v_and_b32 v%d, 3, v0" % t); o.append("v_lshlrev_b32 v%d, 2, v%d" % (t, t))
    o.append("v_lshrrev_b32 v%d, 1, v0" % (t + 1)); o.append("v_and_b32 v%d, 2, v%d" % (t + 1, t + 1))
    o.append("v_or_b32 v%d, v%d, v%d" % (t, t, t + 1))
    o.append("v_xor_b32 v%d, v%d, v1" % (t, t))
    o.append("v_lshlrev_b32 v%d, 4, v%d" % (t, t))
    o.append("v_and_b32 v%d, 15, v0" % (t + 1))
    o.append("v_lshl_add_u32 v%d, v%d, 8, v%d" % (V_KA, t + 1, t))
    for ks in range(1, 4): o.append("v_xor_b32 v%d, %d, v%d" % (V_KA + ks, 64 * ks, V_KA))
    o.append("v_and_b32 v%d, 12, v0" % t)
    o.append("v_and_b32 v%d, 1, v1" % (t + 1)); o.append("v_lshlrev_b32 v%d, 1, v%d" % (t + 1, t + 1))
    o.append("v_or_b32 v%d, v%d, v%d" % (t, t, t + 1))
    o.append("v_lshlrev_b32 v%d, 4, v%d" % (t, t))
    o.append("v_and_b32 v%d, 3, v0" % (t + 1)); o.append("v_lshlrev_b32 v%d, %d, v%d" % (t + 1, 4 if VMAP else 3, t + 1))
    o.append("v_xor_b32 v%d, v%d, v%d" % (t, t, t + 1))
    o.append("v_lshrrev_b32 v%d, 2, v0" % (t + 1))
    o.append("v_lshl_add_u32 v%d, v%d, 8, v%d" % (t, t + 1, t))
    o.append("v_add_u32 v%d, 0x%x, v%d" % (V_VA, LDS_V, t))
    for dt in range(1, NVA): o.append("v_xor_b32 v%d, %d, v%d" % (V_VA + dt, (64 if VMAP else 32) * dt, V_VA))
    o.append("v_and_b32 v%d, 3, v0" % t); o.append("v_cmp_eq_u32 vcc, 0, v%d" % t)
    o.append("v_mov_b32 v%d, 0x3f803f80" % (t + 1))
    o.append("s_or_b32 s%d, s%d, s%d" % (S_XM, S_XM, S_T2))
    o.append("v_cndmask_b32 v%d, 0, v%d, vcc" % (t, t + 1))
    for i in range(4): o.append("v_accvgpr_write_b32 a%d, v%d" % (A_ONE + i, t))
    for ks in range(4): o.append("v_xor_b32 v%d, s%d, v%d" % (V_QA + ks, S_XM, V_KA + ks))
    o.append("v_and_b32 v%d, 14, v0" % t); o.append("v_lshlrev_b32 v%d, 8, v%d" % (t, t))
    o.append("v_and_b32 v%d, 1, v0" % (t + 1)); o.append("v_lshl_add_u32 v%d, v%d, 6, v%d" % (t, t + 1, t))
    o.append("v_lshl_add_u32 v%d, v1, 4, v%d" % (t, t))
    o.append("v_accvgpr_write_b32 a%d, v%d" % (A_SA, t))
    if "fine" in flags: o += stamp(13)
    if "ibw0" in flags:
        o += two_dma(S_VD, LDS_V) if ORD == 1 else q_dma(1)
        o.append("s_waitcnt vmcnt(12)")
        o += q_read(0)
    else:
        o.append("s_waitcnt vmcnt(8)")
        if "fine" in flags: o += stamp(14)
        o += q_read(0)
        o += two_dma(S_VD, LDS_V) if ORD == 1 else q_dma(1)
    o += schedule(sum([pm(0, k) + pc(0, k) for k in range(4)], []))[0]
    if "ibw0" in flags: o += q_dma(2) + ["s_waitcnt vmcnt(12)"]
    else: o += ["s_waitcnt vmcnt(8)"] + q_dma(2)
    if ORD == 3: o += ["s_waitcnt vmcnt(8)"] + q_dma(3)
    o.append("s_barrier")
    o += kreads(0, 0) + kreads(1, 1)
    o += stamp(1)
    o.append("s_cmp_eq_u32 s%d, 3" % S_W)
    o.append("s_cbranch_scc1 L_pro5")
    return o

def pm(t, ks):
    q = ar(A_Q + 16 * t + 4 * ks); D = V_D + 8 * (ks % 2)
    r = []
    for h in range(2):
        d = vr(D + 4 * h)
        r.append("%s %s, %s, %s, 0" % (MF, d, vr(V_SEL + 2 - 2 * h), q))
        r.append("%s %s, %s, %s, %s" % (MF, d, vr(V_SEL + 6 - 2 * h), q, d))
    return r
def pc(t, ks):
    D = V_D + 8 * (ks % 2)
    r = ["v_cvt_pk_bf16_f32 v%d, v%d, v%d" % (D + 2 * i, D + 2 * i, D + 2 * i + 1) for i in range(4)]
    return r + ["v_accvgpr_write_b32 a%d, v%d" % (A_Q + 16 * t + 4 * ks + i, D + 2 * i) for i in range(4)]
def rowmax(t, par=0):
    S = V_S + 8 * par; m, m2 = V_LS, V_LS + 1; N = V_NEGM + 4 * t
    o = ["v_max3_f32 v%d, v%d, v%d, v%d" % (m, S, S + 1, S + 2),
         "v_max3_f32 v%d, v%d, v%d, v%d" % (m2, S + 3, S + 4, S + 5),
         "v_max3_f32 v%d, v%d, v%d, v%d" % (m, m, S + 6, S + 7),
         "v_max_f32 v%d, v%d, v%d" % (m, m, m2),
         "v_mov_b32 v%d, v%d" % (m2, m),
         "v_permlane32_swap_b32 v%d, v%d" % (m, m2),
         "v_max_f32 v%d, v%d, v%d" % (m, m, m2),
         "v_mov_b32 v%d, v%d" % (m2, m),
         "v_permlane16_swap_b32 v%d, v%d" % (m, m2),
         "v_max_f32 v%d, v%d, v%d" % (m, m, m2),
         "v_min_f32 v%d, -v%d, v%d" % (N, m, N)]
    if "moff" in opts: o += ["v_add_f32 v%d, 0x%x, v%d" % (N, f2u(float(opts["moff"])), N)]
    o += ["v_mov_b32 v%d, v%d" % (N + i, N) for i in range(1, 4)]
    return o

def inter(a, b, k):
    out = []; b = list(b)
    for x in a:
        out.append(x); out += b[:k]; del b[:k]
    return out + b
def nogap(x): return [y for y in x if y != "@gap"]
DEP = int(opts.get("dep", 3))
YW = "s_waitcnt vmcnt(%d)" % (4 * (DEP - 1))
CPRO = int(opts.get("C", 2))
TAILN = int(opts.get("T", 2))

class VM:
    def __init__(self, names): self.q = list(names)
    def issue(self, names): self.q += names
    def wait(self, name):
        last = max(i for i, x in enumerate(self.q) if x == name)
        n = len(self.q) - 1 - last
        self.q = self.q[last + 1:]
        return "s_waitcnt vmcnt(%d)" % n

def pipeline(units, p0, hooks, first_qk_done, prev_pv, last_qk, sumfirst=False):
    o = []
    n = len(units)
    H = lambda *k: hooks.get(k, [])
    def QK(k):
        buf, t, first = units[k]
        return H("bQK", k) + qk(buf, t, (p0 + k) % 2, first=first) + H("aQK", k)
    def SM(k):
        buf, t, first = units[k]
        par = (p0 + k) % 2
        r = []
        if first:
            r += rowmax(t, par) + ["v_add_f32 v%d, v%d, v%d" % (V_S + 8 * par + i, V_S + 8 * par + i, V_NEGM + 4 * t) for i in range(8)]
        return r + nogap(sm_seq(par))
    def PV(k):
        buf, t, first = units[k]
        blk = pv(buf, t, (p0 + k) % 2, first=first, sumfirst=sumfirst)
        return H("bPV", k) + blk[:2] + H("mPV", k) + blk[2:] + H("aPV", k)
    if not first_qk_done: o += QK(0)
    o += prev_pv + SM(0)
    for k in range(n):
        if k + 1 < n: o += QK(k + 1)
        elif last_qk is not None:
            o += last_qk; break
        o += PV(k)
        if k + 1 < n: o += SM(k + 1)
    return o

def auto_loads(seq, init, hooks, off, sync, late=lambda s_, k: False):
    for kind, key, fn in (("K", "aQK", kreads), ("V", "aPV", vreads)):
        cur = dict(init); lastuse = {}
        for k, (s_, t, buf) in enumerate(seq):
            if cur.get(buf) != s_:
                at = lastuse.get(buf, -1)
                if late(s_, k):
                    assert at <= k - 2
                    hooks.setdefault(("bPV" if kind == "K" else "aPV", k - 2), []).extend(sync(kind, s_) + fn(buf, off(s_)))
                else: hooks.setdefault((key, at), []).extend(fn(buf, off(s_)))
                cur[buf] = s_
            lastuse[buf] = k

def prologue(NQ):
    C = CPRO
    PEEL = C == 3
    NA = NQ if C <= 3 else int(opts.get("NA", 3))
    seq = [(s_, t, s_) for t in range(NA) for s_ in (0, 1)]
    if C == 4:
        seq += [(s_, t, s_ % 2) for s_ in (2, 3) for t in range(NA)]
        for t in range(NA, NQ):
            seq += [(s_, t, s_ % 2) for s_ in ((2, 3, 0, 1) if (t - NA) % 2 == 0 else (0, 1, 2, 3))]
    if PEEL: seq += [(2, t, 0) for t in range(NQ)]
    seen = set(); units = []; firstk = {}
    for k, (s_, t, buf) in enumerate(seq):
        units.append((buf, t, t not in seen))
        if t not in seen: firstk[t] = k
        seen.add(t)
    n = len(seq)
    if C <= 3: pend = ["q%d" % t for t in range(3, NQ)] + ["kv2", "kv3", None]
    else:
        pend = ["q%d" % t for t in range(3, NA)] + ["kv2", "kv3"] + ["q%d" % t for t in range(NA, NQ)] + ["kv4", "kv5", None]
        assert NA == 3 or EMAP
    hooks = {}
    def add(key, lines): hooks.setdefault(key, []).extend(lines)
    LW = int(opts.get("lw", 1))
    for u in range(1, NQ):
        k = firstk[u]
        span = 2 if (C <= 3 or u < NA) else int(opts.get("span", 3))
        k0 = k - span
        P = [pm(u, i) + pc(u, i) for i in range(4)]
        W = ["@wait q%d" % u] + (stamp(7 + u) if "fine" in flags else []) + q_read(u) + ["@next"]
        if "ibw" in flags: W = ["s_waitcnt vmcnt(63)", "@next", "@wait q%d" % u] + q_read(u)
        if u == 1 and ORD != 1:
            W1 = W; P1 = P
        elif LW == 0:
            add(("bQK", k0), W); add(("aQK", k0), P[0] + P[1]); add(("aQK", k0 + 1), P[2] + P[3])
        else:
            add(("aQK", k0), W); add(("bQK", k0 + 1), P[0])
            if span == 2: add(("aQK", k0 + 1), P[1] + P[2] + P[3])
            else: add(("aQK", k0 + 1), P[1]); add(("bQK", k0 + 2), P[2]); add(("aQK", k0 + 2), P[3])
    VS_ = ["@wait v01"] + (stamp(15) if "fine" in flags else []) + ["@next", "s_barrier"]
    if "ibw" in flags: VS_ = ["s_waitcnt vmcnt(63)", "@next", "@wait v01", "s_barrier"]
    if ORD == 1: add(("bPV", 0), VS_ + vreads(0, 0) + vreads(1, 1))
    elif ORD == 2:
        add((opts.get("vpos", "aQK"), int(opts.get("vk", 0))), VS_ + vreads(0, 0) + vreads(1, 1))
        add(("bPV", 0), W1); add(("aPV", 0), P1[0] + P1[1] + P1[2] + P1[3])
    else:
        add(("bQK", 0), vreads(0, 0) + vreads(1, 1))
        add(("bPV", 0), W1); add(("aPV", 0), P1[0] + P1[1] + P1[2] + P1[3])
        pend.pop(0)
    synced = set()
    def sync(kind, s_):
        if s_ < 2 or (kind, s_) in synced: return []
        synced.add(("K", s_)); synced.add(("V", s_))
        return ["@wait v%d" % s_, "@next", "s_barrier"]
    firsts = {}
    for k, x in enumerate(seq): firsts.setdefault(x[0], k)
    if PEEL:
        assert SOLO and DEP == 3
        k2 = 2 * NQ
        add(("aQK", k2 - 2), stamp(2))
        add((opts.get("k2p", "bPV"), k2 - 2), ["@wait k2", "s_barrier"] + kreads(0, 2) + ["@kv"])
        add((opts.get("v2p", "bPV"), k2 - 1), ["@wait v2", "s_barrier"] + vreads(0, 2) + ["@kv"])
        ux = n - int(opts.get("h3", 3))
        add(("mPV", ux), ["@wait v3", "s_barrier"] + kreads(1, 3))
    else:
        auto_loads(seq, {0: 0, 1: 1}, hooks, lambda s_: s_, sync, lambda s_, k: firsts[s_] == k)
        ux = max(max(k for k in range(n) if seq[k][2] == 0), n - 2)
        add(("aQK", ux), stamp(2))
        assert not EARLY or (SOLO and ORD == 1 and DEP == 3 and C == 2)
        add(("mPV", ux - 1), (["s_waitcnt vmcnt(63)"] if EARLY and NQ == 5 else []) + ["@kv"] * EARLY + ["@wait k%d" % C, "s_barrier"] + kreads(0, C) + (["@touch"] if "touch" in flags else []) + ["@kv"] * (DEP - 2 if not EARLY else 0))
        add(("mPV", ux), ["@wait v%d" % C, "s_barrier", "s_waitcnt lgkmcnt(0)"])
    st = (C // 2) % 4
    fin = ["s_mov_b32 s%d, 0x%x" % (S_XM, st * 0x4000)]
    fin += ["v_xor_b32 v%d, s%d, v%d" % (V_KA + i, S_XM, V_KA + i) for i in range(4 + NVA)]
    fin += ["s_mov_b32 s%d, 0x%x" % (S_XM, 0xc000 if st % 2 else 0x4000)]
    nper = 32 - TAILN - C
    fin += ["s_mov_b32 s%d, %d" % (S_CNT, (nper + 1) // 2)]
    fin += ["v_mov_b32 v%d, 0" % LS(i) for i in range(NVS)]
    add(("mPV" if PEEL else "aPV", ux), vreads(C % 2, C) + (["@kv"] if EARLY < 2 else []) + fin)
    o = pipeline(units, 0, hooks, False, [], qk(C % 2, 0, n % 2))
    vm = VM({1: ["q1"] * 4 + ["v01"] * 4 + ["q2"] * 4, 2: ["v01"] * 4 + ["q1"] * 4 + ["q2"] * 4, 3: ["q1"] * 4 + ["q2"] * 4 + ["q3"] * 4}[ORD])
    nkv = [2]
    def do_kv():
        i = nkv[0]; nkv[0] += 1
        vm.issue(["k%d" % i] * 2 + ["v%d" % i] * 2); return kv_dma()
    r = []
    for x in o:
        if x.startswith("@wait"): r.append(vm.wait(x.split()[1]))
        elif x == "@kv" and SOLO:
            if NQ == 5:
                if nkv[0] == (4 if C <= 3 else C + 2): r.append("s_and_b32 s%d, s%d, 0xffffe000" % (S_KV, S_KV))
                vm.issue(["kv%d" % nkv[0]] * 16); r += kv_full()
            nkv[0] += 1
        elif x == "@kv": r += do_kv()
        elif x == "@touch":
            vm.issue(["touch"]); r += ["s_sub_u32 s%d, s%d, 1024" % (S_QOFF, S_QOFF), "buffer_load_dword a253, v%d, %s, s%d offen nt" % (V_OFF, sr(S_OD), S_QOFF)]
        elif x == "@next":
            nx = pend.pop(0)
            if nx is None: continue
            if nx[0] == "q": vm.issue([nx] * 4); r += q_dma(int(nx[1:]))
            else:
                assert int(nx[2:]) == nkv[0]; r += do_kv()
        else: r.append(x)
    assert not pend and nkv[0] == C + DEP + 1 and len([x for x in vm.q if x != "touch"]) == ((0 if NQ == 6 else 48) if PEEL else 4 * DEP if not SOLO else 4 if NQ == 6 else 4 + 16 * (DEP - 1)), (pend, nkv, vm.q)
    o, tc = schedule(r, dsgap=int(opts.get("dsp", 4)))
    print("prologue", NQ, "sched est", tc, "waits", " ".join(x[-3:] for x in o if "vmcnt" in x))
    o.append("s_nop 1")
    o += stamp(3)
    return o

def slot(mf, par, reads, misc, vsum=None):
    ex, cv = sm_items(par)
    n = len(mf)
    fill = [[] for _ in range(n)]
    S = V_S + 8 * par
    if vsum is None:
        epos = [1, 2, 4, 5, 8, 9, 12, 13] if n == 17 else [1, 2, 4, 5, 7, 8, 11, 12]
        cpos = [3, 6, 10, 14] if n == 17 else [3, 6, 9, 13]
        free = [g for g in range(n) if g not in epos and g not in cpos]
        rpos = sorted(cpos + [free[2], free[2]]) if len(reads) > 4 else cpos
        for e, g in zip(ex, epos): fill[g].append(e)
        for r, g in zip(reads, rpos): fill[g].append(r)
        for c, g in zip(cv, cpos): fill[g].append(c)
        if len(reads) > 4: free.remove(free[2])
    else:
        assert not reads
        ad = ["v_add_f32 v%d, v%d, v%d" % (vsum, vsum, S + i) for i in range(8)]
        o0 = 1
        seq = [[ex[0]], [ex[1]], [ex[2]], [cv[0], ad[0]], [ex[3]], [ad[1], ad[2]], [ex[4]], [cv[1], ad[3]], [ex[5]], [ex[6]], [cv[2], ad[4]], [ex[7]], [ad[5], ad[6]], [cv[3], ad[7]]]
        for i, s in enumerate(seq): fill[o0 + i] += s
        free = [0] + list(range(o0 + len(seq), n))
    assert len(misc) <= len(free), (len(misc), free)
    for grp, g in zip(misc, free):
        if grp: fill[g] = list(grp) + fill[g]
    out = []
    for i in range(n):
        out.append(mf[i]); out += fill[i]
    return out

def loop_body(NQ):
    ev, od = loop_halves(NQ)
    return ev + od if TAILN % 2 == 0 else od + ev
_LH = {}
def loop_halves(NQ):
    if (NQ == 6 and "auto" not in flags) or (NQ == 5 and not SOLO): return loop_halves_man(NQ)
    if NQ in _LH: return _LH[NQ]
    nvs = NVS if NQ == 6 else 0
    VS = VSET if NQ == 6 else []
    lasth = 1 if TAILN % 2 == 0 else 0
    ypos = float(opts.get("y", 2.0)) if NQ == 6 else float(opts.get("y5", 1.0))
    lst = []
    for half, s_ in enumerate((2, 3)):
        buf = s_ % 2
        par = lambda t: (s_ * NQ + t) % 2
        mfb = []
        o = []
        XS = 4 if ("xsplit" in flags and NQ == 6) else 0
        if half:
            o += ["v_xor_b32 v%d, s%d, v%d" % (V_KA + i, S_XM, V_KA + i) for i in range(XS, 4 + NVA)]
            o += ["s_xor_b32 s%d, s%d, 0x8000" % (S_XM, S_XM)]
        d = kv_dma(); kr = kreads(1 - buf, 1 - half); vrd = vreads(1 - buf, 1 - half)
        Y = [yw(NQ), "s_barrier"] + kr + d[0:2] + vrd[0:4] + d[2:4] + vrd[4:8] + d[4:5] + vrd[8:12] + d[5:7] + vrd[12:16]
        if SOLO and NQ == 6: Y = [yw(NQ), "s_barrier"] + kr + vrd
        if SOLO and NQ == 5: Y = [yw(NQ), "s_barrier"] + merge(kr + vrd, kv_full())
        if not half: Y += ["v_xor_b32 v%d, s%d, v%d" % (V_KA + i, S_XM, V_KA + i) for i in range(XS)]
        if half == lasth: Y += ["s_sub_u32 s%d, s%d, 1" % (S_CNT, S_CNT), "s_cmp_lg_u32 s%d, 0" % S_CNT]
        for t in range(NQ):
            pvb = pv(buf, t - 1, par(t - 1), msum=(t - 1 not in VS)) if t > 0 else pv(1 - buf, NQ - 1, par(-1), msum=(NQ - 1 not in VS))
            qkb = qk(buf, t + 1, par(t + 1)) if t < NQ - 1 else qk(1 - buf, 0, par(NQ))
            sm = nogap(sm_seq(par(t)))
            if t in VS: sm += ["v_add_f32 v%d, v%d, v%d" % (LS(VS.index(t)), LS(VS.index(t)), V_S + 8 * par(t) + i) for i in range(8)]
            if t == 1: o.append("@lg " + ar(A_V + 32 * buf, 32))
            if t == NQ - 1: qkb = ["@lg " + ar(A_K + 32 * (1 - buf), 32)] + qkb
            blk = pvb + sm + qkb
            if int(ypos) == t:
                nth = int(round((ypos - t) * 16))
                idx = [i for i, x in enumerate(blk) if x.startswith("v_mfma")][nth]
                if "bsep" in flags and NQ == 6: blk = blk[:idx] + Y[:1] + blk[idx:idx + 1] + Y[1:] + blk[idx + 1:]
                else: blk = blk[:idx + 1] + Y + blk[idx + 1:]
            o += blk
        lst.append(o)
    kw = dict(urg=False, dmac=8, dsgap=int(opts.get("dsg", 16)), mflat=int(opts.get("mfl", 0)))
    res = [[], []]
    if NQ == 5:
        for half in range(2):
            pm_ = [x for x in lst[1 - half] if x.startswith("v_mfma")]
            best = None
            for th in (24, 40, 60, 80, 100, 130, 160):
                for seed in [None] + list(range(4)):
                    r, tc = schedule(lst[half], pre=pm_[-8:], sentinel=pm_[0], urg=False, dmac=8, dsgap=int(opts.get("dsg5", 12)), pairing=th, seed=seed)
                    if best is None or tc < best[1]: best = (r, tc)
            r, tc = best
            o_, e_ = process([("p", pm_[-8:], False), ("b", r + [pm_[0]], True)])
            res[half] = o_["b"][:-1]
            print("loop half", NQ, half, "est", tc)
        _LH[NQ] = res
        return res
    for half in range(2):
        pm_ = [x for x in lst[1 - half] if x.startswith("v_mfma")]
        pre = []
        for x in pm_[-5:]: pre += [x, "s_nop 0"] if "optpre" in flags else [x]
        body = lst[half] + (["s_cbranch_scc1 L_loop%d" % NQ] if half == lasth else [])
        best = None
        for th in (24, 40, 60, 80, 100, 130, 160):
            for seed in [None] + list(range(int(opts.get("seeds", 6)))):
                r, tc = schedule(lst[half], pre=pre, pairing=th, seed=seed, sentinel=pm_[0], **kw)
                mi = [i for i, x in enumerate(r) if x.startswith("v_mfma")][-5:] + [len(r) + (1 if half == lasth else 0)]
                if "optpre" in flags and any(mi[j + 1] - mi[j] < 2 for j in range(5)): tc += 500
                if half == lasth and (len(r) - mi[4] > 2 or r[-1].startswith("v_exp") or r[-1].startswith("buffer")): tc += 4
                if best is None or tc < best[1]: best = (r, tc, th, seed)
        res[half] = best[0]
        print("loop half", NQ, half, "est", best[1:])
    _LH[NQ] = res
    return res
def loop_halves_man(NQ):
    res = []
    lasth = 1 if TAILN % 2 == 0 else 0
    par = lambda s, t: (s * NQ + t) % 2
    nvs = NVS if NQ == 6 else 0
    ysl = NQ - 4
    for half, s in enumerate((2, 3)):
        buf = s % 2
        o = []
        rd = kreads(1 - buf, 1 - half) + vreads(1 - buf, 1 - half)
        d = kv_dma() if not SOLO else []
        x = ["v_xor_b32 v%d, s%d, v%d" % (V_KA + i, S_XM, V_KA + i) for i in range(4 + NVA)]
        for t in range(NQ):
            pvb = pv(buf, t - 1, par(s, t - 1), msum=(t - 1 >= nvs)) if t > 0 else pv(1 - buf, NQ - 1, par(s - 1, NQ - 1))
            qkb = qk(buf, t + 1, par(s, t + 1)) if t < NQ - 1 else qk(1 - buf, 0, par(s + 1, 0))
            reads = []
            if t >= ysl: reads = rd[:6]; rd = rd[6:]
            misc = []
            wv = ["s_waitcnt lgkmcnt(0)"]
            if NQ == 6:
                if t == 0:
                    misc = [x[0:2], x[2:4], x[4:5] + wv] if half else [None, None, wv]
                    if nvs == 0: misc = [None, None] + misc
                if t == 1:
                    misc = [x[5:7], x[7:9]] if half else []
                if t == 2:
                    misc = [[yw(NQ), "s_barrier"], d[0:1] + (x[9:10] if half else []), x[10:12] if half else None]
                if t == 3: misc = [d[1:2], d[2:3], d[3:4] + (["s_xor_b32 s%d, s%d, 0x8000" % (S_XM, S_XM)] if half else [])]
                if t == 4: misc = [d[4:5], d[5:6], d[6:7]]
                if t == 5: misc = [None, ["s_waitcnt lgkmcnt(2)"]] + ([["s_sub_u32 s%d, s%d, 1" % (S_CNT, S_CNT)], ["s_cmp_lg_u32 s%d, 0" % S_CNT]] if half == lasth else [])
            else:
                if t == 0: misc = [x[0:2], x[2:4], x[4:6], x[6:8], x[8:9] + wv] if half else [None, None, None, None, wv]
                if t == 1: misc = [[yw(NQ), "s_barrier"], d[0:1] + (x[9:10] if half else []), x[10:12] if half else None]
                if t == 2: misc = [d[1:2], d[2:3], d[3:4] + (["s_xor_b32 s%d, s%d, 0x8000" % (S_XM, S_XM)] if half else [])]
                if t == 3: misc = [d[4:5], d[5:6], d[6:7]]
                if t == 4: misc = [None, ["s_waitcnt lgkmcnt(2)"]] + ([["s_sub_u32 s%d, s%d, 1" % (S_CNT, S_CNT)], ["s_cmp_lg_u32 s%d, 0" % S_CNT]] if half == lasth else [])
            o += slot(pvb + qkb, par(s, t), reads, misc, vsum=(LS(t) if t < nvs else None))
        assert not rd
        res.append(o)
    return res

SA, ACC = V_OFF, 15
A_SA = 252
def epi_setup():
    o = ["v_accvgpr_read_b32 v%d, a%d" % (SA, A_SA)]
    o.append("v_mov_b32 v%d, 0" % ACC)
    o.append(("s_lshl_b32 s%d, s%d, 12" if "ilv" in flags else "s_mul_i32 s%d, s%d, 24576") % (S_QOFF, S_W))
    o.append("s_mov_b32 vcc_lo, 0x55555555"); o.append("s_mov_b32 vcc_hi, 0x55555555")
    return o
def vsum_reduce(t):
    x = LS(VSET.index(t)); T = V_NEGM + 4 * t + 2
    return ["v_mov_b32 v%d, v%d" % (T, x), "v_permlane32_swap_b32 v%d, v%d" % (x, T), "v_add_f32 v%d, v%d, v%d" % (x, x, T),
            "v_mov_b32 v%d, v%d" % (T, x), "v_permlane16_swap_b32 v%d, v%d" % (x, T), "v_add_f32 v%d, v%d, v%d" % (x, x, T)]
DPPX = "quad_perm:[1,0,3,2] row_mask:0xf bank_mask:0xf"
def epi(t, vs, pk=False):
    E_L = V_NEGM + 4 * t
    h = ["v_accvgpr_read_b32 v%d, a%d" % (E_L, A_L + 4 * t)]
    if vs: h.append("v_add_f32 v%d, v%d, v%d" % (E_L, E_L, LS(VSET.index(t))))
    h.append("v_add_f32 v%d, v%d, v%d" % (ACC, ACC, E_L))
    h.append("v_rcp_f32 v%d, v%d" % (E_L, E_L))
    m = []; sw = []; x = []
    pol = STL if t == LASTT[0] else STNT
    for s in range(4):
        b = V_O + 32 * t + 8 * s
        g = []
        if pk:
            for i in range(0, 8, 2): g.append("v_pk_mul_f32 %s, %s, %s op_sel_hi:[1,0]" % (vr(b + i, 2), vr(b + i, 2), vr(E_L, 2)))
        else:
            for i in range(8): g.append("v_mul_f32 v%d, v%d, v%d" % (b + i, b + i, E_L))
        for i in range(4): g.append("v_cvt_pk_bf16_f32 v%d, v%d, v%d" % (b + i, b + 2 * i, b + 2 * i + 1))
        m.append(g)
        sw.append([] if VMAP else ["v_permlane16_swap_b32 v%d, v%d" % (b, b + 2), "v_permlane16_swap_b32 v%d, v%d" % (b + 1, b + 3)])
    for p in range(2):
        X = V_O + 32 * t + 16 * p; Y = X + 8
        A = ["v_cndmask_b32_dpp v%d, v%d, v%d, vcc %s" % (X + 4 + i, Y + i, X + i, DPPX) for i in (0, 2, 1, 3)] + ["s_not_b64 vcc, vcc"]
        B = ["v_cndmask_b32_dpp v%d, v%d, v%d, vcc %s" % (Y + i, X + i, Y + i, DPPX) for i in range(4)] + ["s_not_b64 vcc, vcc"]
        if "nost" not in flags:
            A.append("buffer_store_dwordx4 %s, v%d, %s, s%d offen offset:%d%s" % (vr(X + 4), SA, sr(S_OD), S_QOFF, 128 * p, pol))
            B.append("buffer_store_dwordx4 %s, v%d, %s, s%d offen offset:%d%s" % (vr(Y), SA, sr(S_OD), S_QOFF, 128 * p + 256, pol))
        if p == 1: B.append("s_add_u32 s%d, s%d, %d" % (S_QOFF, S_QOFF, 16384 if "ilv" in flags else 4096))
        x.append((A, B))
    return h, m, sw, x
LASTT = [None]
def epi_body(m, sw, x):
    k = 2
    return (m[1][:k] + sw[0] + m[1][k:] + m[2][:k] + sw[1] + m[2][k:k + 2] + x[0][0] + m[2][k + 2:] + m[3][:k] + sw[2] + x[0][1][:3] + m[3][k:]
            + x[0][1][3:] + sw[3]), x[1][0] + x[1][1]
def epi_flat(t, vs):
    h, m, sw, x = epi(t, vs)
    body, fin = epi_body(m, sw, x)
    return h + m[0] + body, fin

def tail(NQ):
    LASTT[0] = NQ - 1
    nvs = NVS if NQ == 6 else 0
    if TAILN == 2:
        seq = [(30, 0, 0), (30, 1, 0), (31, 0, 1), (31, 1, 1)] + [(30 + b, t, b) for t in range(2, NQ) for b in (0, 1)]
        if "tq" in flags: seq = [(30 + b, t, b) for t in range(NQ) for b in (0, 1)]
        init = {0: 30}; off = lambda s_: s_ - 30; s0 = 30; w = 4 * (DEP - 1)
    else:
        e = max(2, NQ - int(opts.get("post", 3)))
        seq = [(29, t, 1) for t in range(e)] + [(30, 0, 0), (30, 1, 0), (31, 0, 1), (31, 1, 1)]
        seq += [(30 + b, t, b) for t in range(2, e) for b in (0, 1)]
        seq += [(30, t, 0) for t in range(e, NQ)]
        seq += [x for t in range(e, NQ) for x in ((31, t, 1), (29, t, 0))]
        init = {1: 29}; off = lambda s_: s_ - 28; s0 = 29; w = 4 * (DEP - 2)
    n = len(seq)
    p0 = (s0 * NQ) % 2
    hooks = {}
    def add(key, lines): hooks.setdefault(key, []).extend(lines)
    auto_loads(seq, init, hooks, off, lambda kind, s_: [])
    ppv = pv(1 - s0 % 2, NQ - 1, 1 - p0)
    pre = ppv[:1] + [yw(NQ, TAILN - 1), "s_barrier"] + hooks.pop(("aQK", -1)) + ppv[1:] + hooks.pop(("aPV", -1))
    pre += epi_setup()
    DL = int(opts.get("dl", 2))
    lastk = {t: k for k, (s_, t, b) in enumerate(seq)}
    dead = {}; prevd = -1
    for t in sorted(lastk, key=lambda t: lastk[t]):
        k = lastk[t]
        isv = NQ == 6 and t in VSET
        if isv: add(("aQK", k), vsum_reduce(t))
        h, m, sw, x = epi(t, isv, pk=True)
        if k == n - 1: m[0] = epi(t, isv)[1][0]
        else:
            h = h + ["\n".join(sum([g[:4] for g in m], []))]
            m = [g[4:] for g in m]
        e_ = h + m[0] + sw[0] + m[1] + sw[1] + x[0][0] + x[0][1] + m[2] + sw[2] + m[3] + sw[3] + x[1][0] + x[1][1]
        e_[-1] += " ; tag=e%d" % t
        add(("aPV", k), e_)
        if "dls" in opts:
            c = opts["dls"][t]
            hu = int(c)
            key = ("bPV", k + hu // 2) if hu % 2 == 0 else ("bQK", k + 2 + hu // 2)
            if key[1] < n - (1 if key[0] == "bPV" else 0): add(key, ["@after e%d" % t])
        else:
            d = max(k + DL, prevd + 1); prevd = d
            if d < n - 1: add(("bPV", d), ["@after e%d" % t])
    o = pipeline([(b, t, False) for (s_, t, b) in seq], p0, hooks, True, pre, None, sumfirst=True)
    r = []; pendtag = None
    for x in o:
        if x.startswith("@after"): pendtag = x.split()[1]
        else:
            r.append(x + (" ; after=" + pendtag if pendtag else "")); pendtag = None
    o, tc = schedule(r, pre=loop_body(NQ), dsgap=int(opts.get("dst", 16)))
    print("tail", NQ, "sched est", tc)
    o = stamp(4) + o + stamp(5)
    o += stamp(6)
    o.append("s_lshl_b32 s%d, s%d, 13" % (S_T0, S_W)); o.append("s_add_u32 s%d, s%d, 0x%x" % (S_T0, S_T0, LDS_X))
    o.append("s_mov_b32 s%d, 0x%x" % (S_T1, THRESH))
    o.append("v_cmp_ngt_f32 vcc, s%d, v%d" % (S_T1, ACC))
    o.append("s_cmp_lg_u64 vcc, 0")
    o.append("s_cselect_b32 s%d, 1, 0" % S_T1)
    o.append("v_mbcnt_lo_u32_b32 v4, -1, 0"); o.append("v_mbcnt_hi_u32_b32 v4, -1, v4")
    o.append("v_mov_b32 v5, s%d" % S_T1)
    o.append("v_mov_b32 v6, s%d" % S_T0)
    o.append("ds_write_b32 v6, v5 offset:6144")
    o.append("v_and_b32 v6, 3, v4")
    o.append("v_lshlrev_b32 v6, 13, v6")
    o.append("v_add_u32 v6, 0x%x, v6" % LDS_X)
    o.append("s_waitcnt lgkmcnt(0)")
    o.append("s_barrier")
    o.append("ds_read_b32 v5, v6 offset:6144")
    o.append("s_waitcnt lgkmcnt(0)")
    o.append("v_cmp_ne_u32 vcc, 0, v5")
    o.append("s_cmp_lg_u32 s%d, 0" % S_REDO)
    o.append("s_cbranch_scc1 L_fin")
    o.append("s_branch L_fin" if "noredo" in flags else "s_cbranch_vccz L_fin")
    return o

def redo(NQ):
    o = ["s_waitcnt vmcnt(0)", "s_barrier", "s_mov_b32 s%d, 1" % S_REDO]
    M = V_O + 64; AD = V_KA + 2
    o.append("v_and_b32 v%d, 15, v4" % AD); o.append("v_lshlrev_b32 v%d, 8, v%d" % (AD, AD))
    o.append("v_lshrrev_b32 v5, 4, v4"); o.append("v_lshl_add_u32 v%d, v5, 4, v%d" % (AD, AD))
    for t in range(NQ): o.append("v_mov_b32 v%d, 0xff800000" % (M + t))
    o.append("s_mov_b32 s%d, 0" % S_T0)
    body = []
    for ks in range(4):
        body.append("buffer_load_dwordx4 %s, v%d, %s, s%d offen offset:%d" % (ar(A_K + 4 * ks), AD, sr(S_KD), S_T0, 64 * ks))
    body.append("s_waitcnt vmcnt(0)")
    for t in range(NQ):
        d = vr(V_O + 4 * t)
        for ks in range(4):
            body.append("%s %s, %s, %s, %s" % (MF, d, ar(A_K + 4 * ks), ar(A_Q + 16 * t + 4 * ks), d if ks else "0"))
    body.append("s_nop 7")
    for t in range(NQ):
        b = V_O + 4 * t
        body.append("v_max3_f32 v%d, v%d, v%d, v%d" % (M + t, M + t, b, b + 1))
        body.append("v_max3_f32 v%d, v%d, v%d, v%d" % (M + t, M + t, b + 2, b + 3))
    body.append("s_add_u32 s%d, s%d, 4096" % (S_T0, S_T0))
    body.append("s_cmp_lt_u32 s%d, 0x40000" % S_T0)
    body.append("s_cbranch_scc1 L_max%d" % NQ)
    post = []
    for t in range(NQ):
        m, m2 = M + t, 5
        post += ["v_mov_b32 v%d, v%d" % (m2, m), "v_permlane32_swap_b32 v%d, v%d" % (m, m2), "v_max_f32 v%d, v%d, v%d" % (m, m, m2),
                 "v_mov_b32 v%d, v%d" % (m2, m), "v_permlane16_swap_b32 v%d, v%d" % (m, m2), "v_max_f32 v%d, v%d, v%d" % (m, m, m2),
                 "v_sub_f32 v%d, 0, v%d" % (V_NEGM + 4 * t, m)]
    post += offs() + first_dma()
    post.append("s_branch L_restart")
    return o, body, post

def fin():
    o = ["L_fin:"]
    if STAMP:
        o.append("s_waitcnt vmcnt(0)")
        o += stamp(7)
        if "pad" in opts:
            o.append("s_mov_b32 s80, %d" % (int(opts["pad"]) * 100))
            if "pb" in opts:
                cyc = 0 if "pcyc" in flags else 2
                o.append("s_sub_u32 s81, s%d, s%d" % (S_ST + 4 * int(opts["pb"]) + cyc, S_ST + 4 * int(opts.get("pa", 0)) + cyc))
                if "pcyc" in flags: o.append("s_lshr_b32 s81, s81, 4")
                o.append("s_add_u32 s80, s80, s81")
            o.append("L_spin:")
            o.append("s_memrealtime s[82:83]"); o.append("s_waitcnt lgkmcnt(0)")
            o.append("s_sub_u32 s81, s82, s%d" % (S_ST + 2))
            o.append("s_cmp_lt_u32 s81, s80"); o.append("s_cbranch_scc1 L_spin")
            o.append("s_branch L_end")
        w = int(opts.get("sw", 0))
        o.append("s_cmp_lg_u32 s%d, %d" % (S_W, w)); o.append("s_cbranch_scc1 L_end")
        o.append("s_lshl_b32 s3, s2, 9")
        o.append("s_add_u32 s%d, s%d, s3" % (S_WS, S_WS)); o.append("s_addc_u32 s%d, s%d, 0" % (S_WS + 1, S_WS + 1))
        n = nstamp[0]
        for i in range(4 * n): o.append("v_mov_b32 v%d, s%d" % (64 + i, S_ST + i))
        o.append("v_mov_b32 v1, 0"); o.append("s_mov_b64 exec, 1")
        for i in range(n): o.append("global_store_dwordx4 v1, %s, %s offset:%d" % (vr(64 + 4 * i), sr(S_WS, 2), 16 * i))
    o.append("L_end:"); o.append("s_endpgm")
    return o

su = setup(); cm = common()
code = None; errs = []
for NQ in (6, 5):
    ev, od = loop_halves(NQ)
    br = ["s_cbranch_scc1 L_loop%d" % NQ]
    r1, rb, r2 = redo(NQ)
    pro = prologue(NQ)
    if TAILN % 2 == 0 and CPRO % 2 == 1:
        pro = pro + ["s_branch L_odd%d" % NQ]
        lp = [("od", od + br, False), ("ev", ev, False)] * 2 + [("od", od + br, False)]
    elif TAILN % 2 == 0:
        lp = [("ev", ev, False), ("od", od + br, False)] * 2
    else:
        pro = pro + ["s_branch L_even%d" % NQ]
        lp = [("ev", ev + br, False), ("od", od, False)] * 2 + [("ev", ev + br, False)]
    segs = [("su", su, True), ("cm", cm, True), ("pro", pro, True)] + lp + [
            ("tail", tail(NQ), True), ("r1", r1, True), ("rb", rb, False), ("rb", rb, False), ("r2", r2, True), ("cm", cm, True)]
    out, e = process(segs)
    errs += ["NQ%d: %s" % (NQ, x) for x in e]
    if code is None: code = out["su"] + out["cm"]
    else: code.append("L_pro5:")
    code += out["pro"] + [".p2align %d" % int(opts.get("al", 6)), "L_loop%d:" % NQ]
    code += (out["ev"] + ["L_odd%d:" % NQ] + out["od"]) if TAILN % 2 == 0 else (out["od"] + ["L_even%d:" % NQ] + out["ev"])
    code += out["tail"] + out["r1"] + ["L_max%d:" % NQ] + out["rb"] + out["r2"]
code += fin()
if "force" not in flags:
    for e in errs[:10]: print("ERR", e)
    if errs: sys.exit(1)
hdr = open("standalone__mha_softmax__near_ridge.s.ref").read().split("; Override launch")[0]
L = hdr.rstrip("\n").split("\n")
L.append("; @launch grid=(256,1,1) block=(256,1,1) lds=163840")
L += """;
; Attention forward, one workgroup (4 waves, one per SIMD) per (batch, head); written by a generator script.
;  * 368 query rows = 23 tiles of 16: waves 0-2 own 6 tiles, wave 3 owns 5 tiles and streams K/V for everybody.
;  * K/V arrive by LDS-DMA in 32-key sub-tiles (8-slot ring, XOR-swizzled source), one barrier per sub-tile.
;  * 16x16x32 bf16 MFMA: S^T = K Q^T (Q pre-scaled by log2(e)/sqrt(D)), P = exp2(S^T - m), O^T += V^T P,
;    row sums by a ones-row MFMA or VALU adds; m enters as the C operand of the first MFMA of each chain.
;  * Softmax max guard: m is the row max over the first 32 keys (never above the true max) plus 8, an exact
;    2^-8 scale that cancels in O/l. The final row sums bound every P; if any is not below 2^16 (or is NaN),
;    i.e. some score might exceed that max by 24 in log2 units, the workgroup takes the fallback: it computes
;    the true row max over all keys (L_max*) and runs the whole pass again with it.
;  * The first instructions pull the kernel's own code into L2 so that the straight-line parts do not
;    stall on instruction fetch.""".split("\n")
if STAMP: L.append("; nstamps %d" % nstamp[0]); L.append("; variant: " + variant)
L += ['.amdgcn_target "amdgcn-amd-amdhsa--gfx950"', ".text", ".globl " + NAME, ".p2align 8", ".type %s,@function" % NAME, NAME + ":"]
for c in code: L.append(c if c.endswith(":") or c.startswith(".") else "    " + c)
L += ['.section .rodata,"a"', ".p2align 6", ".amdhsa_kernel " + NAME,
      "  .amdhsa_next_free_vgpr 512", "  .amdhsa_next_free_sgpr 102", "  .amdhsa_accum_offset 256",
      "  .amdhsa_group_segment_fixed_size 0", "  .amdhsa_kernarg_size 48", "  .amdhsa_user_sgpr_count 2",
      "  .amdhsa_user_sgpr_kernarg_segment_ptr 1", "  .amdhsa_system_sgpr_workgroup_id_x 1", ".end_amdhsa_kernel"]
open(sys.argv[1], "w").write("\n".join(L) + "\n")
```

```python
import sys, struct, math
sys.path.insert(0, "work")
from chk2 import process
from sched import schedule
import sched

NAME = "standalone__mha_softmax__near_ridge_kernel"
variant = sys.argv[2] if len(sys.argv) > 2 else ""
opts = dict(kv.split("=") for kv in variant.split(",") if "=" in kv)
flags = set(kv for kv in variant.split(",") if kv and "=" not in kv)
STAMP = "stamp" in flags
def f2u(x): return struct.unpack("<I", struct.pack("<f", x))[0]
SCALE = f2u(128 ** -0.5 * math.log2(math.e))
THRESH = f2u(2.0 ** int(opts.get("thr", 24)))
NVS = int(opts.get("nvs", 2))

VSET = [int(c) for c in opts.get("vs", "012345"[:NVS])]
NVS = len(VSET)
sched.WFREE[0] = int(opts.get("wfree", 1))
V_LS = 0
V_OFF = 3
V_KA = 4
V_VA = 8
V_NEGM = 16
V_S = 40
V_P = 56
V_O = 64
V_SEL = V_O + 160; V_OFF2 = V_O + 170; V_QA = V_O + 172; V_D = V_O + 176
def bf16r(x):
    u = f2u(x); return (u + 0x7fff + ((u >> 16) & 1)) >> 16
def u2f(u): return struct.unpack("<f", struct.pack("<I", u))[0]
C_HI = bf16r(u2f(SCALE)); C_LO = bf16r(u2f(SCALE) - u2f(C_HI << 16))
A_Q = 0; A_K = 96; A_V = 160; A_L = 224; A_ONE = 248
S_QD, S_KD, S_VD, S_OD = 4, 8, 12, 16
S_W, S_KV, S_CNT, S_XM, S_SC, S_REDO = 20, 21, 22, 23, 24, 25
S_T0, S_T1, S_T2, S_QOFF = 26, 27, 28, 29
S_ROT = 24; S_SRC = 32; S_SRC2 = 33; S_WS = 30; S_MSK = 32; S_SC2 = 34; S_ST = 36
LDS_V = 0x10000; LDS_X = 0x20000
NT = "".join(" " + x for x in opts.get("ld", "nt").split("+") if x)
STNT = "".join(" " + x for x in opts.get("st", "sc0+sc1+nt").split("+") if x)
STL = "".join(" " + x for x in opts.get("stl", opts.get("st", "sc0+sc1+nt")).split("+") if x)
def vr(b, n=4): return "v[%d:%d]" % (b, b + n - 1)
def ar(b, n=4): return "a[%d:%d]" % (b, b + n - 1)
def sr(b, n=4): return "s[%d:%d]" % (b, b + n - 1)
MF = "v_mfma_f32_16x16x32_bf16"
nstamp = [0]
def stamp(idx):
    if not STAMP: return []
    nstamp[0] = max(nstamp[0], idx + 1)
    return ["s_memtime %s" % sr(S_ST + 4 * idx, 2), "s_memrealtime %s" % sr(S_ST + 4 * idx + 2, 2), "s_waitcnt lgkmcnt(0)"]

OBIAS = "obias" in flags
S_OB = 34
def obias():
    G = V_O + 128; X = 12; T = 13; I = 14
    o = ["%s %s, %s, %s, 0" % (MF, vr(G + 4 * dt), ar(A_V + 4 * dt), ar(A_V + 4 * dt)) for dt in range(8)]
    o += ["v_mbcnt_lo_u32_b32 v%d, -1, 0" % I, "v_mbcnt_hi_u32_b32 v%d, -1, v%d" % (I, I),
          "v_lshrrev_b32 v%d, 4, v%d" % (T, I), "v_mul_u32_u24 v%d, 20, v%d" % (T, T), "v_sub_u32 v%d, v%d, v%d" % (I, I, T),
          "v_mov_b32 v%d, 0x%x" % (X, f2u(2.0 ** 100))]
    for r in range(4):
        o += ["v_min3_f32 v%d, v%d, v%d, v%d" % (G + r, G + r, G + 4 + r, G + 8 + r),
              "v_min3_f32 v%d, v%d, v%d, v%d" % (G + 12 + r, G + 12 + r, G + 16 + r, G + 20 + r),
              "v_min3_f32 v%d, v%d, v%d, v%d" % (G + r, G + r, G + 24 + r, G + 28 + r),
              "v_min3_f32 v%d, v%d, v%d, v%d" % (G + r, G + r, G + 12 + r, X)]
    for r in range(4):
        o += ["v_cmp_eq_u32 vcc, %d, v%d" % (r, I), "v_cndmask_b32 v%d, v%d, v%d, vcc" % (X, X, G + r)]
    o += ["v_mov_b32 v%d, v%d" % (T, X), "v_permlane32_swap_b32 v%d, v%d" % (X, T), "v_min_f32 v%d, v%d, v%d" % (X, X, T),
          "v_mov_b32 v%d, v%d" % (T, X), "v_permlane16_swap_b32 v%d, v%d" % (X, T), "v_min_f32 v%d, v%d, v%d" % (X, X, T)]
    for k in (8, 4, 2, 1): o.append("v_min_f32_dpp v%d, v%d, v%d row_ror:%d row_mask:0xf bank_mask:0xf" % (X, X, X, k))
    o += ["v_mul_f32 v%d, 0x%x, v%d" % (X, f2u(2.0 ** int(opts.get("obk", -7))), X), "v_sqrt_f32 v%d, v%d" % (X, X),
          "v_and_b32 v%d, 0x7f800000, v%d" % (X, X),
          "s_cmp_lg_u32 s%d, 0" % S_REDO, "s_cselect_b32 s%d, 0, 0x3fc00000" % S_OB,
          "v_mul_f32 v%d, s%d, v%d" % (X, S_OB, X)]
    o += ["v_mov_b32 v%d, v%d" % (X + i, X) for i in (1, 2, 3)] + ["v_readfirstlane_b32 s%d, v%d" % (S_OB, X)]
    return o
def LS(i): return (0, 1, 2, 12, 13, 14)[i]
def qk(buf, t, par, first=False):
    r = []
    for T in range(2):
        d = vr(V_S + 8 * par + 4 * T)
        for ks in range(4):
            c = d if ks else ("0" if first else vr(V_NEGM + 4 * t))
            r.append("%s %s, %s, %s, %s" % (MF, d, ar(A_K + 32 * buf + 16 * T + 4 * ks), ar(A_Q + 16 * t + 4 * ks), c))
    if "qkil" in flags: r = [r[0], r[4], r[1], r[5], r[2], r[6], r[3], r[7]]
    return r
def pv(buf, t, par, first=False, msum=True, sumfirst=False):
    r = []
    P = vr(V_P + 4 * par)
    for dt in range(8):
        o = vr(V_O + 32 * t + 4 * dt)
        PP = P
        if "pvchain" in flags and not first:
            o = vr(V_O + 32 * t + 4 * (4 * buf + dt // 2)); PP = vr(V_P + 4 * ((par + dt) % 2))
        if "pvchainb" in flags and not first:
            o = vr(V_O + 32 * t + 4 * (4 * buf + dt // 2))
        if "pvalt" in flags and not first:
            PP = vr(V_P + 4 * ((par + dt) % 2))
        r.append("%s %s, %s, %s, %s" % (MF, o, ar(A_V + 32 * buf + 4 * dt), PP, ("v[12:15]" if ("ooff" in opts or OBIAS) else "0") if first else o))
    if msum:
        l = ar(A_L + 4 * t)
        m = "%s %s, %s, %s, %s" % (MF, l, ar(A_ONE), P, "0" if first else l)
        r = [m] + r if (sumfirst or "sf" in flags) else r + [m]
    if "swp" in flags:
        def swp0(s):
            h, r = s.split(" ", 1); p = r.split(", "); return h + " " + ", ".join([p[0], p[2], p[1], p[3]])
        r = [swp0(x) for x in r]
    return r
def kreads(buf, sub):
    return ["ds_read_b128 %s, v%d offset:%d" % (ar(A_K + 32 * buf + 16 * T + 4 * ks), V_KA + ks, sub * 8192 + T * 4096) for T in range(2) for ks in range(4)]
VMAP = True
NVA = 4 if VMAP else 8
def vreads(buf, sub):
    if VMAP:
        return ["ds_read_b64_tr_b16 %s, v%d offset:%d" % (ar(A_V + 32 * buf + 4 * dt + 2 * T, 2), V_VA + (dt >> 1), sub * 8192 + T * 4096 + 8 * (dt & 1)) for dt in range(8) for T in range(2)]
    return ["ds_read_b64_tr_b16 %s, v%d offset:%d" % (ar(A_V + 32 * buf + 4 * dt + 2 * T, 2), V_VA + dt, sub * 8192 + T * 4096) for dt in range(8) for T in range(2)]
def dma2(srd, soff):
    return ["buffer_load_dwordx4 v%d, %s, s%d offen%s lds" % (V_OFF, sr(srd), soff, NT),
            "buffer_load_dwordx4 v%d, %s, s%d offen offset:2048%s lds" % (V_OFF, sr(srd), soff, NT)]
ROT = "rot" in opts
def src_of(end=True):
    if not ROT: return [], S_KV
    r = ["s_add_u32 s%d, s%d, s%d" % (S_SRC, S_KV, S_ROT), "s_and_b32 s%d, s%d, 0x3ffff" % (S_SRC, S_SRC)]
    if end: r += ["s_and_b32 s%d, s%d, 0x40000" % (S_SRC2, S_KV), "s_or_b32 s%d, s%d, s%d" % (S_SRC, S_SRC, S_SRC2)]
    return r, S_SRC
def kv_dma():
    pre, so = src_of(not SOLO)
    return (pre + ["s_and_b32 m0, s%d, 0xffff" % S_KV] + dma2(S_KD, so) + ["s_bitset1_b32 m0, 16"] + dma2(S_VD, so)
            + ["s_add_u32 s%d, s%d, 8192" % (S_KV, S_KV)])
SOLO = "solo" in flags
def kv_full():
    r, so = src_of()
    for h in range(2):
        r.append("s_and_b32 m0, s%d, 0xffff" % S_KV)
        r += ["buffer_load_dwordx4 v%d, %s, s%d offen offset:%d%s lds" % (V_OFF if p & 1 else V_OFF2, sr(S_KD), so, 1024 * p, NT) for p in range(4)]
        r.append("s_bitset1_b32 m0, 16")
        r += ["buffer_load_dwordx4 v%d, %s, s%d offen offset:%d%s lds" % (V_OFF if p & 1 else V_OFF2, sr(S_VD), so, 1024 * p, NT) for p in range(4)]
        r.append("s_add_u32 s%d, s%d, 4096" % (S_KV, S_KV))
        if ROT and h == 0: r.append("s_add_u32 s%d, s%d, 4096" % (so, so))
    return r
def yw(NQ, back=1):
    if not SOLO: return "s_waitcnt vmcnt(%d)" % (4 * (DEP - back))
    return "s_waitcnt vmcnt(%d)" % (0 if NQ == 6 else 16 * (DEP - back))
def two_dma(srd, ldsbase):
    if ROT:
        return (["s_add_u32 m0, s%d, 0x%x" % (S_T0, ldsbase), "s_add_u32 s%d, s%d, s%d" % (S_SRC, S_T0, S_ROT)] + dma2(srd, S_SRC)
                + ["s_add_u32 m0, s%d, 0x%x" % (S_T1, ldsbase), "s_add_u32 s%d, s%d, s%d" % (S_SRC, S_T1, S_ROT)] + dma2(srd, S_SRC))
    return (["s_add_u32 m0, s%d, 0x%x" % (S_T0, ldsbase)] + dma2(srd, S_T0) + ["s_add_u32 m0, s%d, 0x%x" % (S_T1, ldsbase)] + dma2(srd, S_T1))
EARLY = int(opts.get("early", 0))
EMAP = EARLY or "emap" in flags
def qlds(t):
    if EMAP: return (0x8000, 0x18000, 0x1c000, 0x20000, 0x24000, 0xc000)[t]
    return (0x8000, 0xc000, 0x18000, 0x1c000, 0x20000, 0x24000)[t]
def q_dma(t):
    r = ["s_add_u32 m0, s%d, 0x%x" % (S_T2, qlds(t))]
    for p in range(4):
        r.append("buffer_load_dwordx4 v%d, %s, s%d offen offset:%d%s lds" % (V_OFF2 if p & 1 else V_OFF, sr(S_QD), S_QOFF, 1024 * p, NT))
    r.append("s_add_u32 s%d, s%d, %d" % (S_QOFF, S_QOFF, 16384 if "ilv" in flags else 4096))
    return r
def q_read(t):
    r = []
    if t == (1 if EMAP else 2): r += ["v_add_u32 v%d, 0x18000, v%d" % (V_QA + ks, V_QA + ks) for ks in range(4)]
    if EMAP and t == 5: r += ["v_subrev_u32 v%d, 0x18000, v%d" % (V_QA + ks, V_QA + ks) for ks in range(4)]
    off = qlds(t) - (0x18000 if qlds(t) >= 0x18000 else 0)
    return r + ["ds_read_b128 %s, v%d offset:%d" % (ar(A_Q + 16 * t + 4 * ks), V_QA + ks, off) for ks in range(4)]
def sm_items(par):
    S = V_S + 8 * par; P = V_P + 4 * par
    ex = ["v_exp_f32 v%d, v%d" % (S + i, S + i) for i in range(8)]
    cv = ["v_cvt_pk_bf16_f32 v%d, v%d, v%d" % (P + i, S + 2 * i, S + 2 * i + 1) for i in range(4)]
    return ex, cv
def sm_seq(par):
    ex, cv = sm_items(par)
    return [ex[0], ex[1], ex[2], cv[0], ex[3], ex[4], cv[1], ex[5], ex[6], cv[2], ex[7], "@gap", cv[3]]
def cost(s):
    if s.startswith("v_exp") or s.startswith("v_rcp") or s.startswith("buffer_"): return 8
    return 4
def merge(a, b):
    ta = sum(map(cost, a)) or 1; tb = sum(map(cost, b)) or 1
    out = []; i = j = 0; ca = cb = 0
    while i < len(a) or j < len(b):
        if j >= len(b) or (i < len(a) and ca * tb <= cb * ta): out.append(a[i]); ca += cost(a[i]); i += 1
        else: out.append(b[j]); cb += cost(b[j]); j += 1
    return out
def weave(mf, fill, start=0, end=None):
    n = len(mf); end = n if end is None else end
    fill = [f for f in fill if f != "@gap"]
    tot = sum(map(cost, fill)); ng = max(end - start, 1)
    out = []; i = 0; used = 0
    for g in range(n):
        out.append(mf[g])
        if g < start or g >= end: continue
        per = max(8.0, tot / ng)
        lim = per * (g - start + 1)
        gap = 0
        while i < len(fill) and used + cost(fill[i]) <= lim + 0.01 and (gap + cost(fill[i]) <= max(8, math.ceil(per / 4) * 4 + 4)):
            out.append(fill[i]); used += cost(fill[i]); gap += cost(fill[i]); i += 1
        if g == end - 1:
            out += fill[i:]; i = len(fill)
    out += fill[i:]
    return out

def setup():
    o = []
    o.append("s_load_dwordx4 s[4:7], s[0:1], 0")
    o.append("s_load_dwordx4 s[12:15], s[0:1], 16")
    if STAMP:
        o.append("s_memtime %s" % sr(S_ST, 2)); o.append("s_memrealtime %s" % sr(S_ST + 2, 2)); nstamp[0] = 1
    o += ["s_cmpk_ge_u32 s2, 256", "s_cbranch_scc1 L_end"]
    if "nopf" not in flags: o += codepf(V_S, "v0")
    HD = "s2"
    if "remap" in flags:
        o += ["s_and_b32 s3, s2, 7", "s_lshr_b32 s33, s2, 3", "s_lshl_b32 s3, s3, 5", "s_or_b32 s33, s33, s3"]; HD = "s33"
    o.append("v_lshrrev_b32 v1, 6, v0")
    o.append("s_lshl_b32 s3, %s, 18" % HD)
    o.append("v_readfirstlane_b32 s%d, v1" % S_W)
    o.append("v_and_b32 v0, 63, v0")
    o.append("s_mul_i32 s35, %s, 94208" % HD)
    o.append("s_mov_b32 s10, 0x40000"); o.append("s_mov_b32 s11, 0x20000")
    o.append("s_mov_b32 s18, 94208"); o.append("s_mov_b32 s19, s11")
    if ROT:
        m = opts["rot"]
        if m == "a": o += ["s_and_b32 s%d, s2, 15" % S_ROT]
        elif m == "b": o += ["s_bfe_u32 s%d, s2, 0x40003" % S_ROT]
        elif m == "c": o += ["s_lshr_b32 s%d, s2, 4" % S_ROT, "s_add_u32 s%d, s%d, s2" % (S_ROT, S_ROT), "s_and_b32 s%d, s%d, 15" % (S_ROT, S_ROT)]
        elif m == "d": o += ["s_lshr_b32 s%d, s2, 4" % S_ROT]
        o += ["s_lshl_b32 s%d, s%d, 14" % (S_ROT, S_ROT)]
    o += offs()[2:]
    o.append("s_waitcnt lgkmcnt(0)")
    o.append("s_add_u32 s8, s6, s3"); o.append("s_addc_u32 s9, s7, 0")
    o.append("s_add_u32 s4, s4, s35"); o.append("s_addc_u32 s5, s5, 0")
    o.append("s_mov_b32 s6, s18"); o.append("s_mov_b32 s7, s19")
    o += first_dma()
    o.append("s_add_u32 s16, s14, s35"); o.append("s_addc_u32 s17, s15, 0")
    o.append("s_add_u32 s12, s12, s3"); o.append("s_addc_u32 s13, s13, 0")
    o.append("s_mov_b32 s14, s10"); o.append("s_mov_b32 s15, s11")
    o.append("s_mov_b32 s%d, 0" % S_REDO)
    o.append("v_mov_b32 v%d, 0x7f800000" % V_NEGM)
    for t in range(1, 6): o.append("v_mov_b32 v%d, v%d" % (V_NEGM + 4 * t, V_NEGM))
    if STAMP: o += ["s_load_dwordx2 %s, s[0:1], 40" % sr(S_WS, 2), "s_waitcnt lgkmcnt(0)"]
    return o
ORD = int(opts.get("ord", 1))
def first_dma():
    if ORD == 1: return q_dma(0) + two_dma(S_KD, 0) + q_dma(1)
    return q_dma(0) + two_dma(S_KD, 0)
def codepf(T, tid):
    o = ["s_getpc_b64 s[34:35]", "L_pc:"]
    o.append("v_mov_b32 v%d, 0" % (T + 1))
    o.append("v_lshlrev_b32 v%d, 7, %s" % (T + 6, tid))
    for k in range(int(opts.get("npf", 1))):
        if k: o.append("v_add_u32 v%d, 0x8000, v%d" % (T + 6, T + 6))
        o.append("v_min_u32 v%d, L_fin-L_pc, v%d" % (T, T + 6))
        o.append("v_lshl_add_u64 %s, %s, 0, s[34:35]" % (vr(T + 2 + 2 * k, 2), vr(T, 2)))
        o.append("global_load_dword v%d, %s, off" % (V_P + 2 + k, vr(T + 2 + 2 * k, 2)))
    return o
def offs():
    o = []
    o.append("v_mbcnt_lo_u32_b32 v0, -1, 0"); o.append("v_mbcnt_hi_u32_b32 v0, -1, v0")
    o.append("s_and_b32 s%d, s%d, 1" % (S_T0, S_W))
    o.append("s_lshl_b32 s%d, s%d, 5" % (S_XM, S_T0))
    o.append("v_lshrrev_b32 v1, 4, v0")
    o.append("v_lshlrev_b32 v%d, 2, v1" % V_OFF)
    o.append("v_xor_b32 v%d, v%d, v0" % (V_OFF, V_OFF))
    o.append("v_and_b32 v%d, 15, v%d" % (V_OFF, V_OFF))
    o.append("v_lshlrev_b32 v%d, 4, v%d" % (V_OFF, V_OFF))
    o.append("v_lshl_add_u32 v%d, v1, 8, v%d" % (V_OFF, V_OFF))
    o.append("v_xor_b32 v%d, s%d, v%d" % (V_OFF, S_XM, V_OFF))
    o.append("v_xor_b32 v%d, 32, v%d" % (V_OFF2, V_OFF))
    o.append("s_and_b32 s%d, s%d, 2" % (S_T1, S_W))
    o.append("s_lshl1_add_u32 s%d, s%d, s%d" % (S_T0, S_T1, S_T0))
    o.append("s_lshl_b32 s%d, s%d, 10" % (S_T0, S_T0))
    o.append("s_add_u32 s%d, s%d, 8192" % (S_T1, S_T0))
    o.append("s_add_u32 s%d, s%d, 16384" % (S_KV, S_T0))
    o.append(("s_lshl_b32 s%d, s%d, 12" if "ilv" in flags else "s_mul_i32 s%d, s%d, 24576") % (S_QOFF, S_W))
    o.append("s_lshl_b32 s%d, s%d, 12" % (S_T2, S_W))
    return o
def common():
    o = ["L_restart:"]
    if ORD != 1: o += two_dma(S_VD, LDS_V)
    t = V_S
    for i in (0, 1, 4, 5, 8, 9): o.append("v_mov_b32 v%d, 0" % (V_SEL + i))
    o.append("v_bfe_u32 v%d, v0, 1, 3" % t)
    o.append("v_lshlrev_b32 v%d, 1, v1" % (t + 1))
    o.append("v_and_b32 v%d, 1, v0" % (t + 2)); o.append("v_lshlrev_b32 v%d, 4, v%d" % (t + 2, t + 2))
    o.append("v_mov_b32 v%d, 0x%x" % (t + 3, C_HI)); o.append("v_mov_b32 v%d, 0x%x" % (t + 4, C_LO))
    o.append("v_cmp_eq_u32 vcc, v%d, v%d" % (t, t + 1))
    o.append("v_lshlrev_b32 v%d, v%d, v%d" % (t + 3, t + 2, t + 3)); o.append("v_lshlrev_b32 v%d, v%d, v%d" % (t + 4, t + 2, t + 4))
    o.append("v_or_b32 v%d, 1, v%d" % (t + 1, t + 1))
    o.append("v_cndmask_b32 v%d, 0, v%d, vcc" % (V_SEL + 2, t + 3)); o.append("v_cndmask_b32 v%d, 0, v%d, vcc" % (V_SEL + 6, t + 4))
    o.append("v_cmp_eq_u32 vcc, v%d, v%d" % (t, t + 1))
    o.append("v_cndmask_b32 v%d, 0, v%d, vcc" % (V_SEL + 3, t + 3)); o.append("v_cndmask_b32 v%d, 0, v%d, vcc" % (V_SEL + 7, t + 4))
    o.append("v_and_b32 v%d, 3, v0" % t); o.append("v_lshlrev_b32 v%d, 2, v%d" % (t, t))
    o.append("v_lshrrev_b32 v%d, 1, v0" % (t + 1)); o.append("v_and_b32 v%d, 2, v%d" % (t + 1, t + 1))
    o.append("v_or_b32 v%d, v%d, v%d" % (t, t, t + 1))
    o.append("v_xor_b32 v%d, v%d, v1" % (t, t))
    o.append("v_lshlrev_b32 v%d, 4, v%d" % (t, t))
    o.append("v_and_b32 v%d, 15, v0" % (t + 1))
    o.append("v_lshl_add_u32 v%d, v%d, 8, v%d" % (V_KA, t + 1, t))
    for ks in range(1, 4): o.append("v_xor_b32 v%d, %d, v%d" % (V_KA + ks, 64 * ks, V_KA))
    o.append("v_and_b32 v%d, 12, v0" % t)
    o.append("v_and_b32 v%d, 1, v1" % (t + 1)); o.append("v_lshlrev_b32 v%d, 1, v%d" % (t + 1, t + 1))
    o.append("v_or_b32 v%d, v%d, v%d" % (t, t, t + 1))
    o.append("v_lshlrev_b32 v%d, 4, v%d" % (t, t))
    o.append("v_and_b32 v%d, 3, v0" % (t + 1)); o.append("v_lshlrev_b32 v%d, %d, v%d" % (t + 1, 4 if VMAP else 3, t + 1))
    o.append("v_xor_b32 v%d, v%d, v%d" % (t, t, t + 1))
    o.append("v_lshrrev_b32 v%d, 2, v0" % (t + 1))
    o.append("v_lshl_add_u32 v%d, v%d, 8, v%d" % (t, t + 1, t))
    o.append("v_add_u32 v%d, 0x%x, v%d" % (V_VA, LDS_V, t))
    for dt in range(1, NVA): o.append("v_xor_b32 v%d, %d, v%d" % (V_VA + dt, (64 if VMAP else 32) * dt, V_VA))
    o.append("v_and_b32 v%d, 3, v0" % t); o.append("v_cmp_eq_u32 vcc, 0, v%d" % t)
    o.append("v_mov_b32 v%d, 0x3f803f80" % (t + 1))
    o.append("s_or_b32 s%d, s%d, s%d" % (S_XM, S_XM, S_T2))
    o.append("v_cndmask_b32 v%d, 0, v%d, vcc" % (t, t + 1))
    for i in range(4): o.append("v_accvgpr_write_b32 a%d, v%d" % (A_ONE + i, t))
    for ks in range(4): o.append("v_xor_b32 v%d, s%d, v%d" % (V_QA + ks, S_XM, V_KA + ks))
    if "ooff" in opts:
        for i in range(4): o.append("v_mov_b32 v%d, 0x%x" % (12 + i, f2u(float(opts["ooff"]))))
    o.append("v_and_b32 v%d, 14, v0" % t); o.append("v_lshlrev_b32 v%d, 8, v%d" % (t, t))
    o.append("v_and_b32 v%d, 1, v0" % (t + 1)); o.append("v_lshl_add_u32 v%d, v%d, 6, v%d" % (t, t + 1, t))
    o.append("v_lshl_add_u32 v%d, v1, 4, v%d" % (t, t))
    o.append("v_accvgpr_write_b32 a%d, v%d" % (A_SA, t))
    if "fine" in flags: o += stamp(13)
    if "ibw0" in flags:
        o += two_dma(S_VD, LDS_V) if ORD == 1 else q_dma(1)
        o.append("s_waitcnt vmcnt(12)")
        o += q_read(0)
    else:
        o.append("s_waitcnt vmcnt(8)")
        if "fine" in flags: o += stamp(14)
        o += q_read(0)
        o += two_dma(S_VD, LDS_V) if ORD == 1 else q_dma(1)
    o += schedule(sum([pm(0, k) + pc(0, k) for k in range(4)], []))[0]
    if "ibw0" in flags: o += q_dma(2) + ["s_waitcnt vmcnt(12)"]
    else: o += ["s_waitcnt vmcnt(8)"] + q_dma(2)
    if ORD == 3: o += ["s_waitcnt vmcnt(8)"] + q_dma(3)
    o.append("s_barrier")
    o += kreads(0, 0) + kreads(1, 1)
    o += stamp(1)
    o.append("s_cmp_eq_u32 s%d, 3" % S_W)
    o.append("s_cbranch_scc1 L_pro5")
    return o

def pm(t, ks):
    q = ar(A_Q + 16 * t + 4 * ks); D = V_D + 8 * (ks % 2)
    r = []
    for h in range(2):
        d = vr(D + 4 * h)
        r.append("%s %s, %s, %s, 0" % (MF, d, vr(V_SEL + 2 - 2 * h), q))
        r.append("%s %s, %s, %s, %s" % (MF, d, vr(V_SEL + 6 - 2 * h), q, d))
    return r
def pc(t, ks):
    D = V_D + 8 * (ks % 2)
    r = ["v_cvt_pk_bf16_f32 v%d, v%d, v%d" % (D + 2 * i, D + 2 * i, D + 2 * i + 1) for i in range(4)]
    return r + ["v_accvgpr_write_b32 a%d, v%d" % (A_Q + 16 * t + 4 * ks + i, D + 2 * i) for i in range(4)]
def rowmax(t, par=0):
    S = V_S + 8 * par; m, m2 = V_LS, V_LS + 1; N = V_NEGM + 4 * t
    o = ["v_max3_f32 v%d, v%d, v%d, v%d" % (m, S, S + 1, S + 2),
         "v_max3_f32 v%d, v%d, v%d, v%d" % (m2, S + 3, S + 4, S + 5),
         "v_max3_f32 v%d, v%d, v%d, v%d" % (m, m, S + 6, S + 7),
         "v_max_f32 v%d, v%d, v%d" % (m, m, m2),
         "v_mov_b32 v%d, v%d" % (m2, m),
         "v_permlane32_swap_b32 v%d, v%d" % (m, m2),
         "v_max_f32 v%d, v%d, v%d" % (m, m, m2),
         "v_mov_b32 v%d, v%d" % (m2, m),
         "v_permlane16_swap_b32 v%d, v%d" % (m, m2),
         "v_max_f32 v%d, v%d, v%d" % (m, m, m2),
         "v_min_f32 v%d, -v%d, v%d" % (N, m, N)]
    if "moff" in opts: o += ["v_add_f32 v%d, 0x%x, v%d" % (N, f2u(float(opts["moff"])), N)]
    o += ["v_mov_b32 v%d, v%d" % (N + i, N) for i in range(1, 4)]
    return o

def inter(a, b, k):
    out = []; b = list(b)
    for x in a:
        out.append(x); out += b[:k]; del b[:k]
    return out + b
def nogap(x): return [y for y in x if y != "@gap"]
DEP = int(opts.get("dep", 3))
YW = "s_waitcnt vmcnt(%d)" % (4 * (DEP - 1))
CPRO = int(opts.get("C", 2))
TAILN = int(opts.get("T", 2))

class VM:
    def __init__(self, names): self.q = list(names)
    def issue(self, names): self.q += names
    def wait(self, name):
        last = max(i for i, x in enumerate(self.q) if x == name)
        n = len(self.q) - 1 - last
        self.q = self.q[last + 1:]
        return "s_waitcnt vmcnt(%d)" % n

def pipeline(units, p0, hooks, first_qk_done, prev_pv, last_qk, sumfirst=False):
    o = []
    n = len(units)
    H = lambda *k: hooks.get(k, [])
    def QK(k):
        buf, t, first = units[k]
        return H("bQK", k) + qk(buf, t, (p0 + k) % 2, first=first) + H("aQK", k)
    def SM(k):
        buf, t, first = units[k]
        par = (p0 + k) % 2
        r = []
        if first:
            r += rowmax(t, par) + ["v_add_f32 v%d, v%d, v%d" % (V_S + 8 * par + i, V_S + 8 * par + i, V_NEGM + 4 * t) for i in range(8)]
        return r + nogap(sm_seq(par))
    def PV(k):
        buf, t, first = units[k]
        blk = pv(buf, t, (p0 + k) % 2, first=first, sumfirst=sumfirst)
        return H("bPV", k) + blk[:2] + H("mPV", k) + blk[2:] + H("aPV", k)
    if not first_qk_done: o += QK(0)
    o += prev_pv + SM(0)
    for k in range(n):
        if k + 1 < n: o += QK(k + 1)
        elif last_qk is not None:
            o += last_qk; break
        o += PV(k)
        if k + 1 < n: o += SM(k + 1)
    return o

def auto_loads(seq, init, hooks, off, sync, late=lambda s_, k: False):
    for kind, key, fn in (("K", "aQK", kreads), ("V", "aPV", vreads)):
        cur = dict(init); lastuse = {}
        for k, (s_, t, buf) in enumerate(seq):
            if cur.get(buf) != s_:
                at = lastuse.get(buf, -1)
                if late(s_, k):
                    assert at <= k - 2
                    hooks.setdefault(("bPV" if kind == "K" else "aPV", k - 2), []).extend(sync(kind, s_) + fn(buf, off(s_)))
                else: hooks.setdefault((key, at), []).extend(fn(buf, off(s_)))
                cur[buf] = s_
            lastuse[buf] = k

def prologue(NQ):
    C = CPRO
    SNK = C == 3 and "snake" in flags
    PEEL = C == 3 and not SNK
    NA = NQ if C <= 3 else int(opts.get("NA", 3))
    seq = [(s_, t, s_) for t in range(NA) for s_ in (0, 1)]
    if C == 4:
        seq += [(s_, t, s_ % 2) for s_ in (2, 3) for t in range(NA)]
        for t in range(NA, NQ):
            seq += [(s_, t, s_ % 2) for s_ in ((2, 3, 0, 1) if (t - NA) % 2 == 0 else (0, 1, 2, 3))]
    if PEEL: seq += [(2, t, 0) for t in range(NQ)]
    if SNK:
        NA = int(opts.get("NA", 2))
        seq = [(s_, t, s_) for t in range(NA) for s_ in (0, 1)] + [(2, t, 0) for t in range(NA)]
        hold = {0: 2, 1: 1}
        b = (NQ - NA + 1) % 2
        for t in range(NA, NQ):
            miss = 3 - hold[0] - hold[1]
            seq += [(hold[b], t, b), (hold[1 - b], t, 1 - b), (miss, t, b)]
            hold[b] = miss; b = 1 - b
        assert seq[-1][2] == 0
    seen = set(); units = []; firstk = {}
    for k, (s_, t, buf) in enumerate(seq):
        units.append((buf, t, t not in seen))
        if t not in seen: firstk[t] = k
        seen.add(t)
    n = len(seq)
    if SNK:
        qs = ["q%d" % t for t in range(3, NQ)]
        kp = int(opts.get("kp", 0))
        pend = qs[:kp] + ["kv2"] + qs[kp:] + ["kv3", "kv4", None]
        assert EMAP
    elif C <= 3: pend = ["q%d" % t for t in range(3, NQ)] + ["kv2", "kv3", None]
    else:
        pend = ["q%d" % t for t in range(3, NA)] + ["kv2", "kv3"] + ["q%d" % t for t in range(NA, NQ)] + ["kv4", "kv5", None]
        assert NA == 3 or EMAP
    hooks = {}
    def add(key, lines): hooks.setdefault(key, []).extend(lines)
    LW = int(opts.get("lw", 1))
    for u in range(1, NQ):
        k = firstk[u]
        span = 2 if ((C <= 3 and not SNK) or u < NA) else int(opts.get("span", 3))
        k0 = k - span
        P = [pm(u, i) + pc(u, i) for i in range(4)]
        W = ["@wait q%d" % u] + (stamp(7 + u) if "fine" in flags else []) + q_read(u) + ["@next"]
        if "ibw" in flags: W = ["s_waitcnt vmcnt(63)", "@next", "@wait q%d" % u] + q_read(u)
        if u == 1 and ORD != 1:
            W1 = W; P1 = P
        elif LW == 0:
            add(("bQK", k0), W); add(("aQK", k0), P[0] + P[1]); add(("aQK", k0 + 1), P[2] + P[3])
        else:
            add(("aQK", k0), W); add(("bQK", k0 + 1), P[0])
            if span == 2: add(("aQK", k0 + 1), P[1] + P[2] + P[3])
            else: add(("aQK", k0 + 1), P[1]); add(("bQK", k0 + 2), P[2]); add(("aQK", k0 + 2), P[3])
    VS_ = ["@wait v01"] + (stamp(15) if "fine" in flags else []) + ["@next", "s_barrier"]
    if "ibw" in flags: VS_ = ["s_waitcnt vmcnt(63)", "@next", "@wait v01", "s_barrier"]
    if ORD == 1: add(("bPV", 0), VS_ + vreads(0, 0) + vreads(1, 1) + (obias() if OBIAS else []))
    elif ORD == 2:
        add((opts.get("vpos", "aQK"), int(opts.get("vk", 0))), VS_ + vreads(0, 0) + vreads(1, 1))
        add(("bPV", 0), W1 + (obias() if OBIAS else [])); add(("aPV", 0), P1[0] + P1[1] + P1[2] + P1[3])
    else:
        add(("bQK", 0), vreads(0, 0) + vreads(1, 1))
        add(("bPV", 0), W1); add(("aPV", 0), P1[0] + P1[1] + P1[2] + P1[3])
        pend.pop(0)
    synced = set()
    def sync(kind, s_):
        if s_ < 2 or (kind, s_) in synced: return []
        synced.add(("K", s_)); synced.add(("V", s_))
        return ["@wait v%d" % s_, "@next", "s_barrier"]
    firsts = {}
    for k, x in enumerate(seq): firsts.setdefault(x[0], k)
    if PEEL:
        assert SOLO and DEP == 3
        k2 = 2 * NQ
        add(("aQK", k2 - 2), stamp(2))
        add((opts.get("k2p", "bPV"), k2 - 2), ["@wait k2", "s_barrier"] + kreads(0, 2) + ["@kv"])
        add((opts.get("v2p", "bPV"), k2 - 1), ["@wait v2", "s_barrier"] + vreads(0, 2) + ["@kv"])
        ux = n - int(opts.get("h3", 3))
        add(("mPV", ux), ["@wait v3", "s_barrier"] + kreads(1, 3))
    else:
        auto_loads(seq, {0: 0, 1: 1}, hooks, lambda s_: s_, sync, lambda s_, k: firsts[s_] == k)
        ux = max(max(k for k in range(n) if seq[k][2] == C % 2), n - 2)
        add(("aQK", ux), stamp(2))
        assert not EARLY or (SOLO and ORD == 1 and DEP == 3 and C == 2)
        add(("mPV", ux - 1), (["s_waitcnt vmcnt(63)"] if EARLY and NQ == 5 else []) + ["@kv"] * EARLY + ["@wait k%d" % C, "s_barrier"] + kreads(C % 2, C) + (["@touch"] if "touch" in flags else []) + ["@kv"] * (DEP - 2 if not EARLY else 0))
        add(("mPV", ux), ["@wait v%d" % C, "s_barrier", "s_waitcnt lgkmcnt(0)"])
    st = (C // 2) % 4
    fin = ["s_mov_b32 s%d, 0x%x" % (S_XM, st * 0x4000)]
    fin += ["v_xor_b32 v%d, s%d, v%d" % (V_KA + i, S_XM, V_KA + i) for i in range(4 + NVA)]
    fin += ["s_mov_b32 s%d, 0x%x" % (S_XM, 0xc000 if st % 2 else 0x4000)]
    if C % 2 and "xsplit" in flags and NQ == 6: fin += ["v_xor_b32 v%d, s%d, v%d" % (V_KA + i, S_XM, V_KA + i) for i in range(4)]
    nper = 32 - TAILN - C
    fin += ["s_mov_b32 s%d, %d" % (S_CNT, (nper + 1) // 2)]
    fin += ["v_mov_b32 v%d, 0" % LS(i) for i in range(NVS)]
    add(("mPV" if PEEL else "aPV", ux), vreads(C % 2, C) + (["@kv"] if EARLY < 2 else []) + fin)
    o = pipeline(units, 0, hooks, False, [], qk(C % 2, 0, n % 2))
    vm = VM({1: ["q1"] * 4 + ["v01"] * 4 + ["q2"] * 4, 2: ["v01"] * 4 + ["q1"] * 4 + ["q2"] * 4, 3: ["q1"] * 4 + ["q2"] * 4 + ["q3"] * 4}[ORD])
    nkv = [2]
    def do_kv():
        i = nkv[0]; nkv[0] += 1
        vm.issue(["k%d" % i] * 2 + ["v%d" % i] * 2); return kv_dma()
    r = []
    for x in o:
        if x.startswith("@wait"): r.append(vm.wait(x.split()[1]))
        elif x == "@kv" and SOLO:
            if NQ == 5:
                if nkv[0] == (4 if PEEL else C + 2): r.append("s_and_b32 s%d, s%d, 0xffffe000" % (S_KV, S_KV))
                vm.issue(["kv%d" % nkv[0]] * 16); r += kv_full()
            nkv[0] += 1
        elif x == "@kv": r += do_kv()
        elif x == "@touch":
            vm.issue(["touch"]); r += ["s_sub_u32 s%d, s%d, 1024" % (S_QOFF, S_QOFF), "buffer_load_dword a253, v%d, %s, s%d offen nt" % (V_OFF, sr(S_OD), S_QOFF)]
        elif x == "@next":
            nx = pend.pop(0)
            if nx is None: continue
            if nx[0] == "q": vm.issue([nx] * 4); r += q_dma(int(nx[1:]))
            else:
                assert int(nx[2:]) == nkv[0]; r += do_kv()
        else: r.append(x)
    assert not pend and nkv[0] == C + DEP + 1 and len([x for x in vm.q if x != "touch"]) == ((0 if NQ == 6 else 48) if PEEL else 4 * DEP if not SOLO else 4 if NQ == 6 else 4 + 16 * (DEP - 1)), (pend, nkv, vm.q)
    o, tc = schedule(r, dsgap=int(opts.get("dsp", 4)))
    print("prologue", NQ, "sched est", tc, "waits", " ".join(x[-3:] for x in o if "vmcnt" in x))
    o.append("s_nop 1")
    o += stamp(3)
    return o

def slot(mf, par, reads, misc, vsum=None):
    ex, cv = sm_items(par)
    n = len(mf)
    fill = [[] for _ in range(n)]
    S = V_S + 8 * par
    if vsum is None:
        epos = [1, 2, 4, 5, 8, 9, 12, 13] if n == 17 else [1, 2, 4, 5, 7, 8, 11, 12]
        cpos = [3, 6, 10, 14] if n == 17 else [3, 6, 9, 13]
        free = [g for g in range(n) if g not in epos and g not in cpos]
        rpos = sorted(cpos + [free[2], free[2]]) if len(reads) > 4 else cpos
        for e, g in zip(ex, epos): fill[g].append(e)
        for r, g in zip(reads, rpos): fill[g].append(r)
        for c, g in zip(cv, cpos): fill[g].append(c)
        if len(reads) > 4: free.remove(free[2])
    else:
        assert not reads
        ad = ["v_add_f32 v%d, v%d, v%d" % (vsum, vsum, S + i) for i in range(8)]
        o0 = 1
        seq = [[ex[0]], [ex[1]], [ex[2]], [cv[0], ad[0]], [ex[3]], [ad[1], ad[2]], [ex[4]], [cv[1], ad[3]], [ex[5]], [ex[6]], [cv[2], ad[4]], [ex[7]], [ad[5], ad[6]], [cv[3], ad[7]]]
        for i, s in enumerate(seq): fill[o0 + i] += s
        free = [0] + list(range(o0 + len(seq), n))
    assert len(misc) <= len(free), (len(misc), free)
    for grp, g in zip(misc, free):
        if grp: fill[g] = list(grp) + fill[g]
    out = []
    for i in range(n):
        out.append(mf[i]); out += fill[i]
    return out

def loop_body(NQ):
    ev, od = loop_halves(NQ)
    return ev + od if TAILN % 2 == 0 else od + ev
_LH = {}
def loop_halves(NQ):
    if (NQ == 6 and "auto" not in flags) or (NQ == 5 and not SOLO): return loop_halves_man(NQ)
    if NQ in _LH: return _LH[NQ]
    nvs = NVS if NQ == 6 else 0
    VS = VSET if NQ == 6 else []
    lasth = 1 if TAILN % 2 == 0 else 0
    ypos = float(opts.get("y", 2.0)) if NQ == 6 else float(opts.get("y5", 1.0))
    lst = []
    for half, s_ in enumerate((2, 3)):
        buf = s_ % 2
        par = lambda t: (s_ * NQ + t) % 2
        mfb = []
        o = []
        XS = 4 if ("xsplit" in flags and NQ == 6) else 0
        if half:
            o += ["v_xor_b32 v%d, s%d, v%d" % (V_KA + i, S_XM, V_KA + i) for i in range(XS, 4 + NVA)]
            o += ["s_xor_b32 s%d, s%d, 0x8000" % (S_XM, S_XM)]
        d = kv_dma(); kr = kreads(1 - buf, 1 - half); vrd = vreads(1 - buf, 1 - half)
        Y = [yw(NQ), "s_barrier"] + kr + d[0:2] + vrd[0:4] + d[2:4] + vrd[4:8] + d[4:5] + vrd[8:12] + d[5:7] + vrd[12:16]
        if SOLO and NQ == 6: Y = [yw(NQ), "s_barrier"] + kr + vrd
        if SOLO and NQ == 5: Y = [yw(NQ), "s_barrier"] + merge(kr + vrd, kv_full())
        if not half: Y += ["v_xor_b32 v%d, s%d, v%d" % (V_KA + i, S_XM, V_KA + i) for i in range(XS)]
        if half == lasth: Y += ["s_sub_u32 s%d, s%d, 1" % (S_CNT, S_CNT), "s_cmp_lg_u32 s%d, 0" % S_CNT]
        for t in range(NQ):
            pvb = pv(buf, t - 1, par(t - 1), msum=(t - 1 not in VS)) if t > 0 else pv(1 - buf, NQ - 1, par(-1), msum=(NQ - 1 not in VS))
            qkb = qk(buf, t + 1, par(t + 1)) if t < NQ - 1 else qk(1 - buf, 0, par(NQ))
            sm = nogap(sm_seq(par(t)))
            if t in VS: sm += ["v_add_f32 v%d, v%d, v%d" % (LS(VS.index(t)), LS(VS.index(t)), V_S + 8 * par(t) + i) for i in range(8)]
            if t == 1: o.append("@lg " + ar(A_V + 32 * buf, 32))
            if t == NQ - 1: qkb = ["@lg " + ar(A_K + 32 * (1 - buf), 32)] + qkb
            blk = pvb + sm + qkb
            if int(ypos) == t:
                nth = int(round((ypos - t) * 16))
                idx = [i for i, x in enumerate(blk) if x.startswith("v_mfma")][nth]
                if "bsep" in flags and NQ == 6: blk = blk[:idx] + Y[:1] + blk[idx:idx + 1] + Y[1:] + blk[idx + 1:]
                else: blk = blk[:idx + 1] + Y + blk[idx + 1:]
            o += blk
        lst.append(o)
    kw = dict(urg=False, dmac=8, dsgap=int(opts.get("dsg", 16)), mflat=int(opts.get("mfl", 0)))
    res = [[], []]
    if NQ == 5:
        for half in range(2):
            pm_ = [x for x in lst[1 - half] if x.startswith("v_mfma")]
            best = None
            for th in (24, 40, 60, 80, 100, 130, 160):
                for seed in [None] + list(range(4)):
                    r, tc = schedule(lst[half], pre=pm_[-8:], sentinel=pm_[0], urg=False, dmac=8, dsgap=int(opts.get("dsg5", 12)), pairing=th, seed=seed)
                    if best is None or tc < best[1]: best = (r, tc)
            r, tc = best
            o_, e_ = process([("p", pm_[-8:], False), ("b", r + [pm_[0]], True)])
            res[half] = o_["b"][:-1]
            print("loop half", NQ, half, "est", tc)
        _LH[NQ] = res
        return res
    for half in range(2):
        pm_ = [x for x in lst[1 - half] if x.startswith("v_mfma")]
        pre = []
        for x in pm_[-5:]: pre += [x, "s_nop 0"] if "optpre" in flags else [x]
        body = lst[half] + (["s_cbranch_scc1 L_loop%d" % NQ] if half == lasth else [])
        best = None
        for th in (24, 40, 60, 80, 100, 130, 160):
            for seed in [None] + list(range(int(opts.get("seeds", 6)))):
                r, tc = schedule(lst[half], pre=pre, pairing=th, seed=seed, sentinel=pm_[0], **kw)
                mi = [i for i, x in enumerate(r) if x.startswith("v_mfma")][-5:] + [len(r) + (1 if half == lasth else 0)]
                if "optpre" in flags and any(mi[j + 1] - mi[j] < 2 for j in range(5)): tc += 500
                if half == lasth and (len(r) - mi[4] > 2 or r[-1].startswith("v_exp") or r[-1].startswith("buffer")): tc += 4
                if best is None or tc < best[1]: best = (r, tc, th, seed)
        res[half] = best[0]
        print("loop half", NQ, half, "est", best[1:])
    _LH[NQ] = res
    return res
def loop_halves_man(NQ):
    res = []
    lasth = 1 if TAILN % 2 == 0 else 0
    par = lambda s, t: (s * NQ + t) % 2
    nvs = NVS if NQ == 6 else 0
    ysl = NQ - 4
    for half, s in enumerate((2, 3)):
        buf = s % 2
        o = []
        rd = kreads(1 - buf, 1 - half) + vreads(1 - buf, 1 - half)
        d = kv_dma() if not SOLO else []
        x = ["v_xor_b32 v%d, s%d, v%d" % (V_KA + i, S_XM, V_KA + i) for i in range(4 + NVA)]
        for t in range(NQ):
            pvb = pv(buf, t - 1, par(s, t - 1), msum=(t - 1 >= nvs)) if t > 0 else pv(1 - buf, NQ - 1, par(s - 1, NQ - 1))
            qkb = qk(buf, t + 1, par(s, t + 1)) if t < NQ - 1 else qk(1 - buf, 0, par(s + 1, 0))
            reads = []
            if t >= ysl: reads = rd[:6]; rd = rd[6:]
            misc = []
            wv = ["s_waitcnt lgkmcnt(0)"]
            if NQ == 6:
                if t == 0:
                    misc = [x[0:2], x[2:4], x[4:5] + wv] if half else [None, None, wv]
                    if nvs == 0: misc = [None, None] + misc
                if t == 1:
                    misc = [x[5:7], x[7:9]] if half else []
                if t == 2:
                    misc = [[yw(NQ), "s_barrier"], d[0:1] + (x[9:10] if half else []), x[10:12] if half else None]
                if t == 3: misc = [d[1:2], d[2:3], d[3:4] + (["s_xor_b32 s%d, s%d, 0x8000" % (S_XM, S_XM)] if half else [])]
                if t == 4: misc = [d[4:5], d[5:6], d[6:7]]
                if t == 5: misc = [None, ["s_waitcnt lgkmcnt(2)"]] + ([["s_sub_u32 s%d, s%d, 1" % (S_CNT, S_CNT)], ["s_cmp_lg_u32 s%d, 0" % S_CNT]] if half == lasth else [])
            else:
                if t == 0: misc = [x[0:2], x[2:4], x[4:6], x[6:8], x[8:9] + wv] if half else [None, None, None, None, wv]
                if t == 1: misc = [[yw(NQ), "s_barrier"], d[0:1] + (x[9:10] if half else []), x[10:12] if half else None]
                if t == 2: misc = [d[1:2], d[2:3], d[3:4] + (["s_xor_b32 s%d, s%d, 0x8000" % (S_XM, S_XM)] if half else [])]
                if t == 3: misc = [d[4:5], d[5:6], d[6:7]]
                if t == 4: misc = [None, ["s_waitcnt lgkmcnt(2)"]] + ([["s_sub_u32 s%d, s%d, 1" % (S_CNT, S_CNT)], ["s_cmp_lg_u32 s%d, 0" % S_CNT]] if half == lasth else [])
            o += slot(pvb + qkb, par(s, t), reads, misc, vsum=(LS(t) if t < nvs else None))
        assert not rd
        res.append(o)
    return res

SA, ACC = V_OFF, 15
A_SA = 252
def epi_setup():
    o = ["v_accvgpr_read_b32 v%d, a%d" % (SA, A_SA)]
    o.append("v_mov_b32 v%d, 0" % ACC)
    o.append(("s_lshl_b32 s%d, s%d, 12" if "ilv" in flags else "s_mul_i32 s%d, s%d, 24576") % (S_QOFF, S_W))
    o.append("s_mov_b32 vcc_lo, 0x55555555"); o.append("s_mov_b32 vcc_hi, 0x55555555")
    return o
def vsum_reduce(t):
    x = LS(VSET.index(t)); T = V_NEGM + 4 * t + 2
    return ["v_mov_b32 v%d, v%d" % (T, x), "v_permlane32_swap_b32 v%d, v%d" % (x, T), "v_add_f32 v%d, v%d, v%d" % (x, x, T),
            "v_mov_b32 v%d, v%d" % (T, x), "v_permlane16_swap_b32 v%d, v%d" % (x, T), "v_add_f32 v%d, v%d, v%d" % (x, x, T)]
DPPX = "quad_perm:[1,0,3,2] row_mask:0xf bank_mask:0xf"
def epi(t, vs, pk=False):
    E_L = V_NEGM + 4 * t
    h = ["v_accvgpr_read_b32 v%d, a%d" % (E_L, A_L + 4 * t)]
    if vs: h.append("v_add_f32 v%d, v%d, v%d" % (E_L, E_L, LS(VSET.index(t))))
    h.append("v_add_f32 v%d, v%d, v%d" % (ACC, ACC, E_L))
    h.append("v_rcp_f32 v%d, v%d" % (E_L, E_L))
    if OBIAS: h.append("v_mul_f32 v%d, s%d, v%d" % (E_L + 1, S_OB, E_L))
    m = []; sw = []; x = []
    pol = STL if t == LASTT[0] else STNT
    for s in range(4):
        b = V_O + 32 * t + 8 * s
        g = []
        if pk and OBIAS:
            for i in range(0, 8, 2): g.append("v_pk_fma_f32 %s, %s, %s, %s op_sel:[0,0,1] op_sel_hi:[1,0,1] neg_lo:[0,0,1] neg_hi:[0,0,1]" % (vr(b + i, 2), vr(b + i, 2), vr(E_L, 2), vr(E_L, 2)))
        elif OBIAS:
            for i in range(8): g.append("v_fma_f32 v%d, v%d, v%d, -v%d" % (b + i, b + i, E_L, E_L + 1))
        elif pk:
            for i in range(0, 8, 2): g.append("v_pk_mul_f32 %s, %s, %s op_sel_hi:[1,0]" % (vr(b + i, 2), vr(b + i, 2), vr(E_L, 2)))
        else:
            for i in range(8): g.append("v_mul_f32 v%d, v%d, v%d" % (b + i, b + i, E_L))
        for i in range(4): g.append("v_cvt_pk_bf16_f32 v%d, v%d, v%d" % (b + i, b + 2 * i, b + 2 * i + 1))
        m.append(g)
        sw.append([] if VMAP else ["v_permlane16_swap_b32 v%d, v%d" % (b, b + 2), "v_permlane16_swap_b32 v%d, v%d" % (b + 1, b + 3)])
    for p in range(2):
        X = V_O + 32 * t + 16 * p; Y = X + 8
        A = ["v_cndmask_b32_dpp v%d, v%d, v%d, vcc %s" % (X + 4 + i, Y + i, X + i, DPPX) for i in (0, 2, 1, 3)] + ["s_not_b64 vcc, vcc"]
        B = ["v_cndmask_b32_dpp v%d, v%d, v%d, vcc %s" % (Y + i, X + i, Y + i, DPPX) for i in range(4)] + ["s_not_b64 vcc, vcc"]
        if "nost" not in flags:
            A.append("buffer_store_dwordx4 %s, v%d, %s, s%d offen offset:%d%s" % (vr(X + 4), SA, sr(S_OD), S_QOFF, 128 * p, pol))
            B.append("buffer_store_dwordx4 %s, v%d, %s, s%d offen offset:%d%s" % (vr(Y), SA, sr(S_OD), S_QOFF, 128 * p + 256, pol))
        if p == 1: B.append("s_add_u32 s%d, s%d, %d" % (S_QOFF, S_QOFF, 16384 if "ilv" in flags else 4096))
        x.append((A, B))
    return h, m, sw, x
LASTT = [None]
def epi_body(m, sw, x):
    k = 2
    return (m[1][:k] + sw[0] + m[1][k:] + m[2][:k] + sw[1] + m[2][k:k + 2] + x[0][0] + m[2][k + 2:] + m[3][:k] + sw[2] + x[0][1][:3] + m[3][k:]
            + x[0][1][3:] + sw[3]), x[1][0] + x[1][1]
def epi_flat(t, vs):
    h, m, sw, x = epi(t, vs)
    body, fin = epi_body(m, sw, x)
    return h + m[0] + body, fin

def tail(NQ):
    LASTT[0] = NQ - 1
    nvs = NVS if NQ == 6 else 0
    if TAILN == 2:
        seq = [(30, 0, 0), (30, 1, 0), (31, 0, 1), (31, 1, 1)] + [(30 + b, t, b) for t in range(2, NQ) for b in (0, 1)]
        if "tq" in flags: seq = [(30 + b, t, b) for t in range(NQ) for b in (0, 1)]
        init = {0: 30}; off = lambda s_: s_ - 30; s0 = 30; w = 4 * (DEP - 1)
    else:
        e = max(2, NQ - int(opts.get("post", 3)))
        seq = [(29, t, 1) for t in range(e)] + [(30, 0, 0), (30, 1, 0), (31, 0, 1), (31, 1, 1)]
        seq += [(30 + b, t, b) for t in range(2, e) for b in (0, 1)]
        seq += [(30, t, 0) for t in range(e, NQ)]
        seq += [x for t in range(e, NQ) for x in ((31, t, 1), (29, t, 0))]
        init = {1: 29}; off = lambda s_: s_ - 28; s0 = 29; w = 4 * (DEP - 2)
    n = len(seq)
    p0 = (s0 * NQ) % 2
    hooks = {}
    def add(key, lines): hooks.setdefault(key, []).extend(lines)
    auto_loads(seq, init, hooks, off, lambda kind, s_: [])
    ppv = pv(1 - s0 % 2, NQ - 1, 1 - p0)
    pre = ppv[:1] + [yw(NQ, TAILN - 1), "s_barrier"] + hooks.pop(("aQK", -1)) + ppv[1:] + hooks.pop(("aPV", -1))
    if TAILN == 3 and "xsplit" in flags and NQ == 6:
        pre = ["v_xor_b32 v%d, s%d, v%d" % (V_KA + i, S_XM, V_KA + i) for i in range(4)] + pre
    pre += epi_setup()
    DL = int(opts.get("dl", 2))
    lastk = {t: k for k, (s_, t, b) in enumerate(seq)}
    dead = {}; prevd = -1
    for t in sorted(lastk, key=lambda t: lastk[t]):
        k = lastk[t]
        isv = NQ == 6 and t in VSET
        if isv: add(("aQK", k), vsum_reduce(t))
        h, m, sw, x = epi(t, isv, pk=True)
        if k == n - 1: m[0] = epi(t, isv)[1][0]
        else:
            h = h + ["\n".join(sum([g[:4] for g in m], []))]
            m = [g[4:] for g in m]
        e_ = h + m[0] + sw[0] + m[1] + sw[1] + x[0][0] + x[0][1] + m[2] + sw[2] + m[3] + sw[3] + x[1][0] + x[1][1]
        e_[-1] += " ; tag=e%d" % t
        add(("aPV", k), e_)
        if "dls" in opts:
            c = opts["dls"][t]
            hu = int(c)
            key = ("bPV", k + hu // 2) if hu % 2 == 0 else ("bQK", k + 2 + hu // 2)
            if key[1] < n - (1 if key[0] == "bPV" else 0): add(key, ["@after e%d" % t])
        else:
            d = max(k + DL, prevd + 1); prevd = d
            if d < n - 1: add(("bPV", d), ["@after e%d" % t])
    o = pipeline([(b, t, False) for (s_, t, b) in seq], p0, hooks, True, pre, None, sumfirst=True)
    r = []; pendtag = None
    for x in o:
        if x.startswith("@after"): pendtag = x.split()[1]
        else:
            r.append(x + (" ; after=" + pendtag if pendtag else "")); pendtag = None
    o, tc = schedule(r, pre=loop_body(NQ), dsgap=int(opts.get("dst", 16)))
    print("tail", NQ, "sched est", tc)
    o = stamp(4) + o + stamp(5)
    o += stamp(6)
    o.append("s_lshl_b32 s%d, s%d, 13" % (S_T0, S_W)); o.append("s_add_u32 s%d, s%d, 0x%x" % (S_T0, S_T0, LDS_X))
    o.append("s_mov_b32 s%d, 0x%x" % (S_T1, THRESH))
    o.append("v_cmp_ngt_f32 vcc, s%d, v%d" % (S_T1, ACC))
    o.append("s_cmp_lg_u64 vcc, 0")
    o.append("s_cselect_b32 s%d, 1, 0" % S_T1)
    o.append("v_mbcnt_lo_u32_b32 v4, -1, 0"); o.append("v_mbcnt_hi_u32_b32 v4, -1, v4")
    o.append("v_mov_b32 v5, s%d" % S_T1)
    o.append("v_mov_b32 v6, s%d" % S_T0)
    o.append("ds_write_b32 v6, v5 offset:6144")
    o.append("v_and_b32 v6, 3, v4")
    o.append("v_lshlrev_b32 v6, 13, v6")
    o.append("v_add_u32 v6, 0x%x, v6" % LDS_X)
    o.append("s_waitcnt lgkmcnt(0)")
    o.append("s_barrier")
    o.append("ds_read_b32 v5, v6 offset:6144")
    o.append("s_waitcnt lgkmcnt(0)")
    o.append("v_cmp_ne_u32 vcc, 0, v5")
    o.append("s_cmp_lg_u32 s%d, 0" % S_REDO)
    o.append("s_cbranch_scc1 L_fin")
    o.append("s_branch L_fin" if "noredo" in flags else "s_cbranch_vccz L_fin")
    return o

def redo(NQ):
    o = ["s_waitcnt vmcnt(0)", "s_barrier", "s_mov_b32 s%d, 1" % S_REDO]
    M = V_O + 64; AD = V_KA + 2
    o.append("v_and_b32 v%d, 15, v4" % AD); o.append("v_lshlrev_b32 v%d, 8, v%d" % (AD, AD))
    o.append("v_lshrrev_b32 v5, 4, v4"); o.append("v_lshl_add_u32 v%d, v5, 4, v%d" % (AD, AD))
    for t in range(NQ): o.append("v_mov_b32 v%d, 0xff800000" % (M + t))
    o.append("s_mov_b32 s%d, 0" % S_T0)
    body = []
    for ks in range(4):
        body.append("buffer_load_dwordx4 %s, v%d, %s, s%d offen offset:%d" % (ar(A_K + 4 * ks), AD, sr(S_KD), S_T0, 64 * ks))
    body.append("s_waitcnt vmcnt(0)")
    for t in range(NQ):
        d = vr(V_O + 4 * t)
        for ks in range(4):
            body.append("%s %s, %s, %s, %s" % (MF, d, ar(A_K + 4 * ks), ar(A_Q + 16 * t + 4 * ks), d if ks else "0"))
    body.append("s_nop 7")
    for t in range(NQ):
        b = V_O + 4 * t
        body.append("v_max3_f32 v%d, v%d, v%d, v%d" % (M + t, M + t, b, b + 1))
        body.append("v_max3_f32 v%d, v%d, v%d, v%d" % (M + t, M + t, b + 2, b + 3))
    body.append("s_add_u32 s%d, s%d, 4096" % (S_T0, S_T0))
    body.append("s_cmp_lt_u32 s%d, 0x40000" % S_T0)
    body.append("s_cbranch_scc1 L_max%d" % NQ)
    post = []
    for t in range(NQ):
        m, m2 = M + t, 5
        post += ["v_mov_b32 v%d, v%d" % (m2, m), "v_permlane32_swap_b32 v%d, v%d" % (m, m2), "v_max_f32 v%d, v%d, v%d" % (m, m, m2),
                 "v_mov_b32 v%d, v%d" % (m2, m), "v_permlane16_swap_b32 v%d, v%d" % (m, m2), "v_max_f32 v%d, v%d, v%d" % (m, m, m2),
                 "v_sub_f32 v%d, 0, v%d" % (V_NEGM + 4 * t, m)]
    post += offs() + first_dma()
    post.append("s_branch L_restart")
    return o, body, post

def fin():
    o = ["L_fin:"]
    if STAMP:
        o.append("s_waitcnt vmcnt(0)")
        o += stamp(7)
        if "pad" in opts:
            o.append("s_mov_b32 s80, %d" % (int(opts["pad"]) * 100))
            if "pb" in opts:
                cyc = 0 if "pcyc" in flags else 2
                o.append("s_sub_u32 s81, s%d, s%d" % (S_ST + 4 * int(opts["pb"]) + cyc, S_ST + 4 * int(opts.get("pa", 0)) + cyc))
                if "pcyc" in flags: o.append("s_lshr_b32 s81, s81, 4")
                o.append("s_add_u32 s80, s80, s81")
            o.append("L_spin:")
            o.append("s_memrealtime s[82:83]"); o.append("s_waitcnt lgkmcnt(0)")
            o.append("s_sub_u32 s81, s82, s%d" % (S_ST + 2))
            o.append("s_cmp_lt_u32 s81, s80"); o.append("s_cbranch_scc1 L_spin")
            o.append("s_branch L_end")
        w = int(opts.get("sw", 0))
        o.append("s_cmp_lg_u32 s%d, %d" % (S_W, w)); o.append("s_cbranch_scc1 L_end")
        o.append("s_lshl_b32 s3, s2, 9")
        o.append("s_add_u32 s%d, s%d, s3" % (S_WS, S_WS)); o.append("s_addc_u32 s%d, s%d, 0" % (S_WS + 1, S_WS + 1))
        n = nstamp[0]
        for i in range(4 * n): o.append("v_mov_b32 v%d, s%d" % (64 + i, S_ST + i))
        o.append("v_mov_b32 v1, 0"); o.append("s_mov_b64 exec, 1")
        for i in range(n): o.append("global_store_dwordx4 v1, %s, %s offset:%d" % (vr(64 + 4 * i), sr(S_WS, 2), 16 * i))
    o.append("L_end:"); o.append("s_endpgm")
    return o

su = setup(); cm = common()
code = None; errs = []
for NQ in (6, 5):
    ev, od = loop_halves(NQ)
    br = ["s_cbranch_scc1 L_loop%d" % NQ]
    r1, rb, r2 = redo(NQ)
    pro = prologue(NQ)
    if TAILN % 2 == 0 and CPRO % 2 == 1:
        pro = pro + ["s_branch L_odd%d" % NQ]
        lp = [("od", od + br, False), ("ev", ev, False)] * 2 + [("od", od + br, False)]
    elif TAILN % 2 == 0:
        lp = [("ev", ev, False), ("od", od + br, False)] * 2
    else:
        pro = pro + ["s_branch L_even%d" % NQ]
        lp = [("ev", ev + br, False), ("od", od, False)] * 2 + [("ev", ev + br, False)]
    segs = [("su", su, True), ("cm", cm, True), ("pro", pro, True)] + lp + [
            ("tail", tail(NQ), True), ("r1", r1, True), ("rb", rb, False), ("rb", rb, False), ("r2", r2, True), ("cm", cm, True)]
    out, e = process(segs)
    errs += ["NQ%d: %s" % (NQ, x) for x in e]
    if code is None: code = out["su"] + out["cm"]
    else: code.append("L_pro5:")
    code += out["pro"] + [".p2align %d" % int(opts.get("al", 6)), "L_loop%d:" % NQ]
    code += (out["ev"] + ["L_odd%d:" % NQ] + out["od"]) if TAILN % 2 == 0 else (out["od"] + ["L_even%d:" % NQ] + out["ev"])
    code += out["tail"] + out["r1"] + ["L_max%d:" % NQ] + out["rb"] + out["r2"]
code += fin()
if "force" not in flags:
    for e in errs[:10]: print("ERR", e)
    if errs: sys.exit(1)
hdr = open("standalone__mha_softmax__near_ridge.s.ref").read().split("; Override launch")[0]
L = hdr.rstrip("\n").split("\n")
L.append("; @launch grid=(256,1,1) block=(256,1,1) lds=163840")
L += """;
; Attention forward, one workgroup (4 waves, one per SIMD) per (batch, head); written by a generator script.
;  * 368 query rows = 23 tiles of 16: waves 0-2 own 6 tiles, wave 3 owns 5 tiles and streams K/V for everybody.
;  * K/V arrive by LDS-DMA in 32-key sub-tiles (8-slot ring, XOR-swizzled source), one barrier per sub-tile.
;  * 16x16x32 bf16 MFMA: S^T = K Q^T (Q pre-scaled by log2(e)/sqrt(D)), P = exp2(S^T - m), O^T += V^T P,
;    row sums by a ones-row MFMA or VALU adds; m enters as the C operand of the first MFMA of each chain.
;  * Softmax max guard: m is the row max over the first 32 keys (never above the true max) plus 11, an exact
;    2^-11 scale that cancels in O/l. The final row sums bound every P; if any is not below 2^13 (or is NaN),
;    i.e. some score might exceed that max by 24 in log2 units, the workgroup takes the fallback: it computes
;    the true row max over all keys (L_max*) and runs the whole pass again with it.
;  * The O accumulators start at a small bias B (1.5 * 2^k, from the smallest column norm of the first V rows)
;    that the epilogue subtracts again: sign and exponent of the accumulators stay put, which saves power
;    (B = 0 in the fallback pass).
;  * The first instructions pull the kernel's own code into L2 so that the straight-line parts do not
;    stall on instruction fetch.""".split("\n")
if STAMP: L.append("; nstamps %d" % nstamp[0]); L.append("; variant: " + variant)
L += ['.amdgcn_target "amdgcn-amd-amdhsa--gfx950"', ".text", ".globl " + NAME, ".p2align 8", ".type %s,@function" % NAME, NAME + ":"]
for c in code: L.append(c if c.endswith(":") or c.startswith(".") else "    " + c)
L += ['.section .rodata,"a"', ".p2align 6", ".amdhsa_kernel " + NAME,
      "  .amdhsa_next_free_vgpr 512", "  .amdhsa_next_free_sgpr 102", "  .amdhsa_accum_offset 256",
      "  .amdhsa_group_segment_fixed_size 0", "  .amdhsa_kernarg_size 48", "  .amdhsa_user_sgpr_count 2",
      "  .amdhsa_user_sgpr_kernarg_segment_ptr 1", "  .amdhsa_system_sgpr_workgroup_id_x 1", ".end_amdhsa_kernel"]
open(sys.argv[1], "w").write("\n".join(L) + "\n")
```
